```python
import torch

def _softmax(x, axis=-1):
    return torch.softmax(x, dim=axis)
def _gelu(x):
    return torch.nn.functional.gelu(x, approximate="tanh")
def _silu(x):
    return torch.nn.functional.silu(x)
def _sigmoid(x):
    return torch.sigmoid(x)
def _layernorm(x, axis=-1, eps=1e-5):
    m = x.mean(dim=axis, keepdim=True)
    v = x.var(dim=axis, keepdim=True, unbiased=False)
    return (x - m) / torch.sqrt(v + eps)
def _scatter_add(tgt, idx, src, axis=0):
    return tgt.clone().index_add_(axis, idx, src)
def _segment_sum(src, seg, n):
    out = torch.zeros((n,) + src.shape[1:], dtype=src.dtype)
    return out.index_add_(0, seg, src)
def _pad(x, pw):
    flat = tuple(v for pair in reversed(pw) for v in pair)
    return torch.nn.functional.pad(x, flat)

kernel_name = 'standalone__gqa_block_cached__near_ridge'

def setup_inputs():

    _w = (lambda a: (lambda t: t.to(torch.bfloat16) if t.is_floating_point() else t)(torch.as_tensor(a)))
    B, Sq, D = 8, 48, 512
    Hq, Hkv, Sk, Dh = 32, 8, 2048, 128
    assert Hq % Hkv == 0, (Hq, Hkv)
    return {
        "x": _w((lambda *s: torch.randn(*s, dtype=torch.bfloat16) * 0.8)(B, Sq, D)),
        "k_cache": _w((lambda *s: torch.randn(*s, dtype=torch.bfloat16) * 0.8)(B, Hkv, Sk, Dh)),
        "v_cache": _w((lambda *s: torch.randn(*s, dtype=torch.bfloat16) * 0.05)(B, Hkv, Sk, Dh)),
        "wq": _w((lambda *s: torch.randn(*s, dtype=torch.bfloat16) * 0.8)(D, Hq * Dh) * (D ** -0.5)),
        "wo": _w((lambda *s: torch.randn(*s, dtype=torch.bfloat16) * 0.05)(Hq * Dh, D) * ((Hq * Dh) ** -0.5)),
    }

def reference(x, k_cache, v_cache, wq, wo):
    B, Sq, D = x.shape
    Hq, Dh = 32, 128
    Hkv = k_cache.shape[1]
    rep = Hq // Hkv
    q = (lambda x, *d: x.permute(*d))((x @ wq).reshape(B, Sq, Hq, Dh), 0, 2, 1, 3)
    k = (lambda x, n, axis: torch.repeat_interleave(x, n, dim=axis))(k_cache, rep, axis=1)
    v = (lambda x, n, axis: torch.repeat_interleave(x, n, dim=axis))(v_cache, rep, axis=1)
    scores = torch.einsum("bhqd,bhkd->bhqk", q, k) * (Dh ** -0.5)
    p = _softmax(scores, axis=-1)
    o = torch.einsum("bhqk,bhkd->bhqd", p, v)
    return (lambda x, *d: x.permute(*d))(o, 0, 2, 1, 3).reshape(B, Sq, Hq * Dh) @ wo
```

```python
import re
MAIN = "standalone__gqa_block_cached__near_ridge_kernel"

class Asm:
    def __init__(self):
        self.lines = []
        self.launch = []
        self.desc = []
        self.uid = 0
    def A(self, s):
        m = re.search(r"offset:(\d+)", s)
        if m:
            off = int(m.group(1))
            if s.strip().startswith("buffer_"):
                assert off <= 4095, s
            elif s.strip().startswith("ds_"):
                assert off <= 65535, s
            elif s.strip().startswith("global_"):
                assert off <= 4095, s
        self.lines.append("  " + s if not s.endswith(":") else s)
    def __call__(self, s):
        for l in s.strip("\n").split("\n"):
            l = l.strip()
            if l:
                self.A(l)
    def label(self, p="L"):
        self.uid += 1
        return f"{p}_{self.uid}"
    def begin_kernel(self, name, grid, block, lds, listed=True):
        if listed:
            self.launch.append(f"; @launch kernel={name} grid=({grid},1,1) block=({block},1,1) lds={lds}")
        else:
            self.launch.append(f"; @launch grid=({grid},1,1) block=({block},1,1) lds={lds}")
        self.lines += [f".globl {name}", ".p2align 8", f".type {name},@function", f"{name}:"]
    def end_kernel(self, name, vgpr, sgpr=96, accum=None):
        if accum is None:
            accum = (vgpr + 3) // 4 * 4
        self.desc += [".p2align 6", f".amdhsa_kernel {name}",
            f"  .amdhsa_next_free_vgpr {vgpr}", f"  .amdhsa_next_free_sgpr {sgpr}", f"  .amdhsa_accum_offset {accum}",
            "  .amdhsa_group_segment_fixed_size 0", "  .amdhsa_kernarg_size 64", "  .amdhsa_user_sgpr_count 2",
            "  .amdhsa_user_sgpr_kernarg_segment_ptr 1", "  .amdhsa_system_sgpr_workgroup_id_x 1",
            "  .amdhsa_float_denorm_mode_32 3",
            ".end_amdhsa_kernel"]
    def srd(self, d, base, nbytes):
        self(f"""s_mov_b32 s{d}, s{base}
        s_and_b32 s{d+1}, s{base+1}, 0xffff
        s_mov_b32 s{d+2}, {nbytes:#x}
        s_mov_b32 s{d+3}, 0x20000""")
    def text(self, header=""):
        out = []
        if header:
            out += ["; " + l for l in header.strip("\n").split("\n")]
        out += self.launch
        out += ['.amdgcn_target "amdgcn-amd-amdhsa--gfx950"', ".text"]
        out += self.lines
        out += ['.section .rodata,"a"'] + self.desc
        return "\n".join(out) + "\n"
```

```python
import sys, math
sys.path.insert(0, "gen")
from asmlib import *

QX = 0x0000000
OX = 0x0800000
LX = 0x1800000
FX = 0x1900000
YX = 0x2000000
STAMP = 0xF000000
WS_BYTES = 0x10000000

S_X, S_K, S_V, S_WQ, S_WO, S_OUT, S_DBG, S_WS = 4, 8, 12, 16, 20, 24, 28, 32
S_PTR = 40
S_WAVE, S_HH, S_P, S_HKV, S_B, S_S, S_KVB = 56, 57, 58, 59, 60, 61, 62
S_M0B = 63
S_NONCE = 64
S_T0, S_T1, S_T2, S_T3 = 66, 67, 68, 69
S_SELLO, S_SELHI = 70, 71
S_THR = 72
S_CH, S_KQ = 73, 74
S_RET = 76
S_SUB = 78
S_ACC = 80
S_CNT = 82
S_EXEC = 84
S_TAG = 86
S_ST = 90
S_STB = 92
S_C = 94

V_TID, V_LANE, V_Q16, V_G = 0, 1, 2, 3
V_KA0, V_KA1, V_VA, V_DK, V_DV = 4, 5, 6, 7, 8
V_L, V_U = 9, 12
V_X0 = 15
V_T = 24
V_NM = 32
V_P = 44
V_F = 56
V_S = 88
V_Q = 112
V_O = 160

SCR = 7 * 16384
LOG2E = 1.4426950408889634
CSCALE = (128 ** -0.5) * LOG2E


def f32bits(x):
    import struct
    return struct.unpack("<I", struct.pack("<f", x))[0]


class VM:
    def __init__(self, a):
        self.a = a
        self.ops = []
    def issue(self, tag):
        self.ops.append(tag)
    def wait(self, tag):
        idx = max(i for i, t in enumerate(self.ops) if t == tag)
        n = len(self.ops) - 1 - idx
        assert n <= 63
        self.a(f"s_waitcnt vmcnt({n})")
    def has(self, tag):
        return tag in self.ops
    def wait_all(self):
        self.a("s_waitcnt vmcnt(0)")
    def copy(self):
        c = VM(self.a); c.ops = list(self.ops); return c


def vr(base, n):
    return f"v[{base}:{base+n-1}]"


def gen(kvpol="nt", wpol="", stamps=False, stop=None, prefetch_code=True, thr=256.0):
    a = Asm()
    NST = 10
    def stamp(i, wave0_only=True):
        if not stamps:
            return
        L = a.label("Lst")
        a(f"""s_cmp_lg_u32 s{S_WAVE}, 0
        s_cbranch_scc1 {L}
        s_memrealtime s[{S_ST}:{S_ST+1}]
        s_waitcnt lgkmcnt(0)
        v_mov_b32 v{V_X0+7}, s{S_ST}
        v_mov_b32 v{V_X0+8}, s{S_ST+1}
        v_mov_b32 v{V_X0+6}, 0
        s_mov_b64 s[{S_EXEC}:{S_EXEC+1}], exec
        s_mov_b64 exec, 1
        global_store_dwordx2 v{V_X0+6}, v[{V_X0+7}:{V_X0+8}], s[{S_STB}:{S_STB+1}] offset:{i*8}
        s_mov_b64 exec, s[{S_EXEC}:{S_EXEC+1}]
        {L}:""")

    a.begin_kernel(MAIN, 256, 512, 163840, listed=False)
    a(f"""s_cmp_ge_u32 s2, 256
    s_cbranch_scc1 L_end
    s_load_dwordx16 s[{S_PTR}:{S_PTR+15}], s[0:1], 0
    s_memrealtime s[{S_NONCE}:{S_NONCE+1}]
    v_lshrrev_b32 v{V_X0}, 6, v0
    v_and_b32 v{V_LANE}, 63, v0
    v_readfirstlane_b32 s{S_WAVE}, v{V_X0}
    v_and_b32 v{V_Q16}, 15, v0
    v_bfe_u32 v{V_G}, v0, 4, 2
    s_and_b32 s{S_HKV}, s2, 7
    s_lshr_b32 s{S_B}, s2, 5
    s_bfe_u32 s{S_S}, s2, 0x20003
    s_and_b32 s{S_HH}, s{S_WAVE}, 3
    s_lshr_b32 s{S_P}, s{S_WAVE}, 2
    s_and_b32 s{S_CH}, s{S_WAVE}, 1
    s_lshr_b32 s{S_KQ}, s{S_WAVE}, 1
    s_lshl_b32 s{S_M0B}, s{S_WAVE}, 10
    s_mov_b32 s{S_SELLO}, 0x05040100
    s_mov_b32 s{S_SELHI}, 0x07060302
    s_mov_b32 s{S_THR}, {f32bits(thr):#x}
    s_mov_b32 s{S_C}, {f32bits(CSCALE):#x}""")
    a(f"""v_lshlrev_b32 v{V_X0}, 16, v{V_G}
    v_lshl_add_u32 v{V_X0}, v{V_Q16}, 3, v{V_X0}
    v_lshlrev_b32 v{V_X0+1}, 10, v{V_Q16}
    v_lshl_add_u32 v{V_X0+1}, v{V_G}, 4, v{V_X0+1}""")
    a(f"""s_lshl_b32 s{S_T0}, s{S_HKV}, 2
    s_add_u32 s{S_T0}, s{S_T0}, s{S_S}
    s_lshl_b32 s{S_T0}, s{S_T0}, 8
    s_lshl_b32 s{S_T1}, s{S_CH}, 7
    s_add_u32 s{S_T0}, s{S_T0}, s{S_T1}
    s_lshl_b32 s{S_T1}, s{S_KQ}, 20
    s_add_u32 s{S_T0}, s{S_T0}, s{S_T1}
    s_mul_i32 s{S_T1}, s{S_B}, {48*1024}
    s_lshl_b32 s{S_T2}, s{S_KQ}, 8
    s_add_u32 s{S_T1}, s{S_T1}, s{S_T2}
    s_lshl_b32 s{S_KVB}, s{S_B}, 3
    s_add_u32 s{S_KVB}, s{S_KVB}, s{S_HKV}
    s_lshl_b32 s{S_KVB}, s{S_KVB}, 19
    s_lshl_b32 s{S_T2}, s{S_S}, 17
    s_add_u32 s{S_KVB}, s{S_KVB}, s{S_T2}
    s_waitcnt lgkmcnt(0)""")
    a.srd(S_WQ, S_PTR + 6, 512 * 4096 * 2)
    a.srd(S_X, S_PTR + 0, 8 * 48 * 512 * 2)
    vm0 = VM(a)
    RAW = 160
    XF = 112
    ACC = 64
    AT = 224
    def raw(ks, j): return RAW + (ks * 8 + j) * 2
    def xf(ks, qt): return XF + (ks * 3 + qt) * 4
    def acc(e, qt): return ACC + (e * 3 + qt) * 4
    for ks in range(4):
        for j in range(8):
            a(f"buffer_load_dwordx2 {vr(raw(ks,j),2)}, v{V_X0}, s[{S_WQ}:{S_WQ+3}], s{S_T0} offen {wpol}")
            vm0.issue(("w", ks))
            a(f"s_add_u32 s{S_T0}, s{S_T0}, {8192 if j < 7 else 8192*25}")
        for qt in range(3):
            if qt:
                a(f"s_add_u32 s{S_T2}, s{S_T1}, {qt*16384}")
            so = S_T2 if qt else S_T1
            a(f"buffer_load_dwordx4 {vr(xf(ks,qt),4)}, v{V_X0+1}, s[{S_X}:{S_X+3}], s{so} offen offset:{ks*64}")
            vm0.issue(("w", ks))
    a.srd(S_K, S_PTR + 2, 0x2000000)
    a.srd(S_V, S_PTR + 4, 0x2000000)
    a.srd(S_WO, S_PTR + 8, 4096 * 512 * 2)
    a.srd(S_OUT, S_PTR + 10, 8 * 48 * 512 * 2)
    a.srd(S_DBG, S_PTR + 12, 256)
    a.srd(S_WS, S_PTR + 14, WS_BYTES)
    if stamps:
        a(f"""s_mul_i32 s{S_T2}, s2, {NST*8}
        s_add_u32 s{S_STB}, s{S_PTR+14}, {STAMP:#x}
        s_addc_u32 s{S_STB+1}, s{S_PTR+15}, 0
        s_add_u32 s{S_STB}, s{S_STB}, s{S_T2}
        s_addc_u32 s{S_STB+1}, s{S_STB+1}, 0""")
    t0, t1, t2 = V_X0 + 2, V_X0 + 3, V_X0 + 4
    a(f"""s_lshr_b32 s{S_T2}, s{S_WAVE}, 1
    s_lshl_b32 s{S_T2}, s{S_T2}, 11
    s_and_b32 s{S_T3}, s{S_WAVE}, 1
    s_lshl_b32 s{S_T3}, s{S_T3}, 7
    s_add_u32 s{S_T2}, s{S_T2}, s{S_T3}
    s_bfe_u32 s{S_T3}, s{S_WAVE}, 0x10001
    s_lshl_b32 s{S_T3}, s{S_T3}, 2
    v_lshrrev_b32 v{t0}, 3, v{V_LANE}
    v_lshlrev_b32 v{t0}, 8, v{t0}
    v_add_u32 v{t1}, s{S_T3}, v{V_G}
    v_and_b32 v{t2}, 7, v{V_LANE}
    v_xor_b32 v{t1}, v{t1}, v{t2}
    v_lshl_add_u32 v{t0}, v{t1}, 4, v{t0}
    v_add_u32 v{V_DK}, s{S_T2}, v{t0}""")
    a(f"""v_bfe_u32 v{t0}, v{V_LANE}, 1, 3
    v_lshlrev_b32 v{t0}, 8, v{t0}
    v_lshl_add_u32 v{t0}, v{V_G}, 5, v{t0}
    v_and_b32 v{t1}, 1, v{V_LANE}
    v_lshl_add_u32 v{t0}, v{t1}, 4, v{t0}
    v_add_u32 v{V_DV}, s{S_T2}, v{t0}""")
    a(f"""s_lshl_b32 s{S_T2}, s{S_P}, 14
    v_lshrrev_b32 v{t0}, 3, v{V_Q16}
    v_lshlrev_b32 v{t0}, 11, v{t0}
    v_and_b32 v{t1}, 7, v{V_Q16}
    v_lshl_add_u32 v{t0}, v{t1}, 7, v{t0}
    v_add_u32 v{t0}, s{S_T2}, v{t0}
    v_lshrrev_b32 v{t1}, 1, v{V_Q16}
    v_xor_b32 v{t1}, v{t1}, v{V_G}
    v_lshl_add_u32 v{V_KA0}, v{t1}, 4, v{t0}
    v_xor_b32 v{t1}, 4, v{t1}
    v_lshl_add_u32 v{V_KA1}, v{t1}, 4, v{t0}""")
    a(f"""v_lshrrev_b32 v{t0}, 5, v{V_LANE}
    v_lshlrev_b32 v{t0}, 11, v{t0}
    v_and_b32 v{t1}, 31, v{V_LANE}
    v_lshl_add_u32 v{t0}, v{t1}, 3, v{t0}
    v_add_u32 v{V_VA}, s{S_T2}, v{t0}""")
    stamp(0)

    def dma_tile(vm, t, both):
        slot = (t % 10) * 16384
        for (srd, vo, vo2, loff) in ((S_K, V_DK, V_L, 0), (S_V, V_DV, V_L + 1, 8192)):
            for sub in ([0, -4096] if both else [0]):
                a(f"s_add_u32 s{S_T2}, s{S_M0B}, {(slot + loff + sub) & 0xffffffff:#x}")
                a(f"s_mov_b32 m0, s{S_T2}")
                a(f"s_add_u32 s{S_T3}, s{S_KVB}, {t*8192}")
                a(f"buffer_load_dwordx4 v{vo2 if sub else vo}, s[{srd}:{srd+3}], s{S_T3} offen {kvpol} lds")
                vm.issue(("kv", t))

    def proj_compute(vm, wait_tags, bfrag, hook=None):
        for ks in range(4):
            if wait_tags:
                vm.wait(wait_tags(ks))
            at = AT + (ks & 1) * 16
            for e in range(4):
                sel = S_SELHI if (e & 1) else S_SELLO
                for jj in range(4):
                    a(f"v_perm_b32 v{at + e*4 + jj}, v{raw(ks, 2*jj+1) + (e>>1)}, v{raw(ks, 2*jj) + (e>>1)}, s{sel}")
            a("s_nop 1")
            for e in range(4):
                for qt in range(3):
                    c = "0" if ks == 0 else vr(acc(e, qt), 4)
                    a(f"v_mfma_f32_16x16x32_bf16 {vr(acc(e,qt),4)}, {vr(at+e*4,4)}, {vr(bfrag(ks,qt),4)}, {c}")
            if hook:
                hook(ks)

    def proj_reduce(scr, tmp, pre_b2=None, post_b2=None):
        aw, ar = V_X0 + 2, V_X0 + 3
        La, Lb, Lc, Ld = (a.label("Lr") for _ in range(4))
        Le, Lf, Lg, Lh = (a.label("Lr") for _ in range(4))
        a(f"""s_mul_i32 s{S_T2}, s{S_WAVE}, 6144
        s_add_u32 s{S_T2}, s{S_T2}, {scr}
        s_xor_b32 s{S_T3}, s{S_WAVE}, 4
        s_mul_i32 s{S_T3}, s{S_T3}, 6144
        s_add_u32 s{S_T3}, s{S_T3}, {scr}
        v_lshlrev_b32 v{aw}, 3, v{V_LANE}
        v_add_u32 v{ar}, s{S_T3}, v{aw}
        v_add_u32 v{aw}, s{S_T2}, v{aw}
        s_nop 4
        s_cmp_ge_u32 s{S_KQ}, 2
        s_cbranch_scc1 {La}""")
        for hi in range(2):
            if hi: a(f"{La}:")
            for idx in range(12):
                r = ACC + idx * 4 + 2 * (1 - hi)
                a(f"ds_write_b64 v{aw}, {vr(r,2)} offset:{idx*512}")
            if not hi: a(f"s_branch {Lb}")
        a(f"{Lb}:")
        a("s_waitcnt lgkmcnt(0)\ns_barrier")
        for idx in range(12):
            a(f"ds_read_b64 {vr(tmp+idx*2,2)}, v{ar} offset:{idx*512}")
        a(f"""s_xor_b32 s{S_T2}, s{S_WAVE}, 6
        s_mul_i32 s{S_T2}, s{S_T2}, 6144
        s_add_u32 s{S_T2}, s{S_T2}, {scr}
        v_lshlrev_b32 v{aw}, 2, v{V_LANE}
        v_add_u32 v{ar}, s{S_T2}, v{aw}
        v_add_u32 v{aw}, s{S_T3}, v{aw}
        s_waitcnt lgkmcnt(0)
        s_cmp_ge_u32 s{S_KQ}, 2
        s_cbranch_scc1 {Lc}""")
        for hi in range(2):
            if hi: a(f"{Lc}:")
            for idx in range(12):
                for i in range(2):
                    a(f"v_add_f32 v{tmp+idx*2+i}, v{tmp+idx*2+i}, v{ACC+idx*4+2*hi+i}")
            if not hi: a(f"s_branch {Ld}")
        a(f"{Ld}:")
        a(f"s_bitcmp1_b32 s{S_KQ}, 0\ns_cbranch_scc1 {Le}")
        for lo in range(2):
            if lo: a(f"{Le}:")
            for idx in range(12):
                a(f"ds_write_b32 v{aw}, v{tmp+idx*2+(1-lo)} offset:{idx*256}")
            if not lo: a(f"s_branch {Lf}")
        a(f"{Lf}:")
        if pre_b2: pre_b2()
        a("s_waitcnt lgkmcnt(0)\ns_barrier")
        for idx in range(12):
            a(f"ds_read_b32 v{tmp+24+idx}, v{ar} offset:{idx*256}")
        if post_b2: post_b2()
        a(f"s_waitcnt lgkmcnt(0)\ns_bitcmp1_b32 s{S_KQ}, 0\ns_cbranch_scc1 {Lg}")
        for lo in range(2):
            if lo: a(f"{Lg}:")
            for idx in range(12):
                a(f"v_add_f32 v{tmp+24+idx}, v{tmp+24+idx}, v{tmp+idx*2+lo}")
            if not lo: a(f"s_branch {Lh}")
        a(f"{Lh}:")

    def xlane(op, x, ta, tb):
        a(f"""v_mov_b32 v{ta}, v{x}
        v_mov_b32 v{tb}, v{x}
        s_nop 1
        v_permlane16_swap_b32 v{ta}, v{tb}
        s_nop 1
        {op} v{ta}, v{ta}, v{tb}
        v_mov_b32 v{tb}, v{ta}
        s_nop 1
        v_permlane32_swap_b32 v{ta}, v{tb}
        s_nop 1
        {op} v{x}, v{ta}, v{tb}""")

    def S(kt, qt): return V_S + (kt * 3 + qt) * 4
    def Q(qt, ks): return V_Q + (qt * 4 + ks) * 4
    def O(dt, qt): return V_O + (dt * 3 + qt) * 4
    def NM(qt): return V_NM + qt * 4
    def P(qt): return V_P + qt * 4
    def F(i): return V_F + i * 4

    def k_read(idx):
        kt, ks = idx >> 2, idx & 3
        ad = V_KA1 if (ks & 1) else V_KA0
        a(f"ds_read_b128 {vr(F(idx),4)}, v{ad} offset:{kt*4096 + (ks>>1)*1024}")

    def v_reads():
        for dt in range(8):
            for j2 in range(2):
                a(f"ds_read_b64_tr_b16 {vr(F(dt)+2*j2,2)}, v{V_VA} offset:{8192 + j2*4096 + (dt>>2)*1024 + (dt&3)*256}")

    def qk(first, pending):
        for idx in range(8):
            kt, ks = idx >> 2, idx & 3
            a(f"s_waitcnt lgkmcnt({7-idx})")
            for qt in range(3):
                if ks == 0:
                    c = "0" if first else vr(NM(qt), 4)
                else:
                    c = vr(S(kt, qt), 4)
                a(f"v_mfma_f32_16x16x32_bf16 {vr(S(kt,qt),4)}, {vr(F(idx),4)}, {vr(Q(qt,ks),4)}, {c}")

    def tile_max(qt, d):
        s0, s1 = S(0, qt), S(1, qt)
        a(f"""v_max3_f32 v{d}, v{s0}, v{s0+1}, v{s0+2}
        v_max3_f32 v{d}, v{d}, v{s0+3}, v{s1}
        v_max3_f32 v{d}, v{d}, v{s1+1}, v{s1+2}
        v_max_f32 v{d}, v{d}, v{s1+3}""")
        xlane("v_max_f32", d, V_T + 6, V_T + 7)

    def init_max():
        for qt in range(3):
            d = V_T + qt
            tile_max(qt, d)
            for i in range(4):
                a(f"v_sub_f32 v{NM(qt)+i}, 0, v{d}")
            for kt in range(2):
                for i in range(4):
                    a(f"v_sub_f32 v{S(kt,qt)+i}, v{S(kt,qt)+i}, v{d}")
            a(f"v_mov_b32 v{V_L+qt}, 0")

    def softmax(first):
        L = a.label("Lsm")
        a(f"{L}:")
        for qt in range(3):
            for kt in range(2):
                for i in range(4):
                    a(f"v_exp_f32 v{V_T+kt*4+i}, v{S(kt,qt)+i}")
            u = V_U + qt
            a(f"v_add_f32 v{u}, v{V_T}, v{V_T+1}")
            a(f"v_cvt_pk_bf16_f32 v{P(qt)}, v{V_T}, v{V_T+1}")
            a(f"v_add_f32 v{u}, v{u}, v{V_T+2}")
            a(f"v_cvt_pk_bf16_f32 v{P(qt)+1}, v{V_T+2}, v{V_T+3}")
            a(f"v_add_f32 v{u}, v{u}, v{V_T+3}")
            a(f"v_cvt_pk_bf16_f32 v{P(qt)+2}, v{V_T+4}, v{V_T+5}")
            a(f"v_add_f32 v{u}, v{u}, v{V_T+4}")
            a(f"v_cvt_pk_bf16_f32 v{P(qt)+3}, v{V_T+6}, v{V_T+7}")
            a(f"v_add_f32 v{u}, v{u}, v{V_T+5}")
            a(f"v_add_f32 v{u}, v{u}, v{V_T+6}")
            a(f"v_add_f32 v{u}, v{u}, v{V_T+7}")
        if not first:
            Lok = a.label("Lok")
            a(f"""v_add_f32 v{V_T}, v{V_U}, v{V_U+1}
            v_add_f32 v{V_T}, v{V_T}, v{V_U+2}
            v_cmp_lt_f32 vcc, s{S_THR}, v{V_T}
            s_cbranch_vccz {Lok}
            s_swappc_b64 s[{S_RET}:{S_RET+1}], s[{S_SUB}:{S_SUB+1}]
            s_branch {L}
            {Lok}:""")
        for qt in range(3):
            a(f"v_add_f32 v{V_L+qt}, v{V_L+qt}, v{V_U+qt}")

    def pv(first, kreads):
        for dt in range(8):
            for qt in range(3):
                c = "0" if first else vr(O(dt, qt), 4)
                a(f"v_mfma_f32_16x16x32_bf16 {vr(O(dt,qt),4)}, {vr(F(dt),4)}, {vr(P(qt),4)}, {c}")
            if kreads:
                k_read(dt)

    def adv_addr(t_from, t_to):
        d = ((t_to % 10) - (t_from % 10)) * 16384
        for r in (V_KA0, V_KA1, V_VA):
            a(f"v_add_u32 v{r}, {d & 0xffffffff:#x}, v{r}")

    WRAW = 88
    def wo_loads(vm):
        vo = V_X0
        a(f"""v_lshlrev_b32 v{vo}, 12, v{V_G}
        v_lshl_add_u32 v{vo}, v{V_Q16}, 3, v{vo}
        s_lshl_b32 s{S_T0}, s{S_HKV}, 2
        s_add_u32 s{S_T0}, s{S_T0}, s{S_KQ}
        s_lshl_b32 s{S_T0}, s{S_T0}, 17
        s_lshl_b32 s{S_T1}, s{S_S}, 8
        s_add_u32 s{S_T0}, s{S_T0}, s{S_T1}
        s_lshl_b32 s{S_T1}, s{S_CH}, 7
        s_add_u32 s{S_T0}, s{S_T0}, s{S_T1}""")
        for t in range(4):
            for half in range(2):
                for j in range(4):
                    r = WRAW + (t * 8 + half * 4 + j) * 2
                    a(f"buffer_load_dwordx2 {vr(r,2)}, v{vo}, s[{S_WO}:{S_WO+3}], s{S_T0} offen offset:{j*1024} {wpol}")
                    vm.issue("wo")
                a(f"s_add_u32 s{S_T0}, s{S_T0}, 16384")

    a(f"""s_getpc_b64 s[{S_SUB}:{S_SUB+1}]
    L_pc0:
    s_add_u32 s{S_SUB}, s{S_SUB}, L_rescale-L_pc0
    s_addc_u32 s{S_SUB+1}, s{S_SUB+1}, 0""")

    a(f"s_cmp_lg_u32 s{S_P}, 0\ns_cbranch_scc1 L_role1")

    for p in range(2):
        vm = vm0.copy()
        a(f"L_role{p}:")
        NONCE_LDS = SCR + 4 * 6144 + 4096
        if p == 0:
            n = V_T
            a(f"""s_cmp_lg_u32 s{S_WAVE}, 0
            s_cbranch_scc1 L_nonce_skip
            s_or_b32 s{S_NONCE}, s{S_NONCE}, 1
            v_mov_b32 v{n}, s{S_NONCE}
            v_mov_b32 v{n+1}, s{S_NONCE+1}
            v_mov_b32 v{n+2}, 0
            v_mov_b32 v{n+3}, 0
            s_lshl_b32 s{S_T2}, s{S_B}, 3
            v_mov_b32 v{n+4}, s{S_T2}
            s_mov_b64 exec, 1
            buffer_atomic_cmpswap_x2 {vr(n,4)}, v{n+4}, s[{S_DBG}:{S_DBG+3}], 0 offen sc0 sc1
            s_mov_b64 exec, -1
            L_nonce_skip:""")
            hook = None
        else:
            a(f"v_subrev_u32 v{V_L}, 4096, v{V_DK}")
            a(f"v_subrev_u32 v{V_L+1}, 4096, v{V_DV}")
            for t in range(4):
                dma_tile(vm, t, True)
            def hook(ks, vm=vm):
                if ks < 3:
                    dma_tile(vm, 4 + ks, True)
        proj_compute(vm, lambda ks: ("w", ks), xf, hook)
        TMP = 112
        def pre_b2():
            if p == 0:
                n = V_T
                a(f"""s_cmp_lg_u32 s{S_WAVE}, 0
                s_cbranch_scc1 L_nonce_skip2
                s_waitcnt vmcnt(0)
                v_readfirstlane_b32 s{S_T2}, v{n}
                v_readfirstlane_b32 s{S_T3}, v{n+1}
                s_nop 1
                s_or_b32 s{S_T0}, s{S_T2}, s{S_T3}
                s_cmp_eq_u32 s{S_T0}, 0
                s_cselect_b32 s{S_T2}, s{S_NONCE}, s{S_T2}
                s_cselect_b32 s{S_T3}, s{S_NONCE+1}, s{S_T3}
                v_mov_b32 v{n}, s{S_T2}
                v_mov_b32 v{n+1}, s{S_T3}
                v_mov_b32 v{n+2}, {NONCE_LDS}
                ds_write_b64 v{n+2}, {vr(n,2)}
                L_nonce_skip2:""")
        def post_b2():
            a(f"""v_mov_b32 v{V_T+2}, {NONCE_LDS}
            ds_read_b64 {vr(V_T,2)}, v{V_T+2}""")
        proj_reduce(SCR, TMP, pre_b2, post_b2)
        FIN = TMP + 24
        a(f"""v_readfirstlane_b32 s{S_NONCE}, v{V_T}
        v_readfirstlane_b32 s{S_NONCE+1}, v{V_T+1}""")
        G = 160
        for qt in range(3):
            for e in range(4):
                a(f"v_mul_f32 v{FIN+e*3+qt}, s{S_C}, v{FIN+e*3+qt}")
        for qt in range(3):
            a(f"v_cvt_pk_bf16_f32 v{G+qt*4}, v{FIN+0*3+qt}, v{FIN+1*3+qt}")
            a(f"v_cvt_pk_bf16_f32 v{G+qt*4+1}, v{FIN+2*3+qt}, v{FIN+3*3+qt}")
            a(f"v_mov_b32 v{G+qt*4+2}, v{V_T}")
            a(f"v_mov_b32 v{G+qt*4+3}, v{V_T+1}")
        a(f"""v_lshlrev_b32 v{V_X0}, 10, v{V_G}
        v_lshl_add_u32 v{V_X0}, v{V_Q16}, 4, v{V_X0}
        s_mul_i32 s{S_T0}, s2, 24576
        s_lshl_b32 s{S_T1}, s{S_CH}, 4
        s_add_u32 s{S_T1}, s{S_T1}, s{S_KQ}
        s_lshl_b32 s{S_T1}, s{S_T1}, 8
        s_add_u32 s{S_T0}, s{S_T0}, s{S_T1}
        s_add_u32 s{S_T0}, s{S_T0}, {QX}""")
        for qt in range(3):
            a(f"buffer_store_dwordx4 {vr(G+qt*4,4)}, v{V_X0}, s[{S_WS}:{S_WS+3}], s{S_T0} offen sc1")
            vm.issue("qst")
            if qt < 2:
                a(f"s_add_u32 s{S_T0}, s{S_T0}, 8192")
        if p == 0: stamp(1)
        a("s_barrier")
        qst = V_X0 + 1
        a(f"""s_mul_i32 s{S_T0}, s{S_HH}, 12288
        s_add_u32 s{S_T0}, s{S_T0}, {SCR}
        v_lshlrev_b32 v{qst}, 4, v{V_LANE}
        v_add_u32 v{qst}, s{S_T0}, v{qst}""")
        if p == 0:
            def ptmp(qt, t, hf): return 160 + ((qt * 4 + t) * 2 + hf) * 4
            a(f"""v_lshlrev_b32 v{V_X0}, 9, v{V_G}
            v_lshl_add_u32 v{V_X0}, v{V_Q16}, 4, v{V_X0}
            s_lshl_b32 s{S_T0}, s{S_B}, 2
            s_add_u32 s{S_T0}, s{S_T0}, s{S_HH}
            s_lshl_b32 s{S_T0}, s{S_T0}, 3
            s_add_u32 s{S_T0}, s{S_T0}, s{S_HKV}
            s_mul_i32 s{S_T0}, s{S_T0}, 24576
            s_add_u32 s{S_T0}, s{S_T0}, {QX}
            s_mov_b32 s{S_CNT}, 0
            s_nop 1
            L_qpoll:
            s_mov_b32 s{S_T1}, s{S_T0}""")
            for qt in range(3):
                for th in range(2):
                    for tl in range(2):
                        for hf in range(2):
                            t = th * 2 + tl
                            a(f"buffer_load_dwordx4 {vr(ptmp(qt,t,hf),4)}, v{V_X0}, s[{S_WS}:{S_WS+3}], s{S_T1} offen offset:{tl*2048+hf*256} sc1")
                    a(f"s_add_u32 s{S_T1}, s{S_T1}, 4096")
            a(f"s_mov_b64 s[{S_ACC}:{S_ACC+1}], 0\ns_waitcnt vmcnt(0)")
            vm.ops = []
            for i in range(24):
                r = 160 + i * 4
                a(f"v_cmp_ne_u64 vcc, s[{S_NONCE}:{S_NONCE+1}], {vr(r+2,2)}")
                a(f"s_or_b64 s[{S_ACC}:{S_ACC+1}], s[{S_ACC}:{S_ACC+1}], vcc")
            a(f"""s_cbranch_scc0 L_qok
            s_add_u32 s{S_CNT}, s{S_CNT}, 1
            s_cmp_lt_u32 s{S_CNT}, 0x8000
            s_cbranch_scc1 L_qpoll
            L_qok:""")
            for qt in range(3):
                for t in range(4):
                    for hf in range(2):
                        for i in range(2):
                            a(f"v_mov_b32 v{Q(qt,t)+2*hf+i}, v{ptmp(qt,t,hf)+i}")
            for i in range(12):
                a(f"ds_write_b128 v{qst}, {vr(V_Q+i*4,4)} offset:{i*1024}")
            a("s_waitcnt lgkmcnt(0)")
            stamp(2)
            a("s_barrier")
            for idx in range(8):
                k_read(idx)
            a("s_barrier")
        else:
            vm.wait(("kv", 1))
            a("s_barrier")
            for i in range(12):
                a(f"ds_read_b128 {vr(V_Q+i*4,4)}, v{qst} offset:{i*1024}")
            a("s_waitcnt lgkmcnt(0)\ns_barrier")
            for idx in range(8):
                k_read(idx)
        for t in (7, 8, 9):
            dma_tile(vm, t, False)
        for r in range(8):
            t = 2 * r + p
            if r > 0:
                need = ("kv", 2 * r + 1)
                if vm.has(need):
                    vm.wait(need)
                a("s_barrier")
                if p == 0:
                    for idx in range(8):
                        k_read(idx)
                    if r <= 3:
                        dma_tile(vm, 2 * r + 8, False); dma_tile(vm, 2 * r + 9, False)
                else:
                    pv(r == 1, True)
                    if r <= 3:
                        dma_tile(vm, 2 * r + 8, False); dma_tile(vm, 2 * r + 9, False)
            qk(r == 0, 8)
            v_reads()
            if r < 7:
                adv_addr(t, t + 2)
            if r == 0:
                init_max()
            softmax(r == 0)
            if r == 7:
                wo_loads(vm)
            a("s_waitcnt lgkmcnt(0)")
            if p == 0:
                pv(r == 0, False)
        if p == 1:
            pv(False, False)
        if p == 0: stamp(3)
        for qt in range(3):
            xlane("v_add_f32", V_L + qt, V_T + 6, V_T + 7)
        cw, cr, mw, mr = V_X0 + 1, V_X0 + 2, V_X0 + 3, V_X0 + 4
        def cb_addr(sdst, swave):
            L = a.label("Lcb")
            a(f"""s_mul_i32 s{sdst}, s{swave}, 12288
            s_add_u32 s{sdst}, s{sdst}, 98304
            s_cmp_lt_u32 s{swave}, 5
            s_cbranch_scc1 {L}
            s_sub_u32 s{sdst}, s{sdst}, {98304 + 5*12288}
            {L}:""")
        a(f"s_xor_b32 s{S_T2}, s{S_WAVE}, 4")
        cb_addr(S_T0, S_WAVE); cb_addr(S_T1, S_T2)
        a(f"""v_lshlrev_b32 v{cw}, 4, v{V_LANE}
        v_add_u32 v{cr}, s{S_T1}, v{cw}
        v_add_u32 v{cw}, s{S_T0}, v{cw}
        s_lshl_b32 s{S_T0}, s{S_WAVE}, 11
        s_add_u32 s{S_T0}, s{S_T0}, 40960
        s_lshl_b32 s{S_T1}, s{S_T2}, 11
        s_add_u32 s{S_T1}, s{S_T1}, 40960
        v_lshlrev_b32 v{mw}, 2, v{V_LANE}
        v_add_u32 v{mr}, s{S_T1}, v{mw}
        v_add_u32 v{mw}, s{S_T0}, v{mw}""")
        own0, oth0 = 4 * p, 4 * (1 - p)
        for qt in range(3):
            a(f"ds_write_b32 v{mw}, v{NM(qt)} offset:{qt*256}")
            a(f"ds_write_b32 v{mw}, v{V_L+qt} offset:{768+qt*256}")
        for i in range(12):
            a(f"ds_write_b128 v{cw}, {vr(O(oth0,0)+i*4,4)} offset:{i*1024}")
        a("s_waitcnt lgkmcnt(0)\ns_barrier")
        NMo, Lo = V_T, V_T + 3
        for qt in range(3):
            a(f"ds_read_b32 v{NMo+qt}, v{mr} offset:{qt*256}")
            a(f"ds_read_b32 v{Lo+qt}, v{mr} offset:{768+qt*256}")
        for i in range(12):
            a(f"ds_read_b128 {vr(O(oth0,0)+i*4,4)}, v{cr} offset:{i*1024}")
        a("s_waitcnt lgkmcnt(12)")
        FA, FB, LL = V_P, V_P + 3, V_P + 6
        for qt in range(3):
            n = V_F + qt
            a(f"""v_min_f32 v{n}, v{NM(qt)}, v{NMo+qt}
            v_sub_f32 v{FA+qt}, v{n}, v{NM(qt)}
            v_sub_f32 v{FB+qt}, v{n}, v{NMo+qt}
            v_exp_f32 v{FA+qt}, v{FA+qt}
            v_exp_f32 v{FB+qt}, v{FB+qt}
            s_nop 0
            v_mul_f32 v{LL+qt}, v{FA+qt}, v{V_L+qt}
            v_fma_f32 v{LL+qt}, v{FB+qt}, v{Lo+qt}, v{LL+qt}
            v_rcp_f32 v{V_F+4}, v{LL+qt}
            v_log_f32 v{LL+qt}, v{LL+qt}
            s_nop 0
            v_mul_f32 v{FA+qt}, v{FA+qt}, v{V_F+4}
            v_mul_f32 v{FB+qt}, v{FB+qt}, v{V_F+4}
            v_sub_f32 v{LL+qt}, v{LL+qt}, v{n}""")
        a("s_waitcnt lgkmcnt(0)")
        OF = V_F + 8
        for tl in range(2):
            for qt in range(3):
                for h2 in range(2):
                    dt = own0 + tl * 2 + h2
                    o = O(dt, qt); x = O(oth0 + tl * 2 + h2, qt)
                    for i in range(4):
                        a(f"v_mul_f32 v{o+i}, v{o+i}, v{FA+qt}")
                        a(f"v_fma_f32 v{o+i}, v{x+i}, v{FB+qt}, v{o+i}")
                    d = OF + (tl * 3 + qt) * 4 + h2 * 2
                    a(f"v_cvt_pk_bf16_f32 v{d}, v{o}, v{o+1}")
                    a(f"v_cvt_pk_bf16_f32 v{d+1}, v{o+2}, v{o+3}")
        if p == 0:
            a("s_branch L_tail")
    a("L_tail:")
    LL = V_P + 6
    OF = V_F + 8
    l16 = V_X0 + 1
    a(f"""v_lshlrev_b32 v{l16}, 4, v{V_LANE}
    s_lshl_b32 s{S_T0}, s2, 3
    s_add_u32 s{S_T0}, s{S_T0}, s{S_WAVE}
    s_mul_i32 s{S_T1}, s{S_T0}, 6144
    s_add_u32 s{S_T1}, s{S_T1}, {OX}""")
    for i in range(6):
        if i == 4:
            a(f"s_add_u32 s{S_T1}, s{S_T1}, 4096")
        a(f"buffer_store_dwordx4 {vr(OF+i*4,4)}, v{l16}, s[{S_WS}:{S_WS+3}], s{S_T1} offen offset:{(i&3)*1024} sc1")
    l4 = V_X0 + 2
    a(f"""v_cmp_eq_u32 vcc, 1, v{V_G}
    v_lshlrev_b32 v{l4}, 2, v{V_LANE}
    s_lshl_b32 s{S_T1}, s{S_T0}, 8
    v_cndmask_b32 v{V_T}, v{LL}, v{LL+1}, vcc
    v_cmp_le_u32 vcc, 2, v{V_G}
    s_add_u32 s{S_T1}, s{S_T1}, {LX}
    s_nop 0
    v_cndmask_b32 v{V_T}, v{V_T}, v{LL+2}, vcc
    buffer_store_dword v{V_T}, v{l4}, s[{S_WS}:{S_WS+3}], s{S_T1} offen sc1
    v_mov_b32 v{V_T+2}, s{S_NONCE}
    v_mov_b32 v{V_T+3}, s{S_NONCE+1}
    v_mov_b32 v{V_T+4}, 0
    s_lshl_b32 s{S_T1}, s{S_T0}, 7
    s_add_u32 s{S_T1}, s{S_T1}, {FX}
    s_waitcnt vmcnt(0)
    s_mov_b64 exec, 1
    buffer_store_dwordx2 {vr(V_T+2,2)}, v{V_T+4}, s[{S_WS}:{S_WS+3}], s{S_T1} offen sc1
    s_mov_b64 exec, -1""")
    stamp(4)
    WF = 160
    for t in range(4):
        for e in range(4):
            sel = S_SELHI if (e & 1) else S_SELLO
            for jj in range(4):
                r1 = WRAW + (t * 8 + 2 * jj + 1) * 2 + (e >> 1)
                r0 = WRAW + (t * 8 + 2 * jj) * 2 + (e >> 1)
                a(f"v_perm_b32 v{WF + t*16 + e*4 + jj}, v{r1}, v{r0}, s{sel}")
    SP = [S_T0, S_T1, S_T2]
    for j in range(1, 4):
        d = SP[j - 1]
        a(f"""s_add_u32 s{d}, s{S_S}, {j}
        s_and_b32 s{d}, s{d}, 3
        s_lshl_b32 s{S_T3}, s{S_B}, 2
        s_add_u32 s{d}, s{d}, s{S_T3}
        s_lshl_b32 s{d}, s{d}, 3
        s_add_u32 s{d}, s{d}, s{S_HKV}
        s_lshl_b32 s{d}, s{d}, 3
        s_add_u32 s{d}, s{d}, s{S_WAVE}""")
    fa = V_X0 + 3
    a(f"""v_mov_b32 v{fa}, s{S_T0}
    v_mov_b32 v{V_T}, s{S_T1}
    v_cmp_eq_u32 vcc, 1, v{V_LANE}
    v_mov_b32 v{V_T+1}, s{S_T2}
    s_nop 0
    v_cndmask_b32 v{fa}, v{fa}, v{V_T}, vcc
    v_cmp_eq_u32 vcc, 2, v{V_LANE}
    s_nop 1
    v_cndmask_b32 v{fa}, v{fa}, v{V_T+1}, vcc
    v_lshlrev_b32 v{fa}, 7, v{fa}
    s_mov_b32 s{S_T3}, {FX}
    s_mov_b32 s{S_CNT}, 0
    s_mov_b64 exec, 7
    L_fpoll:
    buffer_load_dwordx2 {vr(V_T,2)}, v{fa}, s[{S_WS}:{S_WS+3}], s{S_T3} offen sc1
    s_waitcnt vmcnt(0)
    v_cmp_ne_u64 vcc, s[{S_NONCE}:{S_NONCE+1}], {vr(V_T,2)}
    s_cbranch_vccz L_fok
    s_add_u32 s{S_CNT}, s{S_CNT}, 1
    s_cmp_lt_u32 s{S_CNT}, 0x10000
    s_cbranch_scc1 L_fpoll
    L_fok:
    s_mov_b64 exec, -1""")
    stamp(5)
    PF = 88
    PL = V_NM
    q4 = V_X0 + 3
    a(f"v_lshlrev_b32 v{q4}, 2, v{V_Q16}")
    for j in range(3):
        a(f"""s_lshl_b32 s{S_T3}, s{SP[j]}, 8
        s_add_u32 s{S_T3}, s{S_T3}, {LX}""")
        for qt in range(3):
            a(f"buffer_load_dword v{PL+j*3+qt}, v{q4}, s[{S_WS}:{S_WS+3}], s{S_T3} offen offset:{qt*64} sc1")
    for j in range(3):
        a(f"""s_mul_i32 s{S_T3}, s{SP[j]}, 6144
        s_add_u32 s{S_T3}, s{S_T3}, {OX}""")
        for i in range(6):
            if i == 4:
                a(f"s_add_u32 s{S_T3}, s{S_T3}, 4096")
            a(f"buffer_load_dwordx4 {vr(PF+(j*6+i)*4,4)}, v{l16}, s[{S_WS}:{S_WS+3}], s{S_T3} offen offset:{(i&3)*1024} sc1")
    a("s_waitcnt vmcnt(18)")
    W0 = V_P
    for qt in range(3):
        mx = V_T
        a(f"""v_max3_f32 v{mx}, v{LL+qt}, v{PL+qt}, v{PL+3+qt}
        v_max_f32 v{mx}, v{mx}, v{PL+6+qt}
        v_sub_f32 v{W0+qt}, v{LL+qt}, v{mx}
        v_sub_f32 v{PL+qt}, v{PL+qt}, v{mx}
        v_sub_f32 v{PL+3+qt}, v{PL+3+qt}, v{mx}
        v_sub_f32 v{PL+6+qt}, v{PL+6+qt}, v{mx}
        v_exp_f32 v{W0+qt}, v{W0+qt}
        v_exp_f32 v{PL+qt}, v{PL+qt}
        v_exp_f32 v{PL+3+qt}, v{PL+3+qt}
        v_exp_f32 v{PL+6+qt}, v{PL+6+qt}
        s_nop 0
        v_add_f32 v{mx}, v{W0+qt}, v{PL+qt}
        v_add_f32 v{mx}, v{mx}, v{PL+3+qt}
        v_add_f32 v{mx}, v{mx}, v{PL+6+qt}
        v_rcp_f32 v{mx}, v{mx}
        s_nop 0
        v_mul_f32 v{W0+qt}, v{W0+qt}, v{mx}
        v_mul_f32 v{PL+qt}, v{PL+qt}, v{mx}
        v_mul_f32 v{PL+3+qt}, v{PL+3+qt}, v{mx}
        v_mul_f32 v{PL+6+qt}, v{PL+6+qt}, v{mx}""")
    CA = 224
    a(f"s_mov_b32 s{S_T3}, 0xffff0000")
    a("s_waitcnt vmcnt(0)")
    for i in range(6):
        qt = i % 3
        own = OF + i * 4
        for d in range(4):
            a(f"v_lshlrev_b32 v{CA+2*d}, 16, v{own+d}")
            a(f"v_and_b32 v{CA+2*d+1}, s{S_T3}, v{own+d}")
            a(f"v_mul_f32 v{CA+2*d}, v{CA+2*d}, v{W0+qt}")
            a(f"v_mul_f32 v{CA+2*d+1}, v{CA+2*d+1}, v{W0+qt}")
        for j in range(3):
            src = PF + (j * 6 + i) * 4
            w = PL + j * 3 + qt
            for d in range(4):
                a(f"v_lshlrev_b32 v{CA+8}, 16, v{src+d}")
                a(f"v_and_b32 v{CA+9}, s{S_T3}, v{src+d}")
                a(f"v_fmac_f32 v{CA+2*d}, v{CA+8}, v{w}")
                a(f"v_fmac_f32 v{CA+2*d+1}, v{CA+9}, v{w}")
        for d in range(4):
            a(f"v_cvt_pk_bf16_f32 v{own+d}, v{CA+2*d}, v{CA+2*d+1}")
    BFB = 0
    a("s_barrier")
    a(f"""s_mul_i32 s{S_T0}, s{S_HH}, 12288
    s_mul_i32 s{S_T1}, s{S_P}, 6144
    s_add_u32 s{S_T0}, s{S_T0}, s{S_T1}
    v_add_u32 v{V_X0+2}, s{S_T0}, v{l16}
    s_mul_i32 s{S_T0}, s{S_KQ}, 12288
    v_add_u32 v{V_X0+3}, s{S_T0}, v{l16}""")
    for i in range(6):
        a(f"ds_write_b128 v{V_X0+2}, {vr(OF+i*4,4)} offset:{BFB + i*1024}")
    a("s_waitcnt lgkmcnt(0)\ns_barrier")
    BR = 112
    for i in range(12):
        a(f"ds_read_b128 {vr(BR+i*4,4)}, v{V_X0+3} offset:{BFB + i*1024}")
    for t in range(4):
        a(f"s_waitcnt lgkmcnt({9-3*t})")
        for e in range(4):
            for qt in range(3):
                c = "0" if t == 0 else vr(acc(e, qt), 4)
                a(f"v_mfma_f32_16x16x32_bf16 {vr(acc(e,qt),4)}, {vr(WF+t*16+e*4,4)}, {vr(BR+(t*3+qt)*4,4)}, {c}")
    TMP = 160
    proj_reduce(SCR, TMP)
    FIN = TMP + 24
    stamp(6)
    a(f"""s_and_b32 s{S_TAG}, s{S_NONCE}, 0xfff
    s_bfe_u32 s{S_TAG+1}, s{S_NONCE}, 0xc000c
    s_lshr_b64 s[{S_T0}:{S_T1}], s[{S_NONCE}:{S_NONCE+1}], 24
    s_and_b32 s{S_TAG+2}, s{S_T0}, 0xfff
    s_bfe_u32 s{S_TAG+3}, s{S_T0}, 0xc000c
    v_mov_b32 v{V_T}, 0xfff
    s_lshl_b32 s{S_T0}, s2, 3
    s_add_u32 s{S_T0}, s{S_T0}, s{S_WAVE}
    s_mul_i32 s{S_T0}, s{S_T0}, 3072
    s_add_u32 s{S_T0}, s{S_T0}, {YX}""")
    G = 112
    for qt in range(3):
        for e in range(4):
            a(f"v_add_u32 v{FIN+e*3+qt}, 0x800, v{FIN+e*3+qt}")
            a(f"v_bfi_b32 v{G+qt*4+e}, v{V_T}, s{S_TAG+e}, v{FIN+e*3+qt}")
        a(f"buffer_store_dwordx4 {vr(G+qt*4,4)}, v{l16}, s[{S_WS}:{S_WS+3}], s{S_T0} offen offset:{qt*1024} sc1")
    a(f"""s_cmp_ge_u32 s{S_WAVE}, 3
    s_cbranch_scc1 L_end
    s_andn2_b32 s{S_T0}, s2, 7
    s_lshl_b32 s{S_T0}, s{S_T0}, 3
    s_add_u32 s{S_T0}, s{S_T0}, s{S_HKV}
    s_mul_i32 s{S_T0}, s{S_T0}, 3072
    s_lshl_b32 s{S_T1}, s{S_WAVE}, 10
    s_add_u32 s{S_T0}, s{S_T0}, s{S_T1}
    s_add_u32 s{S_T0}, s{S_T0}, {YX}
    s_mov_b32 s{S_CNT}, 0
    L_ypoll:
    s_mov_b32 s{S_T1}, s{S_T0}""")
    YR = 160
    for j in range(8):
        a(f"buffer_load_dwordx4 {vr(YR+j*4,4)}, v{l16}, s[{S_WS}:{S_WS+3}], s{S_T1} offen sc1")
        if j < 7:
            a(f"s_add_u32 s{S_T1}, s{S_T1}, {8*3072}")
    a(f"v_mov_b32 v{V_T+1}, 0\ns_waitcnt vmcnt(0)")
    for j in range(8):
        for e in range(4):
            a(f"v_xor_b32 v{V_T+2}, s{S_TAG+e}, v{YR+j*4+e}")
            a(f"v_or_b32 v{V_T+1}, v{V_T+1}, v{V_T+2}")
    a(f"""v_and_b32 v{V_T+1}, v{V_T+1}, v{V_T}
    v_cmp_ne_u32 vcc, 0, v{V_T+1}
    s_cbranch_vccz L_yok
    s_add_u32 s{S_CNT}, s{S_CNT}, 1
    s_cmp_lt_u32 s{S_CNT}, 0x10000
    s_cbranch_scc1 L_ypoll
    L_yok:
    s_mov_b32 s{S_T3}, 0xfffff000""")
    for j in range(8):
        for e in range(4):
            a(f"v_and_b32 v{YR+j*4+e}, s{S_T3}, v{YR+j*4+e}")
    for step in (4, 2, 1):
        for j in range(step):
            for e in range(4):
                a(f"v_add_f32 v{YR+j*4+e}, v{YR+j*4+e}, v{YR+(j+step)*4+e}")
    a(f"""v_cvt_pk_bf16_f32 v{V_T+2}, v{YR}, v{YR+1}
    v_cvt_pk_bf16_f32 v{V_T+3}, v{YR+2}, v{YR+3}
    v_lshlrev_b32 v{V_X0}, 10, v{V_Q16}
    v_lshl_add_u32 v{V_X0}, v{V_G}, 5, v{V_X0}
    s_mul_i32 s{S_T0}, s{S_B}, {48*1024}
    s_lshl_b32 s{S_T1}, s{S_WAVE}, 14
    s_add_u32 s{S_T0}, s{S_T0}, s{S_T1}
    s_lshl_b32 s{S_T1}, s{S_S}, 8
    s_add_u32 s{S_T0}, s{S_T0}, s{S_T1}
    s_and_b32 s{S_T1}, s{S_HKV}, 1
    s_lshl_b32 s{S_T1}, s{S_T1}, 7
    s_add_u32 s{S_T0}, s{S_T0}, s{S_T1}
    s_lshr_b32 s{S_T1}, s{S_HKV}, 1
    s_lshl_b32 s{S_T1}, s{S_T1}, 3
    s_add_u32 s{S_T0}, s{S_T0}, s{S_T1}
    buffer_store_dwordx2 {vr(V_T+2,2)}, v{V_X0}, s[{S_OUT}:{S_OUT+3}], s{S_T0} offen""")
    if stamps:
        a("s_waitcnt vmcnt(0)")
    stamp(7)
    a("L_end:\ns_endpgm")

    a("L_rescale:")
    a("s_nop 7")
    for qt in range(3):
        d = V_T + qt
        tile_max(qt, d)
        al = V_T + 3 + qt
        a(f"""v_max_f32 v{d}, 0, v{d}
        v_sub_f32 v{al}, 0, v{d}
        v_exp_f32 v{al}, v{al}""")
        for i in range(4):
            a(f"v_sub_f32 v{NM(qt)+i}, v{NM(qt)+i}, v{d}")
        for kt in range(2):
            for i in range(4):
                a(f"v_sub_f32 v{S(kt,qt)+i}, v{S(kt,qt)+i}, v{d}")
        a(f"v_mul_f32 v{V_L+qt}, v{V_L+qt}, v{al}")
        for dt in range(8):
            for i in range(4):
                a(f"v_mul_f32 v{O(dt,qt)+i}, v{O(dt,qt)+i}, v{al}")
    a(f"s_setpc_b64 s[{S_RET}:{S_RET+1}]")
    a.end_kernel(MAIN, 256, sgpr=100, accum=256)
    hdr = """Fused GQA block (Q-proj + split-K attention over the KV cache + out-proj), one launch.
Generated by gen/attn.py (hand-written generator).
kernarg: x, k_cache, v_cache, wq, wo, out, debug, ws"""
    return a.text(hdr)


if __name__ == "__main__":
    import argparse
    ap = argparse.ArgumentParser()
    ap.add_argument("-o", default="standalone__gqa_block_cached__near_ridge.s")
    ap.add_argument("--stamps", action="store_true")
    ap.add_argument("--kvpol", default="nt")
    ap.add_argument("--wpol", default="")
    ap.add_argument("--thr", type=float, default=256.0)
    args = ap.parse_args()
    open(args.o, "w").write(gen(kvpol=args.kvpol, wpol=args.wpol, stamps=args.stamps, thr=args.thr))
    print("wrote", args.o)
```

```python
import sys, math, struct
sys.path.insert(0, "gen")
from asmlib import *

QX = 0x0000000
OX = 0x0800000
LX = 0x1800000
FX = 0x1900000
YX = 0x2000000
STAMP = 0xF000000
WS_BYTES = 0x10000000

S_X, S_K, S_V, S_WQ, S_WO, S_OUT, S_DBG, S_WS = 4, 8, 12, 16, 20, 24, 28, 32
S_PTR = 40
S_WAVE, S_HH, S_P, S_HKV, S_B, S_S, S_KVB = 56, 57, 58, 59, 60, 61, 62
S_M0B = 63
S_NONCE = 64
S_T0, S_T1, S_T2, S_T3 = 66, 67, 68, 69
S_WQB, S_XB = 70, 71
S_THR = 72
S_WOB = 73
S_T4 = 74
S_RET = 76
S_SUB = 78
S_ACC = 84
S_CNT = 86
S_C = 87
S_TAG = 88
S_ST = 92
S_STB = 94
S_PC = 96

V_L16, V_LANE, V_Q16, V_G = 0, 1, 2, 3
V_KA, V_VA0, V_VA1, V_DK, V_DV = 4, 5, 6, 7, 8
V_L, V_U = 9, 12
V_X0 = 15
V_T = 24
V_NM = 32
V_P = 44
V_F = 56
V_S = 88
V_Q = 112
V_O = 160

SLOT = 16384
SLOTMAP = [2, 3, 4, 5, 0, 1, 6, 7, 8, 9]
def slot_of(t): return SLOTMAP[t % 10] * SLOT
SCR = 7 * SLOT
XB = 13 * 8192
MISC = XB + 49152
def wq_lds(t): return t * 8192 if t < 13 else (t - 13) * 8192
WOSLOT = [6, 7, 8, 9, 2, 3, 4, 5]
LOG2E = 1.4426950408889634
CSCALE = (128 ** -0.5) * LOG2E

def f32bits(x): return struct.unpack("<I", struct.pack("<f", x))[0]
def vr(base, n): return f"v[{base}:{base+n-1}]"

class VM:
    def __init__(self, a):
        self.a = a; self.ops = []
    def issue(self, tag): self.ops.append(tag)
    def count_after(self, tag):
        idx = max(i for i, t in enumerate(self.ops) if t == tag)
        return len(self.ops) - 1 - idx
    def wait(self, tag):
        n = self.count_after(tag)
        assert n <= 63
        self.a(f"s_waitcnt vmcnt({n})")
    def has(self, tag): return tag in self.ops


def gen(kvpol="nt", wpol="", stamps=False, thr=256.0, depth=6, sched=(4, 3, 3, 3, 3, 2), pf_code=True,
        lad=((3, 3, 3, 1, 0), (2, 2, 2, 2, 2)), exp=None, rot=True, ekv=1):
    a = Asm()
    NST = 40
    def stamp(i, wave=0, cyc=False, reg=None):
        if not stamps: return
        L = a.label("Lst")
        a(f"s_cmp_lg_u32 s{S_WAVE}, {wave}\ns_cbranch_scc1 {L}")
        if reg is None:
            a(f"""{"s_memtime" if cyc else "s_memrealtime"} s[{S_ST}:{S_ST+1}]
            s_waitcnt lgkmcnt(0)""")
            reg = S_ST
        a(f"""v_mov_b32 v22, s{reg}
        v_mov_b32 v23, s{reg+1}
        v_mov_b32 v21, 0
        s_mov_b64 exec, 1
        global_store_dwordx2 v21, v[22:23], s[{S_STB}:{S_STB+1}] offset:{i*8}
        s_mov_b64 exec, -1
        {L}:""")

    def S(kt, qt): return V_S + (kt * 3 + qt) * 4
    def Q(qt, ks): return V_Q + (qt * 4 + ks) * 4
    def O(dt, qt): return V_O + (dt * 3 + qt) * 4
    def NM(qt): return V_NM + qt * 4
    def P(qt): return V_P + qt * 4
    def F(i): return V_F + i * 4
    t0, t1, t2 = V_X0 + 2, V_X0 + 3, V_X0 + 4
    V_DWQ, V_DX = V_X0, V_X0 + 1

    a.begin_kernel(MAIN, 256, 512, 163840, listed=False)
    a(f"""s_cmp_ge_u32 s2, 256
    s_cbranch_scc1 L_end
    s_load_dwordx16 s[{S_PTR}:{S_PTR+15}], s[0:1], 0
    s_memrealtime s[{S_NONCE}:{S_NONCE+1}]
    v_lshrrev_b32 v{t0}, 6, v0
    v_and_b32 v{V_LANE}, 63, v0
    v_readfirstlane_b32 s{S_WAVE}, v{t0}
    v_and_b32 v{V_Q16}, 15, v0
    v_bfe_u32 v{V_G}, v0, 4, 2
    v_lshlrev_b32 v{V_L16}, 4, v{V_LANE}
    s_and_b32 s{S_HKV}, s2, 7
    s_lshr_b32 s{S_B}, s2, 5
    s_bfe_u32 s{S_S}, s2, 0x20003
    s_and_b32 s{S_HH}, s{S_WAVE}, 3
    s_lshr_b32 s{S_P}, s{S_WAVE}, 2
    s_lshl_b32 s{S_M0B}, s{S_WAVE}, 10""")
    a(f"""s_lshr_b32 s{S_T2}, s{S_HH}, 1
    s_xor_b32 s{S_T3}, s{S_HH}, s{S_T2}
    s_and_b32 s{S_T3}, s{S_T3}, 1
    s_lshl_b32 s{S_T3}, s{S_T3}, 1
    s_or_b32 s{S_T3}, s{S_T3}, s{S_T2}
    v_and_b32 v{t0}, 3, v{V_LANE}
    v_xor_b32 v{t0}, s{S_T3}, v{t0}
    v_lshlrev_b32 v{t0}, 4, v{t0}
    v_lshl_add_u32 v{t0}, v{V_G}, 6, v{t0}
    v_bfe_u32 v{t1}, v{V_LANE}, 2, 2
    v_lshl_add_u32 v{V_DK}, v{t1}, 8, v{t0}
    v_add_u32 v{V_DK}, s{S_M0B}, v{V_DK}
    v_lshl_add_u32 v{V_DX}, v{t1}, 10, v{t0}
    s_lshl_b32 s{S_T2}, s{S_HH}, 12
    v_add_u32 v{V_DX}, s{S_T2}, v{V_DX}""")
    a(f"""v_bfe_u32 v{t1}, v{V_LANE}, 2, 3
    v_and_b32 v{t2}, 1, v{V_G}
    v_lshlrev_b32 v{t2}, 1, v{t2}
    v_and_b32 v{t0}, 3, v{V_LANE}
    v_xor_b32 v{t0}, v{t0}, v{t2}
    v_lshlrev_b32 v{t0}, 4, v{t0}
    v_lshrrev_b32 v{t2}, 5, v{V_LANE}
    v_lshl_add_u32 v{t0}, v{t2}, 6, v{t0}
    s_and_b32 s{S_T2}, s{S_WAVE}, 1
    s_lshl_b32 s{S_T2}, s{S_T2}, 7
    v_add_u32 v{t0}, s{S_T2}, v{t0}
    s_lshr_b32 s{S_T2}, s{S_WAVE}, 1
    s_lshl_b32 s{S_T3}, s{S_T2}, 3
    v_add_u32 v{t2}, s{S_T3}, v{t1}
    v_lshl_add_u32 v{V_DV}, v{t2}, 8, v{t0}
    v_lshl_add_u32 v{V_X0+5}, v{t2}, 10, v{t0}""")
    V_DWO = V_X0 + 5
    a(f"""s_and_b32 s{S_T3}, s{S_T2}, 1
    s_lshl_b32 s{S_T3}, s{S_T3}, 4
    s_lshr_b32 s{S_T2}, s{S_T2}, 1
    s_lshl_b32 s{S_T2}, s{S_T2}, 2
    s_add_u32 s{S_T3}, s{S_T3}, s{S_T2}
    v_lshrrev_b32 v{t2}, 2, v{t1}
    v_and_b32 v{t1}, 3, v{t1}
    v_lshl_add_u32 v{t1}, v{t2}, 3, v{t1}
    v_add_u32 v{t1}, s{S_T3}, v{t1}
    v_lshl_add_u32 v{V_DWQ}, v{t1}, 13, v{t0}
    s_lshl_b32 s{S_WQB}, s{S_HKV}, 2
    s_add_u32 s{S_WQB}, s{S_WQB}, s{S_S}
    s_lshl_b32 s{S_WQB}, s{S_WQB}, 8
    s_mul_i32 s{S_XB}, s{S_B}, {48*1024}
    s_waitcnt lgkmcnt(0)""")
    if exp and "samehead" in exp:
        a(f"s_mov_b32 s{S_WQB}, 0")
    if exp and "sameb" in exp:
        a(f"s_mov_b32 s{S_XB}, 0")
    a.srd(S_WQ, S_PTR + 6, 512 * 4096 * 2)
    a.srd(S_X, S_PTR + 0, 8 * 48 * 512 * 2)
    a(f"s_cmp_lg_u32 s{S_P}, 0\ns_cbranch_scc1 L_role1")

    def setup2():
        a.srd(S_K, S_PTR + 2, 0x2000000)
        a.srd(S_V, S_PTR + 4, 0x2000000)
        a.srd(S_WO, S_PTR + 8, 4096 * 512 * 2)
        a.srd(S_OUT, S_PTR + 10, 8 * 48 * 512 * 2)
        a.srd(S_WS, S_PTR + 14, WS_BYTES)
        a(f"""s_lshl_b32 s{S_KVB}, s{S_B}, 3
        s_add_u32 s{S_KVB}, s{S_KVB}, s{S_HKV}
        s_lshl_b32 s{S_KVB}, s{S_KVB}, 19
        s_lshl_b32 s{S_T2}, s{S_S}, 17
        s_add_u32 s{S_KVB}, s{S_KVB}, s{S_T2}""")
        a(f"""v_lshrrev_b32 v{t0}, 2, v{V_Q16}
        v_lshrrev_b32 v{t1}, 1, v{t0}
        v_xor_b32 v{t2}, v{t0}, v{t1}
        v_and_b32 v{t2}, 1, v{t2}
        v_lshl_or_b32 v{t1}, v{t2}, 1, v{t1}
        v_xor_b32 v{t1}, v{t1}, v{V_G}
        v_lshlrev_b32 v{t0}, 10, v{t0}
        v_lshl_add_u32 v{t0}, v{t1}, 4, v{t0}
        v_and_b32 v{t1}, 3, v{V_Q16}
        v_lshl_add_u32 v{V_KA}, v{t1}, 6, v{t0}""")
        a(f"""v_lshrrev_b32 v{t0}, 5, v{V_LANE}
        v_lshlrev_b32 v{t0}, 11, v{t0}
        v_bfe_u32 v{t1}, v{V_LANE}, 2, 3
        v_lshl_add_u32 v{t0}, v{t1}, 6, v{t0}
        v_and_b32 v{t1}, 1, v{V_G}
        v_lshl_add_u32 v{t0}, v{t1}, 5, v{t0}
        v_and_b32 v{t1}, 3, v{V_LANE}
        v_lshl_add_u32 v{V_VA0}, v{t1}, 3, v{t0}
        v_xor_b32 v{V_VA1}, 32, v{V_VA0}
        s_mov_b32 s{S_THR}, {f32bits(thr):#x}
        s_mov_b32 s{S_C}, {f32bits(CSCALE):#x}""")
        L = a.label("Lpc")
        a(f"s_getpc_b64 s[{S_PC}:{S_PC+1}]\n{L}:")
        for qt in range(3):
            a(f"""s_add_u32 s{S_SUB+2*qt}, s{S_PC}, L_rescale{qt}-{L}
            s_addc_u32 s{S_SUB+2*qt+1}, s{S_PC+1}, 0""")
        a(f"""s_lshl_b32 s{S_WOB}, s{S_HKV}, 1
        s_lshr_b32 s{S_T2}, s{S_S}, 1
        s_add_u32 s{S_WOB}, s{S_WOB}, s{S_T2}
        s_lshl_b32 s{S_WOB}, s{S_WOB}, 18
        s_and_b32 s{S_T2}, s{S_S}, 1
        s_lshl_b32 s{S_T2}, s{S_T2}, 9
        s_add_u32 s{S_WOB}, s{S_WOB}, s{S_T2}""")
        if stamps:
            a(f"""s_mul_i32 s{S_T2}, s2, {NST*8}
            s_add_u32 s{S_STB}, s{S_PTR+14}, {STAMP:#x}
            s_addc_u32 s{S_STB+1}, s{S_PTR+15}, 0
            s_add_u32 s{S_STB}, s{S_STB}, s{S_T2}
            s_addc_u32 s{S_STB+1}, s{S_STB+1}, 0""")

    def dma(vm, tag, lds_off, srd, vo, sbase, soff, pol):
        a(f"s_add_u32 s{S_T2}, s{S_M0B}, {lds_off & 0xffffffff:#x}")
        a(f"s_mov_b32 m0, s{S_T2}")
        a(f"s_add_u32 s{S_T3}, s{sbase}, {soff:#x}")
        a(f"buffer_load_dwordx4 v{vo}, s[{srd}:{srd+3}], s{S_T3} offen {pol} lds")
        vm.issue(tag)
    def dma_piece(vm, n, both=False):
        t, isv = n >> 1, n & 1
        slot = slot_of(t) + isv * 8192
        srd, vo, vo2 = (S_V, V_DV, V_L + 1) if isv else (S_K, V_DK, V_L)
        dma(vm, ("kv", n), slot, srd, vo, S_KVB, t * 8192, kvpol)
        if both:
            dma(vm, ("kv", n), slot - 4096, srd, vo2, S_KVB, t * 8192, kvpol)
    def dma_wo(vm, n):
        k, chf = n >> 1, n & 1
        dma(vm, ("wo", n), WOSLOT[k] * SLOT + chf * 8192, S_WO, V_DWO, S_WOB, k * 32768 + chf * 256, wpol)

    def xlane(op, x, ta, tb):
        a(f"""v_mov_b32 v{ta}, v{x}
        v_mov_b32 v{tb}, v{x}
        s_nop 1
        v_permlane16_swap_b32 v{ta}, v{tb}
        s_nop 1
        {op} v{ta}, v{ta}, v{tb}
        v_mov_b32 v{tb}, v{ta}
        s_nop 1
        v_permlane32_swap_b32 v{ta}, v{tb}
        s_nop 1
        {op} v{x}, v{ta}, v{tb}""")

    def k_read(idx):
        kt, ks = idx >> 2, idx & 3
        return f"ds_read_b128 {vr(F(idx),4)}, v{V_KA} offset:{kt*4096 + ks*256}"
    def v_read(dt, j2):
        ad = V_VA1 if (dt & 1) else V_VA0
        return f"ds_read_b64_tr_b16 {vr(F(dt)+2*j2,2)}, v{ad} offset:{8192 + j2*4096 + (dt>>2)*1024 + ((dt>>1)&1)*512}"
    def qk_mfma(idx, qt, first):
        kt, ks = idx >> 2, idx & 3
        c = ("0" if first else vr(NM(qt), 4)) if ks == 0 else vr(S(kt, qt), 4)
        return f"v_mfma_f32_16x16x32_bf16 {vr(S(kt,qt),4)}, {vr(F(idx),4)}, {vr(Q(qt,ks),4)}, {c}"
    def pv_mfma(dt, qt, first):
        c = "0" if first else vr(O(dt, qt), 4)
        return f"v_mfma_f32_16x16x32_bf16 {vr(O(dt,qt),4)}, {vr(F(dt),4)}, {vr(P(qt),4)}, {c}"
    def sm_ops(qt, check):
        T, u = V_T, V_U + qt
        ex = [f"v_exp_f32 v{T+kt*4+i}, v{S(kt,qt)+i}" for kt in range(2) for i in range(4)]
        ops = ex[0:4] + [f"v_add_f32 v{u}, v{T}, v{T+1}", f"v_cvt_pk_bf16_f32 v{P(qt)}, v{T}, v{T+1}",
                         f"v_add_f32 v{u}, v{u}, v{T+2}"] + ex[4:6] + \
              [f"v_cvt_pk_bf16_f32 v{P(qt)+1}, v{T+2}, v{T+3}", f"v_add_f32 v{u}, v{u}, v{T+3}"] + ex[6:8] + \
              [f"v_add_f32 v{u}, v{u}, v{T+4}", f"v_cvt_pk_bf16_f32 v{P(qt)+2}, v{T+4}, v{T+5}",
               f"v_add_f32 v{u}, v{u}, v{T+5}", f"v_add_f32 v{u}, v{u}, v{T+6}",
               f"v_cvt_pk_bf16_f32 v{P(qt)+3}, v{T+6}, v{T+7}", f"v_add_f32 v{u}, v{u}, v{T+7}"]
        if check:
            L = a.label("Lok")
            ops.append(f"""v_cmp_lt_f32 vcc, s{S_THR}, v{u}
            s_cbranch_vccz {L}
            s_swappc_b64 s[{S_RET}:{S_RET+1}], s[{S_SUB+2*qt}:{S_SUB+2*qt+1}]
            {L}:""")
        ops.append(f"v_add_f32 v{V_L+qt}, v{V_L+qt}, v{u}")
        return ops
    def tile_max(qt, d):
        s0, s1 = S(0, qt), S(1, qt)
        a(f"""v_max3_f32 v{d}, v{s0}, v{s0+1}, v{s0+2}
        v_max3_f32 v{d}, v{d}, v{s0+3}, v{s1}
        v_max3_f32 v{d}, v{d}, v{s1+1}, v{s1+2}
        v_max_f32 v{d}, v{d}, v{s1+3}""")
        xlane("v_max_f32", d, V_T + 6, V_T + 7)
    def init_max(qt):
        d = V_T
        tile_max(qt, d)
        for i in range(4):
            a(f"v_sub_f32 v{NM(qt)+i}, 0, v{d}")
        for kt in range(2):
            for i in range(4):
                a(f"v_sub_f32 v{S(kt,qt)+i}, v{S(kt,qt)+i}, v{d}")
        a(f"v_mov_b32 v{V_L+qt}, 0")
    def interleave(mf, fill, lead=0):
        nm = len(mf); slots = nm - lead; k = 0
        for i, m in enumerate(mf):
            a(m)
            if i >= lead:
                tgt = (len(fill) * (i - lead + 1) + slots - 1) // slots
                while k < tgt:
                    a(fill[k]); k += 1
        while k < len(fill):
            a(fill[k]); k += 1
    def capture(fn):
        sv = a.lines; a.lines = []
        fn()
        out = "\n".join(l.strip() for l in a.lines); a.lines = sv
        return out

    NPRO = 14
    plan = {}
    nxt = NPRO
    for r, c in enumerate(sched):
        plan[r] = [("kv", x) for x in range(nxt, min(nxt + c, 32))]; nxt += c
    assert nxt >= 32
    for r, lst in plan.items():
        for _, pc in lst:
            t = pc >> 1
            assert t < 10 or (t - 10) // 2 < r, (r, pc)
    for r, lst in ((5, range(0, 8)), (6, range(8, 12)), (7, range(12, 16))):
        plan.setdefault(r, [])
        plan[r] += [("wo", x) for x in lst]

    for p in range(2):
        vm = VM(a)
        a(f"L_role{p}:")
        n = V_T
        a.srd(S_DBG, S_PTR + 12, 256)
        a(f"""s_lshl_b32 s{S_T2}, s{S_B}, 3
        v_mov_b32 v{n+4}, s{S_T2}""")
        if p == 1:
            a(f"""s_and_b32 s{S_T2}, s2, 31
            s_lshl_b32 s{S_T2}, s{S_T2}, 3
            s_add_u32 s{S_T2}, s{S_T2}, s{S_WAVE}
            s_cmp_lg_u32 s{S_T2}, 4
            s_cbranch_scc1 L_nonce_skip
            s_or_b32 s{S_NONCE}, s{S_NONCE}, 1
            v_mov_b32 v{n}, s{S_NONCE}
            v_mov_b32 v{n+1}, s{S_NONCE+1}
            s_mov_b64 exec, 1
            buffer_store_dwordx2 {vr(n,2)}, v{n+4}, s[{S_DBG}:{S_DBG+3}], 0 offen sc1
            s_mov_b64 exec, -1
            L_nonce_skip:""")
        S_RW, S_RX = S_TAG, S_TAG + 1
        def kg_dyn(c, dst, shift, base):
            a(f"""s_add_u32 s{dst}, s{S_TAG+2}, {c}
            s_and_b32 s{dst}, s{dst}, 3
            s_lshl_b32 s{dst}, s{dst}, {shift}
            s_add_u32 s{dst}, s{dst}, s{base}""")
        a(f"s_add_u32 s{S_TAG+2}, s{S_B}, s{S_S}" if rot else f"s_mov_b32 s{S_TAG+2}, 0")
        def dma_x(rho, c):
            tau = 2 * rho + p
            kg, qt = tau // 3, tau % 3
            kg_dyn(kg, S_RX, 8, S_XB)
            dma(vm, ("c", c), XB + rho * 8192, S_X, V_DX, S_RX, qt * 16384, wpol)
        def dma_wq(t, c):
            if t % 4 == 0 or t == 13:
                kg_dyn(t >> 2, S_RW, 20, S_WQB)
            dma(vm, ("c", c), wq_lds(t), S_WQ, V_DWQ, S_RW, (t & 3) * 32 * 8192, wpol)
        QISS = {
            -1: lambda: ([dma_x(0, 0), dma_x(1, 0)] + [dma_wq(t, 0) for t in range(0, 4)] + [dma_x(2, 1)] + [dma_wq(t, 1) for t in range(4, 8)]),
            0: lambda: ([dma_x(3, 2), dma_x(4, 2)] + [dma_wq(t, 2) for t in range(8, 12)]),
            1: lambda: ([dma_x(5, 3)] + [dma_wq(t, 3) for t in range(12, 16)]),
        }
        QISS[-1]()
        setup2()
        if p == 1 and pf_code:
            a(f"""s_cmp_lg_u32 s{S_WAVE}, 5
            s_cbranch_scc1 L_pfc_skip
            s_getpc_b64 s[{S_ACC}:{S_ACC+1}]
            L_pfc:
            s_sub_u32 s{S_ACC}, s{S_ACC}, L_pfc-{MAIN}
            s_subb_u32 s{S_ACC+1}, s{S_ACC+1}, 0
            v_lshlrev_b32 v{t0}, 7, v{V_LANE}
            PFC_LOADS
            L_pfc_skip:""")
        wa0, wa1, xa = V_U, V_U + 1, V_U + 2
        a(f"""s_and_b32 s{S_T2}, s{S_WAVE}, 1
        s_lshl_b32 s{S_T2}, s{S_T2}, 5
        v_xor_b32 v{wa0}, s{S_T2}, v{V_VA0}
        s_lshr_b32 s{S_T2}, s{S_WAVE}, 1
        s_lshl_b32 s{S_T2}, s{S_T2}, 9
        v_add_u32 v{wa0}, s{S_T2}, v{wa0}
        v_add_u32 v{wa1}, 0x10000, v{wa0}
        v_add_u32 v{xa}, {XB}, v{V_KA}""")
        if p == 1:
            a(f"v_subrev_u32 v{V_L}, 4096, v{V_DK}\nv_subrev_u32 v{V_L+1}, 4096, v{V_DV}")
        if p == 0:
            stamp(0, 0, reg=S_NONCE); stamp(9)
        QA = 32
        FR = 64
        for c in range(4):
            vm.wait(("c", c))
            if c == 3 and p == 0:
                a(f"""s_cmp_lg_u32 s{S_WAVE}, 0
                s_cbranch_scc1 L_nonce_skip2
                s_mov_b32 s{S_CNT}, 0
                L_nonce_retry:
                s_waitcnt vmcnt(0)
                v_readfirstlane_b32 s{S_T2}, v{n}
                s_add_u32 s{S_CNT}, s{S_CNT}, 1
                s_cmp_lg_u32 s{S_T2}, 0
                s_cbranch_scc1 L_nonce_ok
                s_cmp_gt_u32 s{S_CNT}, 0x10000
                s_cbranch_scc1 L_nonce_ok
                buffer_load_dwordx2 {vr(n,2)}, v{n+4}, s[{S_DBG}:{S_DBG+3}], 0 offen sc1
                s_branch L_nonce_retry
                L_nonce_ok:
                v_mov_b32 v{n+2}, {MISC}
                ds_write_b64 v{n+2}, {vr(n,2)}
                s_waitcnt lgkmcnt(0)
                L_nonce_skip2:""")
            a("s_barrier")
            if p == 0: stamp(12 + c)
            for k in range(4):
                t = 4 * c + k
                off = wq_lds(t)
                ad = wa1 if off >= 65536 else wa0
                for j2 in range(2):
                    a(f"ds_read_b64_tr_b16 {vr(FR+k*16+2*j2,2)}, v{ad} offset:{(off & 0xffff) + j2*4096}")
                for qt in range(3):
                    a(f"ds_read_b128 {vr(FR+k*16+4+qt*4,4)}, v{xa} offset:{(c*3+qt)*4096 + k*256}")
                if k == 2:
                    if c in QISS: QISS[c]()
                    if c == 1:
                        if p == 0:
                            a(f"""s_cmp_lg_u32 s{S_WAVE}, 0
                            s_cbranch_scc1 L_nonce_skip1
                            buffer_load_dwordx2 {vr(n,2)}, v{n+4}, s[{S_DBG}:{S_DBG+3}], 0 offen sc1
                            L_nonce_skip1:""")
                    if p == 1 and c >= 2 and not (exp and "nokv" in exp):
                        for pc in range(ekv * (c - 2), ekv * (c - 2) + ekv): dma_piece(vm, pc, True)
            if c == 3:
                a(f"v_mov_b32 v{V_T+2}, {MISC}\nds_read_b64 {vr(V_T,2)}, v{V_T+2}")
            extra = 1 if c == 3 else 0
            for k in range(4):
                a(f"s_waitcnt lgkmcnt({min(15, 15 - 5*k + extra)})")
                for qt in range(3):
                    cc = "0" if (c == 0 and k == 0) else vr(QA + qt * 4, 4)
                    a(f"v_mfma_f32_16x16x32_bf16 {vr(QA+qt*4,4)}, {vr(FR+k*16,4)}, {vr(FR+k*16+4+qt*4,4)}, {cc}")
        a("s_waitcnt lgkmcnt(0)\ns_barrier")
        if p == 0: stamp(8)
        if exp and "stopq" in exp:
            a("s_waitcnt vmcnt(0)\ns_endpgm")
        G = 48
        a(f"""v_readfirstlane_b32 s{S_NONCE}, v{V_T}
        v_readfirstlane_b32 s{S_NONCE+1}, v{V_T+1}
        s_mul_i32 s{S_T0}, s2, 24576
        s_add_u32 s{S_T0}, s{S_T0}, s{S_M0B}
        s_add_u32 s{S_T0}, s{S_T0}, {QX}
        s_nop 2""")
        for qt in range(3):
            for i in range(4):
                a(f"v_mul_f32 v{QA+qt*4+i}, s{S_C}, v{QA+qt*4+i}")
            g = G + qt * 4
            a(f"""v_cvt_pk_bf16_f32 v{g}, v{QA+qt*4}, v{QA+qt*4+1}
            v_cvt_pk_bf16_f32 v{g+1}, v{QA+qt*4+2}, v{QA+qt*4+3}
            v_mov_b32 v{g+2}, v{V_T}
            v_mov_b32 v{g+3}, v{V_T+1}
            buffer_store_dwordx4 {vr(g,4)}, v{V_L16}, s[{S_WS}:{S_WS+3}], s{S_T0} offen sc1""")
            vm.issue("qst")
            if qt < 2: a(f"s_add_u32 s{S_T0}, s{S_T0}, 8192")
        for x in (V_KA, V_VA0, V_VA1):
            a(f"v_add_u32 v{x}, {slot_of(p)}, v{x}")
        qst = V_X0 + 1
        a(f"""s_mul_i32 s{S_T0}, s{S_HH}, 12288
        s_add_u32 s{S_T0}, s{S_T0}, {SCR}
        v_add_u32 v{qst}, s{S_T0}, v{V_L16}""")
        if p == 0:
            stamp(1)
            sa, qa = V_X0, V_X0 + 2
            a(f"""s_lshl_b32 s{S_T0}, s{S_B}, 2
            s_add_u32 s{S_T0}, s{S_T0}, s{S_HH}
            s_lshl_b32 s{S_T0}, s{S_T0}, 3
            s_add_u32 s{S_T0}, s{S_T0}, s{S_HKV}
            s_mul_i32 s{S_T0}, s{S_T0}, 24576
            s_add_u32 s{S_T0}, s{S_T0}, {QX}
            v_lshlrev_b32 v{sa}, 10, v{V_LANE}
            v_add_u32 v{sa}, {16384 + 1008:#x}, v{sa}
            v_lshlrev_b32 v{qa}, 9, v{V_G}
            v_lshl_add_u32 v{qa}, v{V_Q16}, 4, v{qa}
            s_mov_b32 s{S_CNT}, 0
            s_mov_b64 exec, 0xff
            L_qsent:
            buffer_load_dwordx4 {vr(V_T+4,4)}, v{sa}, s[{S_WS}:{S_WS+3}], s{S_T0} offen sc1
            s_add_u32 s{S_CNT}, s{S_CNT}, 1
            s_waitcnt vmcnt(0)
            v_cmp_ne_u64 vcc, s[{S_NONCE}:{S_NONCE+1}], {vr(V_T+6,2)}
            s_cmp_gt_u32 s{S_CNT}, 0x8000
            s_cbranch_scc1 L_qsent_x
            s_cbranch_vccnz L_qsent
            L_qsent_x:
            s_mov_b64 exec, -1""")
            if stamps:
                a(f"s_mov_b32 s{S_ACC}, s{S_CNT}\ns_mov_b32 s{S_ACC+1}, 0")
                stamp(17, 1, reg=S_ACC); stamp(16, 1)
            a(f"""s_mov_b32 s{S_CNT}, 0
            L_qpoll:
            s_mov_b32 s{S_T1}, s{S_T0}""")
            for i in range(24):
                qt, ks, hf = i // 8, (i % 8) // 2, i % 2
                if i and i % 4 == 0:
                    a(f"s_add_u32 s{S_T1}, s{S_T1}, 4096")
                a(f"buffer_load_dwordx4 {vr(160+i*4,4)}, v{qa}, s[{S_WS}:{S_WS+3}], s{S_T1} offen offset:{(ks&1)*2048 + hf*256} sc1")
            a(f"s_mov_b64 s[{S_ACC}:{S_ACC+1}], 0")
            for i in range(24):
                if i % 4 == 0:
                    a(f"s_waitcnt vmcnt({20 - i})")
                r = 160 + i * 4
                qt, ks, hf = i // 8, (i % 8) // 2, i % 2
                a(f"v_cmp_ne_u64 vcc, s[{S_NONCE}:{S_NONCE+1}], {vr(r+2,2)}")
                a(f"v_mov_b32 v{Q(qt, ks) + 2*hf}, v{r}")
                a(f"s_or_b64 s[{S_ACC}:{S_ACC+1}], s[{S_ACC}:{S_ACC+1}], vcc")
                a(f"v_mov_b32 v{Q(qt, ks) + 2*hf + 1}, v{r+1}")
                if hf == 1:
                    a(f"ds_write_b128 v{qst}, {vr(Q(qt,ks),4)} offset:{(qt*4+ks)*1024}")
            a(f"""s_cbranch_scc0 L_qok
            s_add_u32 s{S_CNT}, s{S_CNT}, 1
            s_cmp_lt_u32 s{S_CNT}, 0x8000
            s_cbranch_scc1 L_qpoll
            L_qok:
            s_waitcnt lgkmcnt(0)""")
            vm.ops = []
            if stamps:
                a(f"s_mov_b32 s{S_ACC}, s{S_CNT}\ns_mov_b32 s{S_ACC+1}, 0")
                stamp(18, 1, reg=S_ACC); stamp(28, 1)
            stamp(2)
            a("s_barrier")
            for idx in range(8): a(k_read(idx))
            a("s_barrier")
        else:
            for pc in range(2 * ekv, NPRO):
                a(f"s_waitcnt vmcnt({max(depth-2,0)})")
                dma_piece(vm, pc, True)
            stamp(19, 4)
            if vm.has(("kv", 3)): vm.wait(("kv", 3))
            a("s_barrier")
            for i in range(12):
                a(f"ds_read_b128 {vr(V_Q+i*4,4)}, v{qst} offset:{i*1024}")
            a("s_waitcnt lgkmcnt(0)\ns_barrier")
            for idx in range(8): a(k_read(idx))
        def pr(i):
            if lad: a(f"s_setprio {lad[p][i]}")
        WA = V_Q
        woa0, woa1 = V_X0, V_X0 + 1
        for r in range(8):
            t = 2 * r + p
            first = (r == 0)
            if r > 0:
                need = ("kv", 4 * r + 3) if r < 7 else ("wo", 11)
                if vm.has(need): vm.wait(need)
                if p == 1: stamp(20 + r, 4)
                a("s_barrier")
                if p == 0:
                    stamp(30 + r, 0)
                    if r == 4: stamp(38, 0, True)
                    if r == 7: stamp(39, 0, True)
            pr(0)
            if r > 0 and p == 0:
                for idx in range(8): a(k_read(idx))
            dm = [capture(lambda: (dma_piece(vm, x) if k == "kv" else dma_wo(vm, x))) for k, x in plan.get(r, [])]
            h = (len(dm) + 1) // 2
            if p == 1 and r > 0:
                f1 = (r == 1)
                interleave([pv_mfma(dt, 0, f1) for dt in range(8)], dm[:h])
                interleave([pv_mfma(dt, 1, f1) for dt in range(8)], dm[h:])
                for dt in range(8):
                    a(pv_mfma(dt, 2, f1)); a(k_read(dt))
                dm = []
            elif r == 0:
                for d in dm: a(d)
                dm = []
            pr(1)
            for idx in range(8):
                a(f"s_waitcnt lgkmcnt({7-idx})")
                a(qk_mfma(idx, 0, first))
            pr(2)
            if first:
                for idx in range(8): a(qk_mfma(idx, 1, first))
                for idx in range(8):
                    a(qk_mfma(idx, 2, first)); a(v_read(idx, 0)); a(v_read(idx, 1))
                for qt in range(3):
                    init_max(qt)
                    for o in sm_ops(qt, False): a(o)
                smq2 = []
            else:
                interleave([qk_mfma(idx, 1, False) for idx in range(8)], sm_ops(0, True))
                s1 = sm_ops(1, True)
                mf = [qk_mfma(idx, 2, False) + "\n" + v_read(idx, 0) + "\n" + v_read(idx, 1) for idx in range(8)]
                interleave(mf, s1)
                smq2 = sm_ops(2, True)
            if r < 7:
                d = slot_of(t + 2) - slot_of(t)
                adv = [f"v_add_u32 v{x}, {d & 0xffffffff:#x}, v{x}" for x in (V_KA, V_VA0, V_VA1)]
                wor = []
            else:
                adv = [f"""v_subrev_u32 v{woa0}, {slot_of(t)}, v{V_VA0}
                s_lshl_b32 s{S_T2}, s{S_HH}, 9
                s_add_u32 s{S_T2}, s{S_T2}, {p*8192 + 2*SLOT}
                v_add_u32 v{woa0}, s{S_T2}, v{woa0}
                v_xor_b32 v{woa1}, 32, v{woa0}
                v_add_u32 v{V_X0+2}, {4*SLOT}, v{woa0}
                v_add_u32 v{V_X0+3}, {4*SLOT}, v{woa1}"""]
                wor = []
                for k in range(6):
                    sl = WOSLOT[k]
                    for u in range(2):
                        ad = (woa1 if u else woa0) if sl < 6 else (V_X0 + 3 if u else V_X0 + 2)
                        off = (sl - 2 if sl < 6 else sl - 6) * SLOT
                        for j2 in range(2):
                            wor.append(f"ds_read_b64_tr_b16 {vr(WA+(k*2+u)*4+2*j2,2)}, v{ad} offset:{off + j2*4096}")
            pr(3)
            if p == 0:
                mf = [f"s_waitcnt lgkmcnt({14-2*dt})\n" + pv_mfma(dt, 0, first) for dt in range(8)]
                interleave(mf, smq2, lead=2)
                pr(4)
                interleave([pv_mfma(dt, 1, first) for dt in range(8)], adv + dm[:h] + wor[:12])
                a("s_nop 1")
                interleave([pv_mfma(dt, 2, first) for dt in range(8)], dm[h:] + wor[12:])
            else:
                for o in adv: a(o)
                a("s_nop 3")
                interleave(smq2, wor) if wor else [a(o) for o in smq2]
                a("s_waitcnt lgkmcnt(0)")
        a("s_waitcnt lgkmcnt(0)\ns_barrier")
        a("s_setprio 0")
        if p == 1:
            for qt in range(3):
                for dt in range(8):
                    a(pv_mfma(dt, qt, False))
        if p == 0: stamp(3)
        for qt in range(3):
            xlane("v_add_f32", V_L + qt, V_T + 6, V_T + 7)
        cw, cr, mw, mr = V_T, V_T + 1, V_T + 2, V_T + 3
        def cb_const(v): return 98304 + v * 12288 if v < 5 else (32768 + (v - 5) * 12288 if v < 7 else 0)
        def cb_addr(sdst, pp):
            c = [cb_const(4 * pp + h_) for h_ in range(4)]
            if pp == 0:
                a(f"s_mul_i32 s{sdst}, s{S_HH}, 12288\ns_add_u32 s{sdst}, s{sdst}, 98304")
            else:
                a(f"""s_mov_b32 s{sdst}, {c[0]}
                s_cmp_eq_u32 s{S_HH}, 1
                s_cselect_b32 s{sdst}, {c[1]}, s{sdst}
                s_cmp_eq_u32 s{S_HH}, 2
                s_cselect_b32 s{sdst}, {c[2]}, s{sdst}
                s_cmp_eq_u32 s{S_HH}, 3
                s_cselect_b32 s{sdst}, {c[3]}, s{sdst}""")
        cb_addr(S_T0, p); cb_addr(S_T1, 1 - p)
        a(f"""v_add_u32 v{cr}, s{S_T1}, v{V_L16}
        v_add_u32 v{cw}, s{S_T0}, v{V_L16}
        s_lshl_b32 s{S_T0}, s{S_WAVE}, 11
        s_add_u32 s{S_T0}, s{S_T0}, {SLOT}
        s_xor_b32 s{S_T1}, s{S_T0}, 0x2000
        v_lshlrev_b32 v{mw}, 2, v{V_LANE}
        v_add_u32 v{mr}, s{S_T1}, v{mw}
        v_add_u32 v{mw}, s{S_T0}, v{mw}""")
        own0, oth0 = 4 * p, 4 * (1 - p)
        for qt in range(3):
            a(f"ds_write_b32 v{mw}, v{NM(qt)} offset:{qt*256}")
            a(f"ds_write_b32 v{mw}, v{V_L+qt} offset:{768+qt*256}")
        for i in range(12):
            a(f"ds_write_b128 v{cw}, {vr(O(oth0,0)+i*4,4)} offset:{i*1024}")
        a("s_waitcnt lgkmcnt(0)\ns_barrier")
        NMo, Lo = V_P, V_P + 3
        for qt in range(3):
            a(f"ds_read_b32 v{NMo+qt}, v{mr} offset:{qt*256}")
            a(f"ds_read_b32 v{Lo+qt}, v{mr} offset:{768+qt*256}")
        for i in range(12):
            a(f"ds_read_b128 {vr(O(oth0,0)+i*4,4)}, v{cr} offset:{i*1024}")
        a("s_waitcnt lgkmcnt(12)")
        FA, FB, LL = 88, 96, 104
        for qt in range(3):
            n_ = V_F + qt
            fa, fb = FA + 2 * qt, FB + 2 * qt
            a(f"""v_min_f32 v{n_}, v{NM(qt)}, v{NMo+qt}
            v_sub_f32 v{fa}, v{n_}, v{NM(qt)}
            v_sub_f32 v{fb}, v{n_}, v{NMo+qt}
            v_exp_f32 v{fa}, v{fa}
            v_exp_f32 v{fb}, v{fb}
            s_nop 0
            v_mul_f32 v{LL+qt}, v{fa}, v{V_L+qt}
            v_fma_f32 v{LL+qt}, v{fb}, v{Lo+qt}, v{LL+qt}
            v_rcp_f32 v{V_F+4}, v{LL+qt}
            v_log_f32 v{LL+qt}, v{LL+qt}
            s_nop 0
            v_mul_f32 v{fa}, v{fa}, v{V_F+4}
            v_mul_f32 v{fb}, v{fb}, v{V_F+4}
            v_sub_f32 v{LL+qt}, v{LL+qt}, v{n_}""")
        a(f"""s_lshl_b32 s{S_T0}, s2, 3
        s_add_u32 s{S_T0}, s{S_T0}, s{S_WAVE}
        s_mul_i32 s{S_T1}, s{S_T0}, 6144
        s_add_u32 s{S_T1}, s{S_T1}, {OX}
        s_lshl_b32 s{S_T2}, s{S_T0}, 8
        s_add_u32 s{S_T2}, s{S_T2}, {LX}
        s_mov_b64 exec, 0xffff
        buffer_store_dwordx4 {vr(LL,4)}, v{V_L16}, s[{S_WS}:{S_WS+3}], s{S_T2} offen sc1
        s_mov_b64 exec, -1""")
        OF = V_F + 8
        for tl in range(2):
            a(f"s_waitcnt lgkmcnt({6 - 6*tl})")
            for qt in range(3):
                for h2 in range(2):
                    dt = own0 + tl * 2 + h2
                    o = O(dt, qt); x = O(oth0 + tl * 2 + h2, qt)
                    for k in range(2):
                        a(f"v_pk_mul_f32 {vr(o+2*k,2)}, {vr(o+2*k,2)}, {vr(FA+2*qt,2)} op_sel_hi:[1,0]")
                        a(f"v_pk_fma_f32 {vr(o+2*k,2)}, {vr(x+2*k,2)}, {vr(FB+2*qt,2)}, {vr(o+2*k,2)} op_sel_hi:[1,0,1]")
                    d = OF + (tl * 3 + qt) * 4 + h2 * 2
                    a(f"v_cvt_pk_bf16_f32 v{d}, v{o}, v{o+1}")
                    a(f"v_cvt_pk_bf16_f32 v{d+1}, v{o+2}, v{o+3}")
                i = tl * 3 + qt
                if i == 4:
                    a(f"s_add_u32 s{S_T1}, s{S_T1}, 4096")
                a(f"buffer_store_dwordx4 {vr(OF+i*4,4)}, v{V_L16}, s[{S_WS}:{S_WS+3}], s{S_T1} offen offset:{(i&3)*1024} sc1")
        if p == 0:
            a("s_branch L_tail")
    a("L_tail:")
    woa0, woa1 = V_X0, V_X0 + 1
    fa_ = V_X0 + 2
    a(f"""v_mov_b32 v{V_T+2}, s{S_NONCE}
    v_mov_b32 v{V_T+3}, s{S_NONCE+1}
    v_mov_b32 v{V_T+4}, 0
    s_lshl_b32 s{S_T1}, s{S_T0}, 7
    s_add_u32 s{S_T1}, s{S_T1}, {FX}
    s_lshr_b32 s{S_T0}, s{S_S}, 1
    s_lshl_b32 s{S_T0}, s{S_T0}, 1
    s_add_u32 s{S_T0}, s{S_T0}, s{S_P}
    s_bfe_u32 s{S_T2}, s{S_WAVE}, 0x10001
    s_lshl_b32 s{S_T2}, s{S_T2}, 2
    s_add_u32 s{S_T0}, s{S_T0}, s{S_T2}
    s_lshl_b32 s{S_T2}, s{S_B}, 8
    s_add_u32 s{S_T0}, s{S_T0}, s{S_T2}
    s_lshl_b32 s{S_T2}, s{S_HKV}, 3
    s_add_u32 s{S_T0}, s{S_T0}, s{S_T2}
    v_lshlrev_b32 v{fa_}, 13, v{V_LANE}
    s_lshl_b32 s{S_T3}, s{S_T0}, 7
    s_add_u32 s{S_T3}, s{S_T3}, {FX}
    s_mov_b32 s{S_CNT}, 0
    s_waitcnt vmcnt(0)
    s_mov_b64 exec, 1
    buffer_store_dwordx2 {vr(V_T+2,2)}, v{V_T+4}, s[{S_WS}:{S_WS+3}], s{S_T1} offen sc1
    s_mov_b64 exec, -1""")
    stamp(4)
    a(f"""s_mov_b64 exec, 15
    L_fpoll:
    buffer_load_dwordx2 {vr(V_T,2)}, v{fa_}, s[{S_WS}:{S_WS+3}], s{S_T3} offen sc1
    s_add_u32 s{S_CNT}, s{S_CNT}, 1
    s_waitcnt vmcnt(0)
    v_cmp_ne_u64 vcc, s[{S_NONCE}:{S_NONCE+1}], {vr(V_T,2)}
    s_cmp_gt_u32 s{S_CNT}, 0x10000
    s_cbranch_scc1 L_fok
    s_cbranch_vccnz L_fpoll
    L_fok:
    s_mov_b64 exec, -1""")
    stamp(5)
    PL = 32
    PF = 160
    q16 = V_X0 + 3
    a(f"""v_lshlrev_b32 v{q16}, 4, v{V_Q16}
    s_lshl_b32 s{S_T2}, s{S_T0}, 8
    s_add_u32 s{S_T2}, s{S_T2}, {LX}
    s_mul_i32 s{S_T3}, s{S_T0}, 6144
    s_and_b32 s{S_T1}, s{S_WAVE}, 1
    s_mul_i32 s{S_T1}, s{S_T1}, 3072
    s_add_u32 s{S_T3}, s{S_T3}, s{S_T1}
    s_add_u32 s{S_T3}, s{S_T3}, {OX}""")
    for j in range(4):
        a(f"buffer_load_dwordx4 {vr(PL+j*4,4)}, v{q16}, s[{S_WS}:{S_WS+3}], s{S_T2} offen sc1")
        if j < 3: a(f"s_add_u32 s{S_T2}, s{S_T2}, {64*256}")
    for j in range(4):
        for qt in range(3):
            a(f"buffer_load_dwordx4 {vr(PF+(j*3+qt)*4,4)}, v{V_L16}, s[{S_WS}:{S_WS+3}], s{S_T3} offen offset:{qt*1024} sc1")
        if j < 3: a(f"s_add_u32 s{S_T3}, s{S_T3}, {64*6144}")
    a("s_waitcnt vmcnt(12)")
    def W(j, qt): return 56 + (j * 3 + qt) * 2
    for qt in range(3):
        mx = V_T
        w = [PL + j * 4 + qt for j in range(4)]
        a(f"""v_max3_f32 v{mx}, v{w[0]}, v{w[1]}, v{w[2]}
        v_max_f32 v{mx}, v{mx}, v{w[3]}""")
        for j in range(4): a(f"v_sub_f32 v{w[j]}, v{w[j]}, v{mx}")
        for j in range(4): a(f"v_exp_f32 v{w[j]}, v{w[j]}")
        a(f"""s_nop 0
        v_add_f32 v{mx}, v{w[0]}, v{w[1]}
        v_add_f32 v{mx+1}, v{w[2]}, v{w[3]}
        v_add_f32 v{mx}, v{mx}, v{mx+1}
        v_rcp_f32 v{mx}, v{mx}
        s_nop 0""")
        for j in range(4): a(f"v_mul_f32 v{W(j,qt)}, v{w[j]}, v{mx}")
    CA = 208
    BFB = 98304
    a(f"""s_mov_b32 s{S_T3}, 0xffff0000
    s_mul_i32 s{S_T1}, s{S_WAVE}, 3072
    s_add_u32 s{S_T1}, s{S_T1}, {BFB}
    v_add_u32 v{V_X0+2}, s{S_T1}, v{V_L16}
    v_add_u32 v{V_X0+3}, {BFB}, v{V_L16}
    s_barrier""")
    for j in range(4):
        a(f"s_waitcnt vmcnt({9 - 3*j})")
        for qt in range(3):
            src = PF + (j * 3 + qt) * 4
            for d in range(4):
                c0 = CA + qt * 8 + 2 * d
                tt = V_T + (d & 1) * 2
                a(f"v_lshlrev_b32 v{tt}, 16, v{src+d}")
                a(f"v_and_b32 v{tt+1}, s{S_T3}, v{src+d}")
                if j == 0:
                    a(f"v_pk_mul_f32 {vr(c0,2)}, {vr(tt,2)}, {vr(W(j,qt),2)} op_sel_hi:[1,0]")
                else:
                    a(f"v_pk_fma_f32 {vr(c0,2)}, {vr(tt,2)}, {vr(W(j,qt),2)}, {vr(c0,2)} op_sel_hi:[1,0,1]")
    CP = 232
    for qt in range(3):
        for d in range(4):
            a(f"v_cvt_pk_bf16_f32 v{CP+qt*4+d}, v{CA+qt*8+2*d}, v{CA+qt*8+2*d+1}")
        a(f"ds_write_b128 v{V_X0+2}, {vr(CP+qt*4,4)} offset:{qt*1024}")
    a("s_waitcnt lgkmcnt(0)\ns_barrier")
    stamp(6)
    YA = 88
    BR = 160
    WB = 56
    for k in (6, 7):
        for u in range(2):
            for j2 in range(2):
                a(f"ds_read_b64_tr_b16 {vr(WB+((k-6)*2+u)*4+2*j2,2)}, v{woa1 if u else woa0} offset:{(WOSLOT[k]-2)*SLOT + j2*4096}")
    for i in range(6):
        a(f"ds_read_b128 {vr(BR+i*4,4)}, v{V_X0+3} offset:{i*1024}")
    for t in range(8):
        if t + 2 < 8:
            for qt in range(3):
                i = (t + 2) * 3 + qt
                a(f"ds_read_b128 {vr(BR+i*4,4)}, v{V_X0+3} offset:{i*1024}")
        a(f"s_waitcnt lgkmcnt({6 if t < 6 else (3 if t == 6 else 0)})")
        for u in range(2):
            af = V_Q + (t * 2 + u) * 4 if t < 6 else WB + ((t - 6) * 2 + u) * 4
            for qt in range(3):
                y = YA + (u * 3 + qt) * 4
                c = "0" if t == 0 else vr(y, 4)
                a(f"v_mfma_f32_16x16x32_bf16 {vr(y,4)}, {vr(af,4)}, {vr(BR+(t*3+qt)*4,4)}, {c}")
    a(f"""s_and_b32 s{S_TAG}, s{S_NONCE}, 0xfff
    s_bfe_u32 s{S_TAG+1}, s{S_NONCE}, 0xc000c
    s_lshr_b64 s[{S_T0}:{S_T1}], s[{S_NONCE}:{S_NONCE+1}], 24
    s_and_b32 s{S_TAG+2}, s{S_T0}, 0xfff
    s_bfe_u32 s{S_TAG+3}, s{S_T0}, 0xc000c
    v_mov_b32 v{V_T}, 0xfff
    s_lshl_b32 s{S_T0}, s2, 3
    s_add_u32 s{S_T0}, s{S_T0}, s{S_WAVE}
    s_mul_i32 s{S_T0}, s{S_T0}, 6144
    s_add_u32 s{S_T0}, s{S_T0}, {YX}""")
    for i in range(6):
        y = YA + i * 4
        for e in range(4):
            a(f"v_add_u32 v{y+e}, 0x800, v{y+e}")
            a(f"v_bfi_b32 v{y+e}, v{V_T}, s{S_TAG+e}, v{y+e}")
        if i == 4:
            a(f"s_add_u32 s{S_T0}, s{S_T0}, 4096")
        a(f"buffer_store_dwordx4 {vr(y,4)}, v{V_L16}, s[{S_WS}:{S_WS+3}], s{S_T0} offen offset:{(i&3)*1024} sc1")
    stamp(29)
    ys = V_X0
    a(f"""s_cmp_ge_u32 s{S_WAVE}, 3
    s_cbranch_scc1 L_end
    s_lshl_b32 s{S_T0}, s{S_B}, 2
    s_and_b32 s{S_T1}, s{S_S}, 1
    s_add_u32 s{S_T0}, s{S_T0}, s{S_T1}
    s_lshl_b32 s{S_T0}, s{S_T0}, 6
    s_add_u32 s{S_T0}, s{S_T0}, s{S_HKV}
    s_mul_i32 s{S_T0}, s{S_T0}, 6144
    s_lshr_b32 s{S_T1}, s{S_S}, 1
    s_mul_i32 s{S_T1}, s{S_T1}, 3
    s_add_u32 s{S_T1}, s{S_T1}, s{S_WAVE}
    s_lshl_b32 s{S_T1}, s{S_T1}, 10
    s_add_u32 s{S_T0}, s{S_T0}, s{S_T1}
    s_add_u32 s{S_T0}, s{S_T0}, {YX}
    s_mov_b32 s{S_CNT}, 0
    s_mov_b32 s{S_T3}, 0xfffff000
    v_and_b32 v{ys}, 7, v{V_LANE}
    v_bfe_u32 v{ys+1}, v{V_LANE}, 3, 1
    v_lshl_add_u32 v{ys}, v{ys+1}, 4, v{ys}
    v_mul_u32_u24 v{ys}, {8*6144}, v{ys}
    v_add_u32 v{ys}, 1008, v{ys}
    s_mov_b64 exec, 0xffff
    L_ysent:
    buffer_load_dwordx4 {vr(V_T+4,4)}, v{ys}, s[{S_WS}:{S_WS+3}], s{S_T0} offen sc1
    s_add_u32 s{S_CNT}, s{S_CNT}, 1
    s_waitcnt vmcnt(0)
    v_xor_b32 v{V_T+1}, s{S_TAG}, v{V_T+4}
    v_bitop3_b32 v{V_T+1}, v{V_T+1}, v{V_T+5}, s{S_TAG+1} bitop3:0xf6
    v_bitop3_b32 v{V_T+1}, v{V_T+1}, v{V_T+6}, s{S_TAG+2} bitop3:0xf6
    v_and_b32 v{V_T+1}, v{V_T+1}, v{V_T}
    v_cmp_ne_u32 vcc, 0, v{V_T+1}
    s_cmp_gt_u32 s{S_CNT}, 0x10000
    s_cbranch_scc1 L_ysent_x
    s_cbranch_vccnz L_ysent
    L_ysent_x:
    s_mov_b64 exec, -1
    s_mov_b32 s{S_CNT}, 0
    L_ypoll:
    s_mov_b32 s{S_T1}, s{S_T0}""")
    YR = 160
    for j in range(16):
        a(f"buffer_load_dwordx4 {vr(YR+j*4,4)}, v{V_L16}, s[{S_WS}:{S_WS+3}], s{S_T1} offen sc1")
        if j < 15:
            a(f"s_add_u32 s{S_T1}, s{S_T1}, {8*6144 if j != 7 else (16-7)*8*6144}")
    for e in range(4):
        a(f"v_mov_b32 v{V_T+1+e}, 0")
    SUMR = 112
    for j in range(16):
        if j % 4 == 0:
            a(f"s_waitcnt vmcnt({12 - j})")
        for e in range(4):
            r = YR + j * 4 + e
            a(f"v_bitop3_b32 v{V_T+1+e}, v{V_T+1+e}, v{r}, s{S_TAG+e} bitop3:0xf6")
            if j == 0:
                a(f"v_and_b32 v{SUMR+e}, s{S_T3}, v{r}")
            else:
                a(f"v_and_b32 v{r}, s{S_T3}, v{r}")
                a(f"v_add_f32 v{SUMR+e}, v{SUMR+e}, v{r}")
    a(f"""v_or3_b32 v{V_T+1}, v{V_T+1}, v{V_T+2}, v{V_T+3}
    v_or_b32 v{V_T+1}, v{V_T+1}, v{V_T+4}
    v_and_b32 v{V_T+1}, v{V_T+1}, v{V_T}
    v_cmp_ne_u32 vcc, 0, v{V_T+1}
    s_cbranch_vccz L_yok
    s_add_u32 s{S_CNT}, s{S_CNT}, 1
    s_cmp_lt_u32 s{S_CNT}, 0x10000
    s_cbranch_scc1 L_ypoll
    L_yok:
    v_cvt_pk_bf16_f32 v{V_T+2}, v{SUMR}, v{SUMR+1}
    v_cvt_pk_bf16_f32 v{V_T+3}, v{SUMR+2}, v{SUMR+3}
    v_lshlrev_b32 v{V_X0}, 10, v{V_Q16}
    v_lshl_add_u32 v{V_X0}, v{V_G}, 3, v{V_X0}
    s_mul_i32 s{S_T0}, s{S_B}, {48*1024}
    s_lshl_b32 s{S_T1}, s{S_WAVE}, 14
    s_add_u32 s{S_T0}, s{S_T0}, s{S_T1}
    s_and_b32 s{S_T1}, s{S_S}, 1
    s_lshl_b32 s{S_T1}, s{S_T1}, 9
    s_add_u32 s{S_T0}, s{S_T0}, s{S_T1}
    s_lshl_b32 s{S_T1}, s{S_HKV}, 6
    s_add_u32 s{S_T0}, s{S_T0}, s{S_T1}
    s_lshr_b32 s{S_T1}, s{S_S}, 1
    s_lshl_b32 s{S_T1}, s{S_T1}, 5
    s_add_u32 s{S_T0}, s{S_T0}, s{S_T1}
    buffer_store_dwordx2 {vr(V_T+2,2)}, v{V_X0}, s[{S_OUT}:{S_OUT+3}], s{S_T0} offen""")
    if stamps: a("s_waitcnt vmcnt(0)")
    stamp(7)
    a("L_end:\ns_endpgm")

    for qt in range(3):
        a(f"L_rescale{qt}:")
        a("s_nop 7")
        d, al = V_T, V_T + 1
        tile_max(qt, d)
        a(f"""v_max_f32 v{d}, 0, v{d}
        v_sub_f32 v{al}, 0, v{d}
        v_exp_f32 v{al}, v{al}""")
        for i in range(4):
            a(f"v_sub_f32 v{NM(qt)+i}, v{NM(qt)+i}, v{d}")
        for kt in range(2):
            for i in range(4):
                a(f"v_sub_f32 v{S(kt,qt)+i}, v{S(kt,qt)+i}, v{d}")
        a(f"v_mul_f32 v{V_L+qt}, v{V_L+qt}, v{al}")
        for dt in range(8):
            for i in range(4):
                a(f"v_mul_f32 v{O(dt,qt)+i}, v{O(dt,qt)+i}, v{al}")
        for o in sm_ops(qt, False)[:-1]:
            a(o)
        a("s_nop 1")
        a(f"s_setpc_b64 s[{S_RET}:{S_RET+1}]")
    a("L_code_end:")
    a(".fill 2048, 4, 0xBF800000")
    a.end_kernel(MAIN, 256, sgpr=100, accum=256)
    hdr = """Fused GQA block (Q-proj + split-K attention over the KV cache + out-proj), one launch.
Generated by gen/attn3.py (hand-written generator).
kernarg: x, k_cache, v_cache, wq, wo, out, debug, ws"""
    txt = a.text(hdr)
    est = 0
    for l in a.lines:
        t = l.strip()
        if not l.startswith("  ") or t.startswith("."): continue
        est += 4 if (t.startswith("s_") and not t.startswith("s_load") and not t.startswith("s_mem")) else 8
    nld = max(1, int(est * 0.9) // 8192)
    pf = []
    for i in range(nld):
        pf.append(f"  global_load_dword v{t1}, v{t0}, s[{S_ACC}:{S_ACC+1}]")
        pf.append(f"  v_add_u32 v{t0}, 0x2000, v{t0}")
    txt = txt.replace("  PFC_LOADS", "\n".join(pf))
    return txt


if __name__ == "__main__":
    import argparse
    ap = argparse.ArgumentParser()
    ap.add_argument("-o", default="standalone__gqa_block_cached__near_ridge.s")
    ap.add_argument("--stamps", action="store_true")
    ap.add_argument("--kvpol", default="nt")
    ap.add_argument("--wpol", default="")
    ap.add_argument("--thr", type=float, default=256.0)
    ap.add_argument("--depth", type=int, default=6)
    ap.add_argument("--sched", default="4,3,3,3,3,2")
    ap.add_argument("--nopfc", action="store_true")
    ap.add_argument("--nolad", action="store_true")
    ap.add_argument("--exp", default="")
    ap.add_argument("--norot", action="store_true")
    ap.add_argument("--ekv", type=int, default=1)
    args = ap.parse_args()
    kw = {}
    if args.nolad: kw["lad"] = None
    if args.exp: kw["exp"] = args.exp.split(",")
    kw["rot"] = not args.norot
    kw["ekv"] = args.ekv
    open(args.o, "w").write(gen(kvpol=args.kvpol, wpol=args.wpol, stamps=args.stamps, thr=args.thr, depth=args.depth,
                                sched=tuple(int(x) for x in args.sched.split(",")), pf_code=not args.nopfc, **kw))
    print("wrote", args.o)
```

```python
import sys, math, struct
sys.path.insert(0, "gen")
from asmlib import *

QX = 0x0000000
QB = 0x3000000
QREC = 12288
QSTR = 12800
OREC = 6656
OX = 0x0800000
LX = 0x1800000
FX = 0x1900000
YX = 0x2000000
STAMP = 0xF000000
WS_BYTES = 0x10000000

S_X, S_K, S_V, S_WQ, S_WO, S_OUT, S_DBG, S_WS = 4, 8, 12, 16, 20, 24, 28, 32
S_PTR = 40
S_WAVE, S_HH, S_P, S_HKV, S_B, S_S, S_KVB = 56, 57, 58, 59, 60, 61, 62
S_M0B = 63
S_NONCE = 64
S_T0, S_T1, S_T2, S_T3 = 66, 67, 68, 69
S_WQB, S_XB = 70, 71
S_THR = 72
S_WOB = 73
S_T4 = 74
S_RET = 76
S_SUB = 78
S_ACC = 84
S_CNT = 86
S_C = 87
S_TAG = 88
S_ST = 92
S_STB = 94
S_PC = 96
S_XCC = 98
S_LOCAL = 99

V_L16, V_LANE, V_Q16, V_G = 0, 1, 2, 3
V_KA, V_VA0, V_VA1, V_DK, V_DV = 4, 5, 6, 7, 8
V_L, V_U = 9, 12
V_X0 = 15
V_T = 24
V_NM = 32
V_P = 44
V_F = 56
V_S = 88
V_Q = 112
V_O = 160

SLOT = 16384
SLOTMAP = [2, 3, 4, 5, 0, 1, 6, 7, 8, 9]
def slot_of(t): return SLOTMAP[t % 10] * SLOT
XB = 13 * 8192
SCR = XB
MISC = XB + 49152
MISC2 = MISC + 64
def wq_lds(t): return t * 8192 if t < 13 else (t - 13) * 8192
WOSLOT = [6, 7, 8, 9, 2, 3, 4, 5]
LOG2E = 1.4426950408889634
CSCALE = (128 ** -0.5) * LOG2E

def f32bits(x): return struct.unpack("<I", struct.pack("<f", x))[0]
def vr(base, n): return f"v[{base}:{base+n-1}]"

class VM:
    def __init__(self, a):
        self.a = a; self.ops = []
    def issue(self, tag): self.ops.append(tag)
    def count_after(self, tag):
        idx = max(i for i, t in enumerate(self.ops) if t == tag)
        return len(self.ops) - 1 - idx
    def wait(self, tag):
        n = self.count_after(tag)
        assert n <= 63
        self.a(f"s_waitcnt vmcnt({n})")
    def has(self, tag): return tag in self.ops


def gen(kvpol="nt", wpol="", stamps=False, thr=256.0, depth=6, sched=(3, 4, 4, 4, 4), pf_code=True,
        lad=((3, 3, 3, 1, 0), (2, 2, 2, 2, 2)), exp=None, rot=True, ekv=1, lpoll="nt", touch=0, npro=13, ysep=True,
        wosched=((5, range(0, 4)), (6, range(4, 12)), (7, range(12, 16)))):
    a = Asm()
    NST = 40
    def stamp(i, wave=0, cyc=False, reg=None):
        if not stamps: return
        L = a.label("Lst")
        a(f"s_cmp_lg_u32 s{S_WAVE}, {wave}\ns_cbranch_scc1 {L}")
        if reg is None:
            a(f"""{"s_memtime" if cyc else "s_memrealtime"} s[{S_ST}:{S_ST+1}]
            s_waitcnt lgkmcnt(0)""")
            reg = S_ST
        a(f"""v_mov_b32 v22, s{reg}
        v_mov_b32 v23, s{reg+1}
        v_mov_b32 v21, 0
        s_mov_b64 exec, 1
        global_store_dwordx2 v21, v[22:23], s[{S_STB}:{S_STB+1}] offset:{i*8}
        s_mov_b64 exec, -1
        {L}:""")

    def S(kt, qt): return V_S + (kt * 3 + qt) * 4
    def Q(qt, ks): return V_Q + (qt * 4 + ks) * 4
    def O(dt, qt): return V_O + (dt * 3 + qt) * 4
    def NM(qt): return V_NM + qt * 4
    def P(qt): return V_P + qt * 4
    def F(i): return V_F + i * 4
    t0, t1, t2 = V_X0 + 2, V_X0 + 3, V_X0 + 4
    V_DWQ, V_DX = V_X0, V_X0 + 1

    a.begin_kernel(MAIN, 256, 512, 163840, listed=False)
    a(f"""s_cmp_ge_u32 s2, 256
    s_cbranch_scc1 L_end
    s_load_dwordx16 s[{S_PTR}:{S_PTR+15}], s[0:1], 0
    s_memrealtime s[{S_NONCE}:{S_NONCE+1}]
    v_lshrrev_b32 v{t0}, 6, v0
    v_and_b32 v{V_LANE}, 63, v0
    v_readfirstlane_b32 s{S_WAVE}, v{t0}
    v_and_b32 v{V_Q16}, 15, v0
    v_bfe_u32 v{V_G}, v0, 4, 2
    v_lshlrev_b32 v{V_L16}, 4, v{V_LANE}
    s_and_b32 s{S_HKV}, s2, 7
    s_lshr_b32 s{S_B}, s2, 5
    s_bfe_u32 s{S_S}, s2, 0x20003
    s_and_b32 s{S_HH}, s{S_WAVE}, 3
    s_lshr_b32 s{S_P}, s{S_WAVE}, 2
    s_lshl_b32 s{S_M0B}, s{S_WAVE}, 10""")
    a(f"""s_lshr_b32 s{S_T2}, s{S_HH}, 1
    s_xor_b32 s{S_T3}, s{S_HH}, s{S_T2}
    s_and_b32 s{S_T3}, s{S_T3}, 1
    s_lshl_b32 s{S_T3}, s{S_T3}, 1
    s_or_b32 s{S_T3}, s{S_T3}, s{S_T2}
    v_and_b32 v{t0}, 3, v{V_LANE}
    v_xor_b32 v{t0}, s{S_T3}, v{t0}
    v_lshlrev_b32 v{t0}, 4, v{t0}
    v_lshl_add_u32 v{t0}, v{V_G}, 6, v{t0}
    v_bfe_u32 v{t1}, v{V_LANE}, 2, 2
    v_lshl_add_u32 v{V_DK}, v{t1}, 8, v{t0}
    v_add_u32 v{V_DK}, s{S_M0B}, v{V_DK}
    v_lshl_add_u32 v{V_DX}, v{t1}, 10, v{t0}
    s_lshl_b32 s{S_T2}, s{S_HH}, 12
    v_add_u32 v{V_DX}, s{S_T2}, v{V_DX}""")
    a(f"""v_bfe_u32 v{t1}, v{V_LANE}, 2, 3
    v_and_b32 v{t2}, 1, v{V_G}
    v_lshlrev_b32 v{t2}, 1, v{t2}
    v_and_b32 v{t0}, 3, v{V_LANE}
    v_xor_b32 v{t0}, v{t0}, v{t2}
    v_lshlrev_b32 v{t0}, 4, v{t0}
    v_lshrrev_b32 v{t2}, 5, v{V_LANE}
    v_lshl_add_u32 v{t0}, v{t2}, 6, v{t0}
    s_and_b32 s{S_T2}, s{S_WAVE}, 1
    s_lshl_b32 s{S_T2}, s{S_T2}, 7
    v_add_u32 v{t0}, s{S_T2}, v{t0}
    s_lshr_b32 s{S_T2}, s{S_WAVE}, 1
    s_lshl_b32 s{S_T3}, s{S_T2}, 3
    v_add_u32 v{t2}, s{S_T3}, v{t1}
    v_lshl_add_u32 v{V_DV}, v{t2}, 8, v{t0}
    v_lshl_add_u32 v{V_X0+5}, v{t2}, 10, v{t0}""")
    V_DWO = V_X0 + 5
    a(f"""s_and_b32 s{S_T3}, s{S_T2}, 1
    s_lshl_b32 s{S_T3}, s{S_T3}, 4
    s_lshr_b32 s{S_T2}, s{S_T2}, 1
    s_lshl_b32 s{S_T2}, s{S_T2}, 2
    s_add_u32 s{S_T3}, s{S_T3}, s{S_T2}
    v_lshrrev_b32 v{t2}, 2, v{t1}
    v_and_b32 v{t1}, 3, v{t1}
    v_lshl_add_u32 v{t1}, v{t2}, 3, v{t1}
    v_add_u32 v{t1}, s{S_T3}, v{t1}
    v_lshl_add_u32 v{V_DWQ}, v{t1}, 13, v{t0}
    s_lshl_b32 s{S_WQB}, s{S_HKV}, 2
    s_add_u32 s{S_WQB}, s{S_WQB}, s{S_S}
    s_lshl_b32 s{S_WQB}, s{S_WQB}, 8
    s_mul_i32 s{S_XB}, s{S_B}, {48*1024}
    s_waitcnt lgkmcnt(0)""")
    if exp and "samehead" in exp:
        a(f"s_mov_b32 s{S_WQB}, 0")
    if exp and "sameb" in exp:
        a(f"s_mov_b32 s{S_XB}, 0")
    a.srd(S_WQ, S_PTR + 6, 512 * 4096 * 2)
    a.srd(S_X, S_PTR + 0, 8 * 48 * 512 * 2)
    a.srd(S_WS, S_PTR + 14, WS_BYTES)
    a(f"""v_mov_b32 v{t0}, 0
    v_lshlrev_b32 v{t1}, 2, v{V_LANE}
    v_add_u32 v{t1}, {MISC}, v{t1}
    ds_write_b32 v{t1}, v{t0}""")
    a(f"s_cmp_lg_u32 s{S_P}, 0\ns_cbranch_scc1 L_role1")

    def setup2():
        a.srd(S_K, S_PTR + 2, 0x2000000)
        a.srd(S_V, S_PTR + 4, 0x2000000)
        a.srd(S_WO, S_PTR + 8, 4096 * 512 * 2)
        a.srd(S_OUT, S_PTR + 10, 8 * 48 * 512 * 2)
        a(f"""s_lshl_b32 s{S_KVB}, s{S_B}, 3
        s_add_u32 s{S_KVB}, s{S_KVB}, s{S_HKV}
        s_lshl_b32 s{S_KVB}, s{S_KVB}, 19
        s_lshl_b32 s{S_T2}, s{S_S}, 17
        s_add_u32 s{S_KVB}, s{S_KVB}, s{S_T2}""")
        a(f"""v_lshrrev_b32 v{t0}, 2, v{V_Q16}
        v_lshrrev_b32 v{t1}, 1, v{t0}
        v_xor_b32 v{t2}, v{t0}, v{t1}
        v_and_b32 v{t2}, 1, v{t2}
        v_lshl_or_b32 v{t1}, v{t2}, 1, v{t1}
        v_xor_b32 v{t1}, v{t1}, v{V_G}
        v_lshlrev_b32 v{t0}, 10, v{t0}
        v_lshl_add_u32 v{t0}, v{t1}, 4, v{t0}
        v_and_b32 v{t1}, 3, v{V_Q16}
        v_lshl_add_u32 v{V_KA}, v{t1}, 6, v{t0}""")
        a(f"""v_lshrrev_b32 v{t0}, 5, v{V_LANE}
        v_lshlrev_b32 v{t0}, 11, v{t0}
        v_bfe_u32 v{t1}, v{V_LANE}, 2, 3
        v_lshl_add_u32 v{t0}, v{t1}, 6, v{t0}
        v_and_b32 v{t1}, 1, v{V_G}
        v_lshl_add_u32 v{t0}, v{t1}, 5, v{t0}
        v_and_b32 v{t1}, 3, v{V_LANE}
        v_lshl_add_u32 v{V_VA0}, v{t1}, 3, v{t0}
        v_xor_b32 v{V_VA1}, 32, v{V_VA0}
        s_mov_b32 s{S_THR}, {f32bits(thr):#x}
        s_mov_b32 s{S_C}, {f32bits(CSCALE):#x}""")
        L = a.label("Lpc")
        a(f"s_getpc_b64 s[{S_PC}:{S_PC+1}]\n{L}:")
        for qt in range(3):
            a(f"""s_add_u32 s{S_SUB+2*qt}, s{S_PC}, L_rescale{qt}-{L}
            s_addc_u32 s{S_SUB+2*qt+1}, s{S_PC+1}, 0""")
        a(f"""s_lshl_b32 s{S_WOB}, s{S_HKV}, 19
        s_lshl_b32 s{S_T2}, s{S_S}, 8
        s_add_u32 s{S_WOB}, s{S_WOB}, s{S_T2}""")
        if stamps:
            a(f"""s_mul_i32 s{S_T2}, s2, {NST*8}
            s_add_u32 s{S_STB}, s{S_PTR+14}, {STAMP:#x}
            s_addc_u32 s{S_STB+1}, s{S_PTR+15}, 0
            s_add_u32 s{S_STB}, s{S_STB}, s{S_T2}
            s_addc_u32 s{S_STB+1}, s{S_STB+1}, 0""")

    def dma(vm, tag, lds_off, srd, vo, sbase, soff, pol):
        a(f"s_add_u32 s{S_T2}, s{S_M0B}, {lds_off & 0xffffffff:#x}")
        a(f"s_mov_b32 m0, s{S_T2}")
        a(f"s_add_u32 s{S_T3}, s{sbase}, {soff:#x}")
        a(f"buffer_load_dwordx4 v{vo}, s[{srd}:{srd+3}], s{S_T3} offen {pol} lds")
        vm.issue(tag)
    def dma_piece(vm, n, both=False):
        t, isv = n >> 1, n & 1
        slot = slot_of(t) + isv * 8192
        srd, vo, vo2 = (S_V, V_DV, V_L + 1) if isv else (S_K, V_DK, V_L)
        dma(vm, ("kv", n), slot, srd, vo, S_KVB, t * 8192, kvpol)
        if both:
            dma(vm, ("kv", n), slot - 4096, srd, vo2, S_KVB, t * 8192, kvpol)
    def dma_wo(vm, n):
        k, chf = n >> 1, n & 1
        dma(vm, ("wo", n), WOSLOT[k] * SLOT + chf * 8192, S_WO, V_DWO, S_WOB, n * 32768, wpol)

    def touch_ld(vm, n):
        rec, base, nl = ((OREC, OX, 52), (3072, YX, 24))[n]
        a(f"""v_lshlrev_b32 v{V_X0+4}, 7, v{V_LANE}
        s_lshl_b32 s{S_T2}, s2, 3
        s_add_u32 s{S_T2}, s{S_T2}, s{S_WAVE}
        s_mul_i32 s{S_T3}, s{S_T2}, {rec}
        s_add_u32 s{S_T3}, s{S_T3}, {base}
        s_bfm_b64 exec, {nl}, 0
        buffer_load_dword v{V_DK}, v{V_X0+4}, s[{S_WS}:{S_WS+3}], s{S_T3} offen
        s_mov_b64 exec, -1
        s_nop 3""")
        vm.issue(("pt", n))

    def xlane(op, x, ta, tb):
        a(f"""v_mov_b32 v{ta}, v{x}
        v_mov_b32 v{tb}, v{x}
        s_nop 1
        v_permlane16_swap_b32 v{ta}, v{tb}
        s_nop 1
        {op} v{ta}, v{ta}, v{tb}
        v_mov_b32 v{tb}, v{ta}
        s_nop 1
        v_permlane32_swap_b32 v{ta}, v{tb}
        s_nop 1
        {op} v{x}, v{ta}, v{tb}""")

    def k_read(idx):
        kt, ks = idx >> 2, idx & 3
        return f"ds_read_b128 {vr(F(idx),4)}, v{V_KA} offset:{kt*4096 + ks*256}"
    def v_read(dt, j2):
        ad = V_VA1 if (dt & 1) else V_VA0
        return f"ds_read_b64_tr_b16 {vr(F(dt)+2*j2,2)}, v{ad} offset:{8192 + j2*4096 + (dt>>2)*1024 + ((dt>>1)&1)*512}"
    def qk_mfma(idx, qt, first):
        kt, ks = idx >> 2, idx & 3
        c = ("0" if first else vr(NM(qt), 4)) if ks == 0 else vr(S(kt, qt), 4)
        return f"v_mfma_f32_16x16x32_bf16 {vr(S(kt,qt),4)}, {vr(F(idx),4)}, {vr(Q(qt,ks),4)}, {c}"
    def pv_mfma(dt, qt, first):
        c = "0" if first else vr(O(dt, qt), 4)
        return f"v_mfma_f32_16x16x32_bf16 {vr(O(dt,qt),4)}, {vr(F(dt),4)}, {vr(P(qt),4)}, {c}"
    def sm_ops(qt, check):
        T, u = V_T, V_U + qt
        ex = [f"v_exp_f32 v{T+kt*4+i}, v{S(kt,qt)+i}" for kt in range(2) for i in range(4)]
        ops = ex[0:4] + [f"v_add_f32 v{u}, v{T}, v{T+1}", f"v_cvt_pk_bf16_f32 v{P(qt)}, v{T}, v{T+1}",
                         f"v_add_f32 v{u}, v{u}, v{T+2}"] + ex[4:6] + \
              [f"v_cvt_pk_bf16_f32 v{P(qt)+1}, v{T+2}, v{T+3}", f"v_add_f32 v{u}, v{u}, v{T+3}"] + ex[6:8] + \
              [f"v_add_f32 v{u}, v{u}, v{T+4}", f"v_cvt_pk_bf16_f32 v{P(qt)+2}, v{T+4}, v{T+5}",
               f"v_add_f32 v{u}, v{u}, v{T+5}", f"v_add_f32 v{u}, v{u}, v{T+6}",
               f"v_cvt_pk_bf16_f32 v{P(qt)+3}, v{T+6}, v{T+7}", f"v_add_f32 v{u}, v{u}, v{T+7}"]
        if check:
            L = a.label("Lok")
            ops.append(f"""v_cmp_lt_f32 vcc, s{S_THR}, v{u}
            s_cbranch_vccz {L}
            s_swappc_b64 s[{S_RET}:{S_RET+1}], s[{S_SUB+2*qt}:{S_SUB+2*qt+1}]
            {L}:""")
        ops.append(f"v_add_f32 v{V_L+qt}, v{V_L+qt}, v{u}")
        return ops
    def tile_max(qt, d):
        s0, s1 = S(0, qt), S(1, qt)
        a(f"""v_max3_f32 v{d}, v{s0}, v{s0+1}, v{s0+2}
        v_max3_f32 v{d}, v{d}, v{s0+3}, v{s1}
        v_max3_f32 v{d}, v{d}, v{s1+1}, v{s1+2}
        v_max_f32 v{d}, v{d}, v{s1+3}""")
        xlane("v_max_f32", d, V_T + 6, V_T + 7)
    def init_max(qt):
        d = V_T
        tile_max(qt, d)
        for i in range(4):
            a(f"v_sub_f32 v{NM(qt)+i}, 0, v{d}")
        for kt in range(2):
            for i in range(4):
                a(f"v_sub_f32 v{S(kt,qt)+i}, v{S(kt,qt)+i}, v{d}")
        a(f"v_mov_b32 v{V_L+qt}, 0")
    def interleave(mf, fill, lead=0):
        nm = len(mf); slots = nm - lead; k = 0
        for i, m in enumerate(mf):
            a(m)
            if i >= lead:
                tgt = (len(fill) * (i - lead + 1) + slots - 1) // slots
                while k < tgt:
                    a(fill[k]); k += 1
        while k < len(fill):
            a(fill[k]); k += 1
    def capture(fn):
        sv = a.lines; a.lines = []
        fn()
        out = "\n".join(l.strip() for l in a.lines); a.lines = sv
        return out

    NPRO = npro
    plan = {}
    nxt = NPRO
    for r, c in enumerate(sched):
        plan[r] = [("kv", x) for x in range(nxt, min(nxt + c, 32))]; nxt += c
    assert nxt >= 32
    for r, lst in plan.items():
        for _, pc in lst:
            t = pc >> 1
            assert t < 10 or (t - 10) // 2 < r, (r, pc)
    if touch & 1:
        plan.setdefault(7, []); plan[7] += [("pt", 0)]
    for r, lst in wosched:
        plan.setdefault(r, [])
        plan[r] += [("wo", x) for x in lst]
    if touch & 2:
        plan[7] += [("pt", 1)]

    for p in range(2):
        vm = VM(a)
        a(f"L_role{p}:")
        n = V_T
        a.srd(S_DBG, S_PTR + 12, 256)
        a(f"""s_lshl_b32 s{S_T2}, s{S_B}, 3
        v_mov_b32 v{n+4}, s{S_T2}""")
        if p == 1:
            a(f"""s_and_b32 s{S_T2}, s2, 31
            s_lshl_b32 s{S_T2}, s{S_T2}, 3
            s_add_u32 s{S_T2}, s{S_T2}, s{S_WAVE}
            s_cmp_lg_u32 s{S_T2}, 4
            s_cbranch_scc1 L_nonce_skip
            s_or_b32 s{S_NONCE}, s{S_NONCE}, 1
            v_mov_b32 v{n}, s{S_NONCE}
            v_mov_b32 v{n+1}, s{S_NONCE+1}
            s_mov_b64 exec, 1
            buffer_store_dwordx2 {vr(n,2)}, v{n+4}, s[{S_DBG}:{S_DBG+3}], 0 offen sc1
            s_mov_b64 exec, -1
            L_nonce_skip:""")
        S_RW, S_RX = S_TAG, S_TAG + 1
        def kg_dyn(c, dst, shift, base):
            a(f"""s_add_u32 s{dst}, s{S_TAG+2}, {c}
            s_and_b32 s{dst}, s{dst}, 3
            s_lshl_b32 s{dst}, s{dst}, {shift}
            s_add_u32 s{dst}, s{dst}, s{base}""")
        a(f"s_add_u32 s{S_TAG+2}, s{S_B}, s{S_S}" if rot else f"s_mov_b32 s{S_TAG+2}, 0")
        def dma_x(rho, c):
            tau = 2 * rho + p
            kg, qt = tau // 3, tau % 3
            kg_dyn(kg, S_RX, 8, S_XB)
            dma(vm, ("c", c), XB + rho * 8192, S_X, V_DX, S_RX, qt * 16384, wpol)
        def dma_wq(t, c):
            if t % 4 == 0 or t == 13:
                kg_dyn(t >> 2, S_RW, 20, S_WQB)
            dma(vm, ("c", c), wq_lds(t), S_WQ, V_DWQ, S_RW, (t & 3) * 32 * 8192, wpol)
        QISS = {
            -1: lambda: ([dma_x(0, 0), dma_x(1, 0)] + [dma_wq(t, 0) for t in range(0, 4)] + [dma_x(2, 1)] + [dma_wq(t, 1) for t in range(4, 8)]),
            0: lambda: ([dma_x(3, 2), dma_x(4, 2)] + [dma_wq(t, 2) for t in range(8, 12)]),
            1: lambda: ([dma_x(5, 3)] + [dma_wq(t, 3) for t in range(12, 16)]),
        }
        QISS[-1]()
        setup2()
        if p == 1 and pf_code:
            a(f"""s_cmp_lg_u32 s{S_WAVE}, 5
            s_cbranch_scc1 L_pfc_skip
            s_getpc_b64 s[{S_ACC}:{S_ACC+1}]
            L_pfc:
            s_sub_u32 s{S_ACC}, s{S_ACC}, L_pfc-{MAIN}
            s_subb_u32 s{S_ACC+1}, s{S_ACC+1}, 0
            v_lshlrev_b32 v{t0}, 7, v{V_LANE}
            PFC_LOADS
            L_pfc_skip:""")
        wa0, wa1, xa = V_U, V_U + 1, V_U + 2
        a(f"""s_and_b32 s{S_T2}, s{S_WAVE}, 1
        s_lshl_b32 s{S_T2}, s{S_T2}, 5
        v_xor_b32 v{wa0}, s{S_T2}, v{V_VA0}
        s_lshr_b32 s{S_T2}, s{S_WAVE}, 1
        s_lshl_b32 s{S_T2}, s{S_T2}, 9
        v_add_u32 v{wa0}, s{S_T2}, v{wa0}
        v_add_u32 v{wa1}, 0x10000, v{wa0}
        v_add_u32 v{xa}, {XB}, v{V_KA}""")
        if p == 1:
            a(f"v_subrev_u32 v{V_L}, 4096, v{V_DK}\nv_subrev_u32 v{V_L+1}, 4096, v{V_DV}")
        if p == 0:
            stamp(0, 0, reg=S_NONCE); stamp(9)
        QA = 32
        FR = 64
        for c in range(4):
            vm.wait(("c", c))
            if c == 0: a("s_waitcnt lgkmcnt(0)")
            if c == 3 and p == 0:
                a(f"""s_cmp_lg_u32 s{S_WAVE}, 0
                s_cbranch_scc1 L_nonce_skip2
                s_mov_b32 s{S_CNT}, 0
                L_nonce_retry:
                s_waitcnt vmcnt(0)
                v_readfirstlane_b32 s{S_T2}, v{n}
                s_add_u32 s{S_CNT}, s{S_CNT}, 1
                s_cmp_lg_u32 s{S_T2}, 0
                s_cbranch_scc1 L_nonce_ok
                s_cmp_gt_u32 s{S_CNT}, 0x10000
                s_cbranch_scc1 L_nonce_ok
                buffer_load_dwordx2 {vr(n,2)}, v{n+4}, s[{S_DBG}:{S_DBG+3}], 0 offen sc1
                s_branch L_nonce_retry
                L_nonce_ok:
                v_mov_b32 v{n+2}, {MISC}
                ds_write_b64 v{n+2}, {vr(n,2)}
                s_waitcnt lgkmcnt(0)
                L_nonce_skip2:""")
            a("s_barrier")
            if p == 0: stamp(12 + c)
            for k in range(4):
                t = 4 * c + k
                off = wq_lds(t)
                ad = wa1 if off >= 65536 else wa0
                for j2 in range(2):
                    a(f"ds_read_b64_tr_b16 {vr(FR+k*16+2*j2,2)}, v{ad} offset:{(off & 0xffff) + j2*4096}")
                for qt in range(3):
                    a(f"ds_read_b128 {vr(FR+k*16+4+qt*4,4)}, v{xa} offset:{(c*3+qt)*4096 + k*256}")
                if k == 2:
                    if c in QISS: QISS[c]()
                    if c == 1 and p == 1 and (touch & 4):
                        a(f"""v_lshlrev_b32 v61, 7, v{V_LANE}
                        s_mul_i32 s{S_T2}, s2, {QSTR}
                        s_mul_i32 s{S_T3}, s{S_HH}, 3200
                        s_add_u32 s{S_T2}, s{S_T2}, s{S_T3}
                        s_bfm_b64 exec, 25, 0
                        buffer_load_dword v31, v61, s[{S_WS}:{S_WS+3}], s{S_T2} offen
                        s_mov_b64 exec, -1""")
                        vm.issue("pt")
                    if c == 1:
                        if p == 0:
                            a(f"""s_cmp_lg_u32 s{S_WAVE}, 0
                            s_cbranch_scc1 L_nonce_skip1
                            buffer_load_dwordx2 {vr(n,2)}, v{n+4}, s[{S_DBG}:{S_DBG+3}], 0 offen sc1
                            L_nonce_skip1:""")
                    if p == 1 and c >= 2 and not (exp and "nokv" in exp):
                        for pc in range(ekv * (c - 2), ekv * (c - 2) + ekv): dma_piece(vm, pc, True)
            if c == 3:
                a(f"v_mov_b32 v{V_T+2}, {MISC}\nds_read_b64 {vr(V_T,2)}, v{V_T+2}")
            extra = 1 if c == 3 else 0
            for k in range(4):
                a(f"s_waitcnt lgkmcnt({min(15, 15 - 5*k + extra)})")
                for qt in range(3):
                    cc = "0" if (c == 0 and k == 0) else vr(QA + qt * 4, 4)
                    a(f"v_mfma_f32_16x16x32_bf16 {vr(QA+qt*4,4)}, {vr(FR+k*16,4)}, {vr(FR+k*16+4+qt*4,4)}, {cc}")
        G = 48
        a(f"""s_and_b32 s{S_T2}, s{S_WAVE}, 1
        s_lshl_b32 s{S_T2}, s{S_T2}, 9
        s_lshr_b32 s{S_T3}, s{S_WAVE}, 1
        s_lshl_b32 s{S_T3}, s{S_T3}, 10
        s_add_u32 s{S_T2}, s{S_T2}, s{S_T3}
        s_add_u32 s{S_T2}, s{S_T2}, {SCR}
        v_lshrrev_b32 v{t0}, 1, v{V_G}
        v_lshlrev_b32 v{t0}, 8, v{t0}
        v_lshl_add_u32 v{t0}, v{V_Q16}, 4, v{t0}
        v_and_b32 v{t1}, 1, v{V_G}
        v_lshl_add_u32 v{t0}, v{t1}, 3, v{t0}
        v_add_u32 v{t0}, s{S_T2}, v{t0}
        s_getreg_b32 s{S_XCC}, hwreg(HW_REG_XCC_ID)
        s_and_b32 s{S_XCC}, s{S_XCC}, 15""")
        if exp and "fakexcc" in exp:
            a(f"s_lshr_b32 s{S_XCC}, s2, 3")
        for qt in range(3):
            for i in range(4):
                a(f"v_mul_f32 v{QA+qt*4+i}, s{S_C}, v{QA+qt*4+i}")
            g = G + qt * 2
            a(f"""v_cvt_pk_bf16_f32 v{g}, v{QA+qt*4}, v{QA+qt*4+1}
            v_cvt_pk_bf16_f32 v{g+1}, v{QA+qt*4+2}, v{QA+qt*4+3}
            ds_write_b64 v{t0}, {vr(g,2)} offset:{qt*4096}""")
        a(f"""s_waitcnt lgkmcnt(0)
        s_barrier
        v_readfirstlane_b32 s{S_NONCE}, v{V_T}
        v_readfirstlane_b32 s{S_NONCE+1}, v{V_T+1}""")
        if p == 0: stamp(8)
        if exp and "stopq" in exp:
            a("s_waitcnt vmcnt(0)\ns_endpgm")
        for x in (V_KA, V_VA0, V_VA1):
            a(f"v_add_u32 v{x}, {slot_of(p)}, v{x}")
        qst = V_X0 + 1
        a(f"""s_sub_u32 s{S_T0}, s{S_HH}, s{S_S}
        s_and_b32 s{S_T0}, s{S_T0}, 3
        s_mul_i32 s{S_T0}, s{S_T0}, 12288
        s_add_u32 s{S_T0}, s{S_T0}, {SCR}
        v_add_u32 v{qst}, s{S_T0}, v{V_L16}""")
        if p == 0:
            sa = V_X0
            FL = 60
            a(f"""s_mul_i32 s{S_T4}, s{S_HH}, 3072
            s_add_u32 s{S_T1}, s{S_T4}, {SCR}
            v_add_u32 v{t0}, s{S_T1}, v{V_L16}""")
            for i in range(3):
                a(f"ds_read_b128 {vr(G+i*4,4)}, v{t0} offset:{i*1024}")
            a(f"""s_mul_i32 s{S_T0}, s2, {QSTR}
            s_add_u32 s{S_T1}, s{S_T0}, s{S_T4}
            s_lshl_b32 s{S_T2}, s{S_HH}, 7
            s_add_u32 s{S_T2}, s{S_T2}, s{S_T0}
            s_add_u32 s{S_T2}, s{S_T2}, {QREC}
            v_mov_b32 v{FL}, v{V_T}
            v_mov_b32 v{FL+1}, v{V_T+1}
            v_mov_b32 v{FL+2}, s{S_XCC}
            v_mov_b32 v{FL+3}, 0
            v_bfe_u32 v{sa}, v{V_LANE}, 2, 2
            v_mul_u32_u24 v{sa}, {8*QSTR}, v{sa}
            v_and_b32 v{t1}, 3, v{V_LANE}
            v_lshl_add_u32 v{sa}, v{t1}, 7, v{sa}
            s_mov_b32 s{S_T3}, {QB - QX:#x}
            v_mul_lo_u32 v{t1}, v{V_G}, s{S_T3}
            v_add_u32 v{sa}, v{sa}, v{t1}
            s_andn2_b32 s{S_T0}, s2, 24
            s_mul_i32 s{S_T0}, s{S_T0}, {QSTR}
            s_add_u32 s{S_T3}, s{S_T0}, {QREC}
            s_waitcnt lgkmcnt(0)""")
            def q_publish(pol):
                for i in range(3):
                    a(f"buffer_store_dwordx4 {vr(G+i*4,4)}, v{V_L16}, s[{S_WS}:{S_WS+3}], s{S_T1} offen offset:{i*1024} {pol}")
                a(f"""s_waitcnt vmcnt(0)
                s_mov_b64 exec, 1
                buffer_store_dwordx4 {vr(FL,4)}, v{V_L16}, s[{S_WS}:{S_WS+3}], s{S_T2} offen {pol}""")
            if not (exp and "noA" in exp):
                q_publish("")
            a("s_mov_b64 exec, -1")
            stamp(1)
            a(f"""s_mov_b32 s{S_CNT}, 0
            s_mov_b64 exec, 0xffff
            L_qs1:
            buffer_load_dwordx4 {vr(V_T+4,4)}, v{sa}, s[{S_WS}:{S_WS+3}], s{S_T3} offen {lpoll}
            s_add_u32 s{S_CNT}, s{S_CNT}, 1
            s_waitcnt vmcnt(0)
            v_cmp_eq_u64 vcc, s[{S_NONCE}:{S_NONCE+1}], {vr(V_T+4,2)}
            v_cmp_eq_u32 s[{S_ACC}:{S_ACC+1}], s{S_XCC}, v{V_T+6}
            s_andn2_b32 s{S_ACC+1}, vcc_lo, s{S_ACC}
            s_cbranch_scc1 L_qremote
            s_cmp_eq_u32 vcc_lo, 0xffff
            s_cbranch_scc1 L_qlocal
            s_cmp_lt_u32 s{S_CNT}, 10
            s_cbranch_scc1 L_qs1
            L_qremote:
            s_mov_b64 exec, -1
            s_add_u32 s{S_T1}, s{S_T1}, {QB - QX:#x}
            s_add_u32 s{S_T2}, s{S_T2}, {QB - QX:#x}""")
            q_publish("sc1")
            a(f"""s_mov_b64 exec, 0xffffffff
            L_qs2:
            buffer_load_dwordx4 {vr(V_T+4,4)}, v{sa}, s[{S_WS}:{S_WS+3}], s{S_T3} offen sc1
            s_add_u32 s{S_CNT}, s{S_CNT}, 1
            s_waitcnt vmcnt(0)
            v_cmp_eq_u64 vcc, s[{S_NONCE}:{S_NONCE+1}], {vr(V_T+4,2)}
            v_cmp_eq_u32 s[{S_ACC}:{S_ACC+1}], s{S_XCC}, v{V_T+6}
            s_and_b32 s{S_ACC}, s{S_ACC}, vcc_lo
            s_and_b32 s{S_ACC}, s{S_ACC}, 0xffff
            s_cmp_eq_u32 s{S_ACC}, 0xffff
            s_cbranch_scc1 L_qlocal
            s_lshr_b32 s{S_ACC}, vcc_lo, 16
            s_cmp_eq_u32 s{S_ACC}, 0xffff
            s_cbranch_scc1 L_qfar
            s_cmp_lt_u32 s{S_CNT}, 0x8000
            s_cbranch_scc1 L_qs2
            L_qfar:
            s_mov_b32 s{S_LOCAL}, 1
            s_add_u32 s{S_T0}, s{S_T0}, {QB - QX:#x}
            s_branch L_qgo
            L_qlocal:
            s_mov_b32 s{S_LOCAL}, 3
            L_qgo:
            s_mov_b64 exec, -1
            v_mov_b32 v{V_T+4}, s{S_LOCAL}
            s_lshl_b32 s{S_T2}, s{S_HH}, 2
            s_add_u32 s{S_T2}, s{S_T2}, {MISC2}
            v_mov_b32 v{V_T+5}, s{S_T2}
            ds_write_b32 v{V_T+5}, v{V_T+4}
            s_add_u32 s{S_T0}, s{S_T0}, s{S_T4}
            s_add_u32 s{S_T4}, s{S_T4}, {SCR}""")
            if stamps:
                a(f"s_mov_b32 s{S_ACC}, s{S_CNT}\ns_mov_b32 s{S_ACC+1}, 0")
                stamp(17, 1, reg=S_ACC); stamp(16, 1)
            a(f"s_cmp_eq_u32 s{S_LOCAL}, 3\ns_cbranch_scc1 L_qld_local")
            for fl in ("sc1", ""):
                if not fl: a("L_qld_local:")
                for j in range(1, 4):
                    a(f"""s_add_u32 s{S_T1}, s{S_S}, {j}
                    s_and_b32 s{S_T1}, s{S_T1}, 3
                    s_mul_i32 s{S_T1}, s{S_T1}, {8*QSTR}
                    s_add_u32 s{S_T2}, s{S_T4}, {j*12288}
                    s_mov_b32 m0, s{S_T2}
                    s_add_u32 s{S_T1}, s{S_T1}, s{S_T0}""")
                    for i in range(3):
                        a(f"buffer_load_dwordx4 v{V_L16}, s[{S_WS}:{S_WS+3}], s{S_T1} offen offset:{i*1024} {fl} lds")
                if fl: a("s_branch L_qld_done")
            a(f"""L_qld_done:
            v_mov_b32 v{V_T+4}, {MISC2}
            s_waitcnt vmcnt(0) lgkmcnt(0)""")
            vm.ops = []
            stamp(28, 1)
            stamp(2)
            a("s_barrier")
            a(f"ds_read_b128 {vr(V_T,4)}, v{V_T+4}")
            for i in range(12):
                a(f"ds_read_b128 {vr(V_Q+i*4,4)}, v{qst} offset:{i*1024}")
            a("s_waitcnt lgkmcnt(0)\ns_barrier")
            for idx in range(8): a(k_read(idx))
        else:
            a(f"v_mov_b32 v{V_T+4}, {MISC2}\ns_mov_b32 s{S_CNT}, 0")
            for pc in range(2 * ekv, NPRO):
                L = a.label("Lgo")
                a(f"""s_cmp_lg_u32 s{S_CNT}, 0
                s_cbranch_scc1 {L}
                ds_read_b128 {vr(V_T,4)}, v{V_T+4}
                s_waitcnt vmcnt({max(depth-2,0)}) lgkmcnt(0)
                v_and_b32 v{V_T}, v{V_T}, v{V_T+1}
                v_and_b32 v{V_T+2}, v{V_T+2}, v{V_T+3}
                v_and_b32 v{V_T}, v{V_T}, v{V_T+2}
                s_nop 0
                v_readfirstlane_b32 s{S_CNT}, v{V_T}
                {L}:""")
                dma_piece(vm, pc, True)
            stamp(19, 4)
            if vm.has(("kv", 3)): vm.wait(("kv", 3))
            a(f"v_mov_b32 v{V_T+4}, {MISC2}")
            a("s_barrier")
            a(f"ds_read_b128 {vr(V_T,4)}, v{V_T+4}")
            for i in range(12):
                a(f"ds_read_b128 {vr(V_Q+i*4,4)}, v{qst} offset:{i*1024}")
            a("s_waitcnt lgkmcnt(0)\ns_barrier")
            for idx in range(8): a(k_read(idx))
        a(f"""v_and_b32 v{V_T}, v{V_T}, v{V_T+1}
        v_and_b32 v{V_T+2}, v{V_T+2}, v{V_T+3}
        v_and_b32 v{V_T}, v{V_T}, v{V_T+2}
        v_lshrrev_b32 v{V_T}, 1, v{V_T}
        s_nop 0
        v_readfirstlane_b32 s{S_LOCAL}, v{V_T}""")
        if exp and "nolocal" in exp:
            a(f"s_mov_b32 s{S_LOCAL}, 0")
        def pr(i):
            if lad: a(f"s_setprio {lad[p][i]}")
        WA = V_Q
        woa0, woa1 = V_X0, V_X0 + 1
        for r in range(8):
            t = 2 * r + p
            first = (r == 0)
            if r > 0:
                need = ("kv", 4 * r + 3) if r < 7 else ("wo", 11)
                if vm.has(need): vm.wait(need)
                if p == 1: stamp(20 + r, 4)
                a("s_barrier")
                if p == 0:
                    stamp(30 + r, 0)
                    if r == 4: stamp(38, 0, True)
                    if r == 7: stamp(39, 0, True)
            pr(0)
            if r > 0 and p == 0:
                for idx in range(8): a(k_read(idx))
            dm = [capture(lambda: {"kv": dma_piece, "wo": dma_wo, "pt": touch_ld}[k](vm, x)) for k, x in plan.get(r, [])]
            h = (len(dm) + 1) // 2
            if p == 1 and r > 0:
                f1 = (r == 1)
                interleave([pv_mfma(dt, 0, f1) for dt in range(8)], dm[:h])
                interleave([pv_mfma(dt, 1, f1) for dt in range(8)], dm[h:])
                for dt in range(8):
                    a(pv_mfma(dt, 2, f1)); a(k_read(dt))
                dm = []
            elif r == 0:
                for d in dm: a(d)
                dm = []
            pr(1)
            for idx in range(8):
                a(f"s_waitcnt lgkmcnt({7-idx})")
                a(qk_mfma(idx, 0, first))
            pr(2)
            if first:
                for idx in range(8): a(qk_mfma(idx, 1, first))
                for idx in range(8):
                    a(qk_mfma(idx, 2, first)); a(v_read(idx, 0)); a(v_read(idx, 1))
                for qt in range(3):
                    init_max(qt)
                    for o in sm_ops(qt, False): a(o)
                smq2 = []
            else:
                interleave([qk_mfma(idx, 1, False) for idx in range(8)], sm_ops(0, True))
                s1 = sm_ops(1, True)
                mf = [qk_mfma(idx, 2, False) + "\n" + v_read(idx, 0) + "\n" + v_read(idx, 1) for idx in range(8)]
                interleave(mf, s1)
                smq2 = sm_ops(2, True)
            if r < 7:
                d = slot_of(t + 2) - slot_of(t)
                adv = [f"v_add_u32 v{x}, {d & 0xffffffff:#x}, v{x}" for x in (V_KA, V_VA0, V_VA1)]
                wor = []
            else:
                adv = [f"""v_subrev_u32 v{woa0}, {slot_of(t)}, v{V_VA0}
                s_and_b32 s{S_T2}, s{S_WAVE}, 1
                s_lshl_b32 s{S_T2}, s{S_T2}, 5
                v_xor_b32 v{woa0}, s{S_T2}, v{woa0}
                s_lshr_b32 s{S_T2}, s{S_WAVE}, 1
                s_lshl_b32 s{S_T2}, s{S_T2}, 9
                s_add_u32 s{S_T2}, s{S_T2}, {2*SLOT}
                v_add_u32 v{woa0}, s{S_T2}, v{woa0}
                v_add_u32 v{woa1}, {4*SLOT}, v{woa0}"""]
                wor = []
                for k in range(12):
                    sl = WOSLOT[k >> 1]
                    ad = woa0 if sl < 6 else woa1
                    off = (sl - 2 if sl < 6 else sl - 6) * SLOT + (k & 1) * 8192
                    for j2 in range(2):
                        wor.append(f"ds_read_b64_tr_b16 {vr(WA+k*4+2*j2,2)}, v{ad} offset:{off + j2*4096}")
            pr(3)
            if p == 0:
                mf = [f"s_waitcnt lgkmcnt({14-2*dt})\n" + pv_mfma(dt, 0, first) for dt in range(8)]
                interleave(mf, smq2, lead=2)
                pr(4)
                interleave([pv_mfma(dt, 1, first) for dt in range(8)], adv + dm[:h] + wor[:12])
                a("s_nop 1")
                interleave([pv_mfma(dt, 2, first) for dt in range(8)], dm[h:] + wor[12:])
            else:
                for o in adv: a(o)
                a("s_nop 3")
                interleave(smq2, wor) if wor else [a(o) for o in smq2]
                a("s_waitcnt lgkmcnt(0)")
        a("s_waitcnt lgkmcnt(0)\ns_barrier")
        a("s_setprio 0")
        if p == 1:
            for qt in range(3):
                for dt in range(8):
                    a(pv_mfma(dt, qt, False))
        if p == 0: stamp(3)
        for qt in range(3):
            xlane("v_add_f32", V_L + qt, V_T + 6, V_T + 7)
        cw, cr, mw, mr = V_T, V_T + 1, V_T + 2, V_T + 3
        def cb_const(v): return 98304 + v * 12288 if v < 5 else (32768 + (v - 5) * 12288 if v < 7 else 0)
        def cb_addr(sdst, pp):
            c = [cb_const(4 * pp + h_) for h_ in range(4)]
            if pp == 0:
                a(f"s_mul_i32 s{sdst}, s{S_HH}, 12288\ns_add_u32 s{sdst}, s{sdst}, 98304")
            else:
                a(f"""s_mov_b32 s{sdst}, {c[0]}
                s_cmp_eq_u32 s{S_HH}, 1
                s_cselect_b32 s{sdst}, {c[1]}, s{sdst}
                s_cmp_eq_u32 s{S_HH}, 2
                s_cselect_b32 s{sdst}, {c[2]}, s{sdst}
                s_cmp_eq_u32 s{S_HH}, 3
                s_cselect_b32 s{sdst}, {c[3]}, s{sdst}""")
        cb_addr(S_T0, p); cb_addr(S_T1, 1 - p)
        a(f"""v_add_u32 v{cr}, s{S_T1}, v{V_L16}
        v_add_u32 v{cw}, s{S_T0}, v{V_L16}
        s_lshl_b32 s{S_T0}, s{S_WAVE}, 11
        s_add_u32 s{S_T0}, s{S_T0}, {SLOT}
        s_xor_b32 s{S_T1}, s{S_T0}, 0x2000
        v_lshlrev_b32 v{mw}, 2, v{V_LANE}
        v_add_u32 v{mr}, s{S_T1}, v{mw}
        v_add_u32 v{mw}, s{S_T0}, v{mw}""")
        own0, oth0 = 4 * p, 4 * (1 - p)
        for qt in range(3):
            a(f"ds_write_b32 v{mw}, v{NM(qt)} offset:{qt*256}")
            a(f"ds_write_b32 v{mw}, v{V_L+qt} offset:{768+qt*256}")
        for i in range(12):
            a(f"ds_write_b128 v{cw}, {vr(O(oth0,0)+i*4,4)} offset:{i*1024}")
        a("s_waitcnt lgkmcnt(0)\ns_barrier")
        NMo, Lo = V_P, V_P + 3
        for qt in range(3):
            a(f"ds_read_b32 v{NMo+qt}, v{mr} offset:{qt*256}")
            a(f"ds_read_b32 v{Lo+qt}, v{mr} offset:{768+qt*256}")
        for i in range(12):
            a(f"ds_read_b128 {vr(O(oth0,0)+i*4,4)}, v{cr} offset:{i*1024}")
        a("s_waitcnt lgkmcnt(12)")
        FA, FB, LL = 88, 96, 104
        for qt in range(3):
            n_ = V_F + qt
            fa, fb = FA + 2 * qt, FB + 2 * qt
            a(f"""v_min_f32 v{n_}, v{NM(qt)}, v{NMo+qt}
            v_sub_f32 v{fa}, v{n_}, v{NM(qt)}
            v_sub_f32 v{fb}, v{n_}, v{NMo+qt}
            v_exp_f32 v{fa}, v{fa}
            v_exp_f32 v{fb}, v{fb}
            s_nop 0
            v_mul_f32 v{LL+qt}, v{fa}, v{V_L+qt}
            v_fma_f32 v{LL+qt}, v{fb}, v{Lo+qt}, v{LL+qt}
            v_rcp_f32 v{V_F+4}, v{LL+qt}
            v_log_f32 v{LL+qt}, v{LL+qt}
            s_nop 0
            v_mul_f32 v{fa}, v{fa}, v{V_F+4}
            v_mul_f32 v{fb}, v{fb}, v{V_F+4}
            v_sub_f32 v{LL+qt}, v{LL+qt}, v{n_}""")
        a(f"""s_lshl_b32 s{S_T0}, s2, 3
        s_add_u32 s{S_T0}, s{S_T0}, s{S_WAVE}
        s_mul_i32 s{S_T1}, s{S_T0}, {OREC}
        s_add_u32 s{S_T1}, s{S_T1}, {OX}
        s_add_u32 s{S_T2}, s{S_T1}, 6144
        s_mov_b64 exec, 0xffff
        """)
        def st1(txt):
            La, Lb = a.label("Ls"), a.label("Ls")
            a(f"""s_cbranch_scc1 {La}
            {txt} sc1
            s_branch {Lb}
            {La}:
            {txt}
            {Lb}:""")
        a(f"s_cmp_lg_u32 s{S_LOCAL}, 0")
        st1(f"buffer_store_dwordx4 {vr(LL,4)}, v{V_L16}, s[{S_WS}:{S_WS+3}], s{S_T2} offen")
        a("s_mov_b64 exec, -1")
        OF = V_F + 8
        for tl in range(2):
            a(f"s_waitcnt lgkmcnt({6 - 6*tl})")
            for qt in range(3):
                for h2 in range(2):
                    dt = own0 + tl * 2 + h2
                    o = O(dt, qt); x = O(oth0 + tl * 2 + h2, qt)
                    for k in range(2):
                        a(f"v_pk_mul_f32 {vr(o+2*k,2)}, {vr(o+2*k,2)}, {vr(FA+2*qt,2)} op_sel_hi:[1,0]")
                        a(f"v_pk_fma_f32 {vr(o+2*k,2)}, {vr(x+2*k,2)}, {vr(FB+2*qt,2)}, {vr(o+2*k,2)} op_sel_hi:[1,0,1]")
                    d = OF + (tl * 3 + qt) * 4 + h2 * 2
                    a(f"v_cvt_pk_bf16_f32 v{d}, v{o}, v{o+1}")
                    a(f"v_cvt_pk_bf16_f32 v{d+1}, v{o+2}, v{o+3}")
                i = tl * 3 + qt
                if i == 4:
                    a(f"s_add_u32 s{S_T1}, s{S_T1}, 4096\ns_cmp_lg_u32 s{S_LOCAL}, 0")
                st1(f"buffer_store_dwordx4 {vr(OF+i*4,4)}, v{V_L16}, s[{S_WS}:{S_WS+3}], s{S_T1} offen offset:{(i&3)*1024}")
        if p == 0:
            a("s_branch L_tail")
    a("L_tail:")
    woa0 = V_X0
    fa_ = V_X0 + 2
    OF = V_F + 8
    LL = 104
    a(f"""v_mov_b32 v{V_T+2}, s{S_NONCE}
    v_mov_b32 v{V_T+3}, s{S_NONCE+1}
    v_mov_b32 v{V_T+4}, 0
    s_mul_i32 s{S_T1}, s{S_T0}, {OREC}
    s_add_u32 s{S_T1}, s{S_T1}, {OX + 6400}
    s_andn2_b32 s{S_T0}, s{S_T0}, 0xc0
    s_mul_i32 s{S_T0}, s{S_T0}, {OREC}
    s_add_u32 s{S_T0}, s{S_T0}, {OX}
    v_add_u32 v{fa_}, s{S_S}, v{V_LANE}
    v_add_u32 v{fa_}, 1, v{fa_}
    v_and_b32 v{fa_}, 3, v{fa_}
    v_mul_u32_u24 v{fa_}, {64*OREC}, v{fa_}
    s_add_u32 s{S_T3}, s{S_T0}, 6400
    s_mov_b32 s{S_CNT}, 0
    s_cmp_lg_u32 s{S_LOCAL}, 0
    s_waitcnt vmcnt(0)
    s_mov_b64 exec, 1""")
    st1(f"buffer_store_dwordx2 {vr(V_T+2,2)}, v{V_T+4}, s[{S_WS}:{S_WS+3}], s{S_T1} offen")
    a("s_mov_b64 exec, -1")
    stamp(4)
    SP = [S_TAG, S_TAG + 1, S_TAG + 2]
    for j in range(3):
        a(f"""s_add_u32 s{SP[j]}, s{S_S}, {j+1}
        s_and_b32 s{SP[j]}, s{SP[j]}, 3
        s_mul_i32 s{SP[j]}, s{SP[j]}, {64*OREC}
        s_add_u32 s{SP[j]}, s{SP[j]}, s{S_T0}""")
    q16 = V_X0 + 3
    a(f"""v_lshlrev_b32 v{q16}, 4, v{V_Q16}
    v_add_u32 v{q16}, 6144, v{q16}
    s_mov_b64 exec, 7
    L_fpoll:
    s_cmp_lg_u32 s{S_LOCAL}, 0
    s_cbranch_scc1 L_fp_l
    buffer_load_dwordx2 {vr(V_T,2)}, v{fa_}, s[{S_WS}:{S_WS+3}], s{S_T3} offen sc1
    s_branch L_fp_d
    L_fp_l:
    buffer_load_dwordx2 {vr(V_T,2)}, v{fa_}, s[{S_WS}:{S_WS+3}], s{S_T3} offen {lpoll}
    L_fp_d:
    s_add_u32 s{S_CNT}, s{S_CNT}, 1
    s_waitcnt vmcnt(0)
    v_cmp_ne_u64 vcc, s[{S_NONCE}:{S_NONCE+1}], {vr(V_T,2)}
    s_cmp_gt_u32 s{S_CNT}, 0x10000
    s_cbranch_scc1 L_fok
    s_cbranch_vccnz L_fpoll
    L_fok:
    s_mov_b64 exec, -1""")
    stamp(5)
    PL = 32
    PF = 160
    a(f"s_cmp_lg_u32 s{S_LOCAL}, 0\ns_cbranch_scc1 L_old_local")
    for fl in (" sc1", ""):
        if not fl: a("L_old_local:")
        for j in range(3):
            a(f"buffer_load_dwordx4 {vr(PL+j*4,4)}, v{q16}, s[{S_WS}:{S_WS+3}], s{SP[j]} offen{fl}")
        for half in range(2):
            for j in range(3):
                for i3 in range(3):
                    i = half * 3 + i3
                    a(f"buffer_load_dwordx4 {vr(PF+(j*6+i)*4,4)}, v{V_L16}, s[{S_WS}:{S_WS+3}], s{SP[j]} offen offset:{i3*1024}{fl}")
                if half == 0: a(f"s_add_u32 s{SP[j]}, s{SP[j]}, 3072")
        if fl: a("s_branch L_old_done")
    a("L_old_done:")
    a("s_waitcnt vmcnt(18)")
    def W(j, qt): return 232 + (j * 3 + qt) * 2
    for qt in range(3):
        mx = V_T
        w = [LL + qt] + [PL + j * 4 + qt for j in range(3)]
        a(f"""v_max3_f32 v{mx}, v{w[0]}, v{w[1]}, v{w[2]}
        v_max_f32 v{mx}, v{mx}, v{w[3]}""")
        for j in range(4): a(f"v_sub_f32 v{w[j]}, v{w[j]}, v{mx}")
        for j in range(4): a(f"v_exp_f32 v{w[j]}, v{w[j]}")
        a(f"""s_nop 0
        v_add_f32 v{mx}, v{w[0]}, v{w[1]}
        v_add_f32 v{mx+1}, v{w[2]}, v{w[3]}
        v_add_f32 v{mx}, v{mx}, v{mx+1}
        v_rcp_f32 v{mx}, v{mx}
        s_nop 0""")
        for j in range(4): a(f"v_mul_f32 v{W(j,qt)}, v{w[j]}, v{mx}")
    CA = 32
    BFB = 98304
    a(f"""s_mov_b32 s{S_T3}, 0xffff0000
    s_lshl_b32 s{S_T1}, s{S_HH}, 1
    s_add_u32 s{S_T1}, s{S_T1}, s{S_P}
    s_mul_i32 s{S_T1}, s{S_T1}, 6144
    s_add_u32 s{S_T1}, s{S_T1}, {BFB}
    v_add_u32 v{V_X0+2}, s{S_T1}, v{V_L16}
    v_add_u32 v{V_X0+3}, {BFB}, v{V_L16}
    s_barrier""")
    for half in range(2):
        for j in range(4):
            if j > 0:
                a(f"s_waitcnt vmcnt({18 - 9*half - 3*j})")
            for qt in range(3):
                i = half * 3 + qt
                src = OF + i * 4 if j == 0 else PF + ((j - 1) * 6 + i) * 4
                for d in range(4):
                    c0 = CA + qt * 8 + 2 * d
                    tt = V_T + (d & 1) * 2
                    a(f"v_lshlrev_b32 v{tt}, 16, v{src+d}")
                    a(f"v_and_b32 v{tt+1}, s{S_T3}, v{src+d}")
                    if j == 0:
                        a(f"v_pk_mul_f32 {vr(c0,2)}, {vr(tt,2)}, {vr(W(j,qt),2)} op_sel_hi:[1,0]")
                    else:
                        a(f"v_pk_fma_f32 {vr(c0,2)}, {vr(tt,2)}, {vr(W(j,qt),2)}, {vr(c0,2)} op_sel_hi:[1,0,1]")
        for qt in range(3):
            i = half * 3 + qt
            for d in range(4):
                a(f"v_cvt_pk_bf16_f32 v{OF+i*4+d}, v{CA+qt*8+2*d}, v{CA+qt*8+2*d+1}")
            a(f"ds_write_b128 v{V_X0+2}, {vr(OF+i*4,4)} offset:{i*1024}")
    WB = 32
    a("s_waitcnt lgkmcnt(0)")
    for k in range(12, 16):
        for j2 in range(2):
            a(f"ds_read_b64_tr_b16 {vr(WB+(k-12)*4+2*j2,2)}, v{woa0} offset:{(WOSLOT[k>>1]-2)*SLOT + (k&1)*8192 + j2*4096}")
    a("s_barrier")
    stamp(6)
    YA = 88
    NB = 8
    def bset(k): return 160 + (k % NB) * 12
    def breads(k):
        for qt in range(3):
            a(f"ds_read_b128 {vr(bset(k)+qt*4,4)}, v{V_X0+3} offset:{(k*3+qt)*1024}")
    LA = 4
    for k in range(LA): breads(k)
    for k in range(16):
        if k + LA < 16: breads(k + LA)
        a(f"s_waitcnt lgkmcnt({3 * min(LA, 15 - k)})")
        af = V_Q + k * 4 if k < 12 else WB + (k - 12) * 4
        for qt in range(3):
            y = YA + qt * 4
            c = "0" if k == 0 else vr(y, 4)
            a(f"v_mfma_f32_16x16x32_bf16 {vr(y,4)}, {vr(af,4)}, {vr(bset(k)+qt*4,4)}, {c}")
    a(f"""s_and_b32 s{S_TAG}, s{S_NONCE}, 0xfff
    s_bfe_u32 s{S_TAG+1}, s{S_NONCE}, 0xc000c
    s_lshr_b64 s[{S_T0}:{S_T1}], s[{S_NONCE}:{S_NONCE+1}], 24
    s_and_b32 s{S_TAG+2}, s{S_T0}, 0xfff
    s_bfe_u32 s{S_TAG+3}, s{S_T0}, 0xc000c
    v_mov_b32 v{V_T}, 0xfff
    s_lshl_b32 s{S_T0}, s2, 3
    s_add_u32 s{S_T0}, s{S_T0}, s{S_WAVE}
    s_mul_i32 s{S_T0}, s{S_T0}, 3072
    s_add_u32 s{S_T0}, s{S_T0}, {YX}
    s_mul_i32 s{S_T1}, s{S_HH}, 3072
    v_add_u32 v{V_X0+2}, s{S_T1}, v{V_L16}""")
    for i in range(3):
        y = YA + i * 4
        for e in range(4):
            a(f"v_add_u32 v{y+e}, 0x800, v{y+e}")
            a(f"v_bfi_b32 v{y+e}, v{V_T}, s{S_TAG+e}, v{y+e}")
    def ystores(base):
        for i in range(3):
            a(f"buffer_store_dwordx4 {vr(base+i*4,4)}, v{V_L16}, s[{S_WS}:{S_WS+3}], s{S_T0} offen offset:{i*1024} sc1")
    a(f"s_cmp_lg_u32 s{S_P}, 0\ns_cbranch_scc1 L_y1")
    for i in range(3):
        a(f"ds_write_b128 v{V_X0+2}, {vr(YA+i*4,4)} offset:{i*1024}")
    a("s_waitcnt lgkmcnt(0)\ns_barrier\ns_branch L_y2\nL_y1:")
    ystores(YA)
    a("s_barrier")
    for i in range(3):
        a(f"ds_read_b128 {vr(160+i*4,4)}, v{V_X0+2} offset:{i*1024}")
    a(f"s_sub_u32 s{S_T0}, s{S_T0}, {4*3072}\ns_waitcnt lgkmcnt(0)")
    ystores(160)
    a("s_endpgm\nL_y2:")
    stamp(29)
    ys = V_X0
    a(f"""s_cmp_ge_u32 s{S_WAVE}, 3
    s_cbranch_scc1 L_end
    s_andn2_b32 s{S_T0}, s2, 7
    s_lshl_b32 s{S_T0}, s{S_T0}, 3
    s_add_u32 s{S_T0}, s{S_T0}, s{S_HKV}
    s_mul_i32 s{S_T0}, s{S_T0}, 3072
    s_lshl_b32 s{S_T1}, s{S_WAVE}, 10
    s_add_u32 s{S_T0}, s{S_T0}, s{S_T1}
    s_add_u32 s{S_T0}, s{S_T0}, {YX}
    s_mov_b32 s{S_CNT}, 0
    s_mov_b32 s{S_T3}, 0xfffff000
    v_mul_u32_u24 v{ys}, {8*3072}, v{V_LANE}
    v_add_u32 v{ys}, 1008, v{ys}
    s_mov_b64 exec, 0xff
    L_ysent:
    buffer_load_dwordx4 {vr(V_T+4,4)}, v{ys}, s[{S_WS}:{S_WS+3}], s{S_T0} offen sc1
    s_add_u32 s{S_CNT}, s{S_CNT}, 1
    s_waitcnt vmcnt(0)
    v_xor_b32 v{V_T+1}, s{S_TAG}, v{V_T+4}
    v_bitop3_b32 v{V_T+1}, v{V_T+1}, v{V_T+5}, s{S_TAG+1} bitop3:0xf6
    v_bitop3_b32 v{V_T+1}, v{V_T+1}, v{V_T+6}, s{S_TAG+2} bitop3:0xf6
    v_and_b32 v{V_T+1}, v{V_T+1}, v{V_T}
    v_cmp_ne_u32 vcc, 0, v{V_T+1}
    s_cmp_gt_u32 s{S_CNT}, 0x10000
    s_cbranch_scc1 L_ysent_x
    s_cbranch_vccnz L_ysent
    L_ysent_x:
    s_mov_b64 exec, -1
    s_mov_b32 s{S_CNT}, 0
    L_ypoll:
    s_mov_b32 s{S_T1}, s{S_T0}""")
    YR = 160
    for j in range(8):
        a(f"buffer_load_dwordx4 {vr(YR+j*4,4)}, v{V_L16}, s[{S_WS}:{S_WS+3}], s{S_T1} offen sc1")
        if j < 7:
            a(f"s_add_u32 s{S_T1}, s{S_T1}, {8*3072}")
    for e in range(4):
        a(f"v_mov_b32 v{V_T+1+e}, 0")
    SUMR = 112
    for j in range(8):
        if j % 2 == 0:
            a(f"s_waitcnt vmcnt({6 - j})")
        for e in range(4):
            r = YR + j * 4 + e
            a(f"v_bitop3_b32 v{V_T+1+e}, v{V_T+1+e}, v{r}, s{S_TAG+e} bitop3:0xf6")
            if j == 0:
                a(f"v_and_b32 v{SUMR+e}, s{S_T3}, v{r}")
            else:
                a(f"v_and_b32 v{r}, s{S_T3}, v{r}")
                a(f"v_add_f32 v{SUMR+e}, v{SUMR+e}, v{r}")
    a(f"""v_or3_b32 v{V_T+1}, v{V_T+1}, v{V_T+2}, v{V_T+3}
    v_or_b32 v{V_T+1}, v{V_T+1}, v{V_T+4}
    v_and_b32 v{V_T+1}, v{V_T+1}, v{V_T}
    v_cmp_ne_u32 vcc, 0, v{V_T+1}
    s_cbranch_vccz L_yok
    s_add_u32 s{S_CNT}, s{S_CNT}, 1
    s_cmp_lt_u32 s{S_CNT}, 0x10000
    s_cbranch_scc1 L_ypoll
    L_yok:
    v_cvt_pk_bf16_f32 v{V_T+2}, v{SUMR}, v{SUMR+1}
    v_cvt_pk_bf16_f32 v{V_T+3}, v{SUMR+2}, v{SUMR+3}
    v_lshlrev_b32 v{V_X0}, 10, v{V_Q16}
    v_lshl_add_u32 v{V_X0}, v{V_G}, 3, v{V_X0}
    s_mul_i32 s{S_T0}, s{S_B}, {48*1024}
    s_lshl_b32 s{S_T1}, s{S_WAVE}, 14
    s_add_u32 s{S_T0}, s{S_T0}, s{S_T1}
    s_lshl_b32 s{S_T1}, s{S_S}, 8
    s_add_u32 s{S_T0}, s{S_T0}, s{S_T1}
    s_lshl_b32 s{S_T1}, s{S_HKV}, 5
    s_add_u32 s{S_T0}, s{S_T0}, s{S_T1}
    buffer_store_dwordx2 {vr(V_T+2,2)}, v{V_X0}, s[{S_OUT}:{S_OUT+3}], s{S_T0} offen""")
    if stamps: a("s_waitcnt vmcnt(0)")
    stamp(7)
    a("L_end:\ns_endpgm")

    for qt in range(3):
        a(f"L_rescale{qt}:")
        a("s_nop 7")
        d, al = V_T, V_T + 1
        tile_max(qt, d)
        a(f"""v_max_f32 v{d}, 0, v{d}
        v_sub_f32 v{al}, 0, v{d}
        v_exp_f32 v{al}, v{al}""")
        for i in range(4):
            a(f"v_sub_f32 v{NM(qt)+i}, v{NM(qt)+i}, v{d}")
        for kt in range(2):
            for i in range(4):
                a(f"v_sub_f32 v{S(kt,qt)+i}, v{S(kt,qt)+i}, v{d}")
        a(f"v_mul_f32 v{V_L+qt}, v{V_L+qt}, v{al}")
        for dt in range(8):
            for i in range(4):
                a(f"v_mul_f32 v{O(dt,qt)+i}, v{O(dt,qt)+i}, v{al}")
        for o in sm_ops(qt, False)[:-1]:
            a(o)
        a("s_nop 1")
        a(f"s_setpc_b64 s[{S_RET}:{S_RET+1}]")
    a("L_code_end:")
    a(".fill 2048, 4, 0xBF800000")
    a.end_kernel(MAIN, 256, sgpr=102, accum=256)
    hdr = """Fused GQA block (Q-proj + split-K attention over the KV cache + out-proj), one launch.
Generated by gen/attn4.py (hand-written generator).
kernarg: x, k_cache, v_cache, wq, wo, out, debug, ws"""
    txt = a.text(hdr)
    est = 0
    for l in a.lines:
        t = l.strip()
        if not l.startswith("  ") or t.startswith("."): continue
        est += 4 if (t.startswith("s_") and not t.startswith("s_load") and not t.startswith("s_mem")) else 8
    nld = max(1, int(est * 0.9) // 8192)
    pf = []
    for i in range(nld):
        pf.append(f"  global_load_dword v{t1}, v{t0}, s[{S_ACC}:{S_ACC+1}]")
        pf.append(f"  v_add_u32 v{t0}, 0x2000, v{t0}")
    txt = txt.replace("  PFC_LOADS", "\n".join(pf))
    return txt


if __name__ == "__main__":
    import argparse
    ap = argparse.ArgumentParser()
    ap.add_argument("-o", default="standalone__gqa_block_cached__near_ridge.s")
    ap.add_argument("--stamps", action="store_true")
    ap.add_argument("--kvpol", default="nt")
    ap.add_argument("--wpol", default="")
    ap.add_argument("--thr", type=float, default=256.0)
    ap.add_argument("--depth", type=int, default=4)
    ap.add_argument("--sched", default="3,4,4,4,4")
    ap.add_argument("--nopfc", action="store_true")
    ap.add_argument("--nolad", action="store_true")
    ap.add_argument("--exp", default="")
    ap.add_argument("--norot", action="store_true")
    ap.add_argument("--ekv", type=int, default=1)
    ap.add_argument("--lpoll", default="nt")
    ap.add_argument("--touch", type=int, default=4)
    ap.add_argument("--npro", type=int, default=13)
    ap.add_argument("--noysep", action="store_true")
    args = ap.parse_args()
    kw = {}
    if args.nolad: kw["lad"] = None
    if args.exp: kw["exp"] = args.exp.split(",")
    kw["rot"] = not args.norot
    kw["ekv"] = args.ekv
    kw["lpoll"] = args.lpoll
    kw["touch"] = args.touch
    kw["npro"] = args.npro
    kw["ysep"] = not args.noysep
    open(args.o, "w").write(gen(kvpol=args.kvpol, wpol=args.wpol, stamps=args.stamps, thr=args.thr, depth=args.depth,
                                sched=tuple(int(x) for x in args.sched.split(",")), pf_code=not args.nopfc, **kw))
    print("wrote", args.o)
```

```python
import sys, math, struct
sys.path.insert(0, "gen")
from asmlib import *

QX = 0x0000000
QB = 0x3000000
QREC = 12288
QSTR = 12800
OREC = 6656
OX = 0x0800000
LX = 0x1800000
FX = 0x1900000
YX = 0x2000000
STAMP = 0xF000000
WS_BYTES = 0x10000000

S_X, S_K, S_V, S_WQ, S_WO, S_OUT, S_DBG, S_WS = 4, 8, 12, 16, 20, 24, 28, 32
S_PTR = 40
S_WAVE, S_HH, S_P, S_HKV, S_B, S_S, S_KVB = 56, 57, 58, 59, 60, 61, 62
S_M0B = 63
S_NONCE = 64
S_T0, S_T1, S_T2, S_T3 = 66, 67, 68, 69
S_WQB, S_XB = 70, 71
S_THR = 72
S_WOB = 73
S_T4 = 74
S_RET = 76
S_SUB = 78
S_ACC = 84
S_CNT = 86
S_C = 87
S_TAG = 88
S_ST = 92
S_STB = 94
S_PC = 96
S_XCC = 98
S_LOCAL = 99

V_L16, V_LANE, V_Q16, V_G = 0, 1, 2, 3
V_KA, V_VA0, V_VA1, V_DK, V_DV = 4, 5, 6, 7, 8
V_L, V_U = 9, 12
V_X0 = 15
V_T = 24
V_NM = 32
V_P = 44
V_F = 56
V_S = 88
V_Q = 112
V_O = 160

SLOT = 16384
SLOTMAP = [2, 3, 4, 5, 0, 1, 6, 7, 8, 9]
def slot_of(t): return SLOTMAP[t % 10] * SLOT
XB = 13 * 8192
SCR = XB
MISC = XB + 49152
MISC2 = MISC + 64
def wq_lds(t): return t * 8192 if t < 13 else (t - 13) * 8192
WOSLOT = [6, 7, 8, 9, 2, 3, 4, 5]
LOG2E = 1.4426950408889634
CSCALE = (128 ** -0.5) * LOG2E

def f32bits(x): return struct.unpack("<I", struct.pack("<f", x))[0]
def vr(base, n): return f"v[{base}:{base+n-1}]"

class VM:
    def __init__(self, a):
        self.a = a; self.ops = []
    def issue(self, tag): self.ops.append(tag)
    def count_after(self, tag):
        idx = max(i for i, t in enumerate(self.ops) if t == tag)
        return len(self.ops) - 1 - idx
    def wait(self, tag):
        n = self.count_after(tag)
        assert n <= 63
        self.a(f"s_waitcnt vmcnt({n})")
    def has(self, tag): return tag in self.ops


def gen(kvpol="nt", wpol="", stamps=False, thr=256.0, depth=6, sched=(3, 4, 4, 4, 4), pf_code=True,
        lad=((3, 3, 3, 1, 0), (2, 2, 2, 2, 2)), exp=None, rot=True, ekv=1, lpoll="nt", touch=4, npro=13, ysep=True, ysent=True, qahead=2,
        wosched=((5, range(0, 3)), (6, range(3, 10)), (7, range(10, 16)))):
    a = Asm()
    NST = 40
    def stamp(i, wave=0, cyc=False, reg=None):
        if not stamps: return
        L = a.label("Lst")
        a(f"s_cmp_lg_u32 s{S_WAVE}, {wave}\ns_cbranch_scc1 {L}")
        if reg is None:
            a(f"""{"s_memtime" if cyc else "s_memrealtime"} s[{S_ST}:{S_ST+1}]
            s_waitcnt lgkmcnt(0)""")
            reg = S_ST
        a(f"""v_mov_b32 v22, s{reg}
        v_mov_b32 v23, s{reg+1}
        v_mov_b32 v21, 0
        s_mov_b64 exec, 1
        global_store_dwordx2 v21, v[22:23], s[{S_STB}:{S_STB+1}] offset:{i*8}
        s_mov_b64 exec, -1
        {L}:""")

    def S(kt, qt): return V_S + (kt * 3 + qt) * 4
    def Q(qt, ks): return V_Q + (qt * 4 + ks) * 4
    def O(dt, qt): return V_O + (dt * 3 + qt) * 4
    def NM(qt): return V_NM + qt * 4
    def P(qt): return V_P + qt * 4
    def F(i): return V_F + i * 4
    t0, t1, t2 = V_X0 + 2, V_X0 + 3, V_X0 + 4
    V_DWQ, V_DX = V_X0, V_X0 + 1

    a.begin_kernel(MAIN, 256, 512, 163840, listed=False)
    a(f"""s_cmp_ge_u32 s2, 256
    s_cbranch_scc1 L_end
    s_load_dwordx16 s[{S_PTR}:{S_PTR+15}], s[0:1], 0
    s_memrealtime s[{S_NONCE}:{S_NONCE+1}]
    v_lshrrev_b32 v{t0}, 6, v0
    v_and_b32 v{V_LANE}, 63, v0
    v_readfirstlane_b32 s{S_WAVE}, v{t0}
    v_and_b32 v{V_Q16}, 15, v0
    v_bfe_u32 v{V_G}, v0, 4, 2
    v_lshlrev_b32 v{V_L16}, 4, v{V_LANE}""")
    if pf_code:
        a(f"""s_cmp_lg_u32 s{S_WAVE}, 7
        s_cbranch_scc1 L_pfc_skip
        s_getpc_b64 s[{S_ACC}:{S_ACC+1}]
        v_lshlrev_b32 v{t0}, 7, v{V_LANE}
        PFC_LOADS
        L_pfc_skip:""")
    a(f"""s_and_b32 s{S_HKV}, s2, 7
    s_lshr_b32 s{S_B}, s2, 5
    s_bfe_u32 s{S_S}, s2, 0x20003
    s_and_b32 s{S_HH}, s{S_WAVE}, 3
    s_lshr_b32 s{S_P}, s{S_WAVE}, 2
    s_lshl_b32 s{S_M0B}, s{S_WAVE}, 10""")
    a(f"""s_lshr_b32 s{S_T2}, s{S_HH}, 1
    s_xor_b32 s{S_T3}, s{S_HH}, s{S_T2}
    s_and_b32 s{S_T3}, s{S_T3}, 1
    s_lshl_b32 s{S_T3}, s{S_T3}, 1
    s_or_b32 s{S_T3}, s{S_T3}, s{S_T2}
    v_and_b32 v{t2}, 3, v{V_LANE}
    v_xor_b32 v{t0}, s{S_T3}, v{t2}
    v_lshlrev_b32 v{t0}, 4, v{t0}
    v_lshl_add_u32 v{t0}, v{V_G}, 6, v{t0}
    v_bfe_u32 v{t1}, v{V_LANE}, 2, 2
    v_lshl_add_u32 v{V_DK}, v{t1}, 8, v{t0}
    v_lshl_add_u32 v{V_DX}, v{t1}, 10, v{t0}
    s_lshl_b32 s{S_T2}, s{S_HH}, 12
    v_add_u32 v{V_DX}, s{S_T2}, v{V_DX}""")
    a(f"""v_lshl_add_u32 v{t1}, v{V_G}, 3, v{t1}
    v_and_b32 v{t0}, 1, v{V_G}
    v_lshlrev_b32 v{t0}, 1, v{t0}
    v_xor_b32 v{t0}, v{t0}, v{t2}
    v_lshlrev_b32 v{t0}, 4, v{t0}
    v_lshl_add_u32 v{V_DWQ}, v{t1}, 13, v{t0}
    s_lshl_b32 s{S_WQB}, s{S_HKV}, 2
    s_add_u32 s{S_WQB}, s{S_WQB}, s{S_S}
    s_lshl_b32 s{S_WQB}, s{S_WQB}, 2
    s_add_u32 s{S_WQB}, s{S_WQB}, s{S_HH}
    s_lshl_b32 s{S_WQB}, s{S_WQB}, 6
    s_lshl_b32 s{S_T2}, s{S_P}, 21
    s_add_u32 s{S_WQB}, s{S_WQB}, s{S_T2}
    s_mul_i32 s{S_XB}, s{S_B}, {48*1024}
    s_waitcnt lgkmcnt(0)""")
    a.srd(S_X, S_PTR + 0, 8 * 48 * 512 * 2)
    a.srd(S_WQ, S_PTR + 6, 512 * 4096 * 2)
    V_DWO = V_X0 + 5

    def setup2():
        a.srd(S_WS, S_PTR + 14, WS_BYTES)
        a.srd(S_DBG, S_PTR + 12, 256)
        a(f"""v_add_u32 v{V_DK}, s{S_M0B}, v{V_DK}
        v_mov_b32 v{t0}, 0
        v_lshlrev_b32 v{t1}, 2, v{V_LANE}
        v_add_u32 v{t1}, {MISC}, v{t1}
        ds_write_b32 v{t1}, v{t0}""")
        a(f"""v_bfe_u32 v{t1}, v{V_LANE}, 2, 3
        v_and_b32 v{t2}, 1, v{V_G}
        v_lshlrev_b32 v{t2}, 1, v{t2}
        v_and_b32 v{t0}, 3, v{V_LANE}
        v_xor_b32 v{t0}, v{t0}, v{t2}
        v_lshlrev_b32 v{t0}, 4, v{t0}
        v_lshrrev_b32 v{t2}, 5, v{V_LANE}
        v_lshl_add_u32 v{t0}, v{t2}, 6, v{t0}
        s_and_b32 s{S_T2}, s{S_WAVE}, 1
        s_lshl_b32 s{S_T2}, s{S_T2}, 7
        v_add_u32 v{t0}, s{S_T2}, v{t0}
        s_lshr_b32 s{S_T2}, s{S_WAVE}, 1
        s_lshl_b32 s{S_T3}, s{S_T2}, 3
        v_add_u32 v{t2}, s{S_T3}, v{t1}
        v_lshl_add_u32 v{V_DV}, v{t2}, 8, v{t0}
        v_lshl_add_u32 v{V_DWO}, v{t2}, 10, v{t0}
        v_subrev_u32 v{V_L}, 4096, v{V_DK}
        v_subrev_u32 v{V_L+1}, 4096, v{V_DV}""")
        a.srd(S_K, S_PTR + 2, 0x2000000)
        a.srd(S_V, S_PTR + 4, 0x2000000)
        a.srd(S_WO, S_PTR + 8, 4096 * 512 * 2)
        a.srd(S_OUT, S_PTR + 10, 8 * 48 * 512 * 2)
        a(f"""s_lshl_b32 s{S_KVB}, s{S_B}, 3
        s_add_u32 s{S_KVB}, s{S_KVB}, s{S_HKV}
        s_lshl_b32 s{S_KVB}, s{S_KVB}, 19
        s_lshl_b32 s{S_T2}, s{S_S}, 17
        s_add_u32 s{S_KVB}, s{S_KVB}, s{S_T2}""")
        a(f"""v_lshrrev_b32 v{t0}, 2, v{V_Q16}
        v_lshrrev_b32 v{t1}, 1, v{t0}
        v_xor_b32 v{t2}, v{t0}, v{t1}
        v_and_b32 v{t2}, 1, v{t2}
        v_lshl_or_b32 v{t1}, v{t2}, 1, v{t1}
        v_xor_b32 v{t1}, v{t1}, v{V_G}
        v_lshlrev_b32 v{t0}, 10, v{t0}
        v_lshl_add_u32 v{t0}, v{t1}, 4, v{t0}
        v_and_b32 v{t1}, 3, v{V_Q16}
        v_lshl_add_u32 v{V_KA}, v{t1}, 6, v{t0}""")
        a(f"""v_lshrrev_b32 v{t0}, 5, v{V_LANE}
        v_lshlrev_b32 v{t0}, 11, v{t0}
        v_bfe_u32 v{t1}, v{V_LANE}, 2, 3
        v_lshl_add_u32 v{t0}, v{t1}, 6, v{t0}
        v_and_b32 v{t1}, 1, v{V_G}
        v_lshl_add_u32 v{t0}, v{t1}, 5, v{t0}
        v_and_b32 v{t1}, 3, v{V_LANE}
        v_lshl_add_u32 v{V_VA0}, v{t1}, 3, v{t0}
        v_xor_b32 v{V_VA1}, 32, v{V_VA0}
        s_mov_b32 s{S_THR}, {f32bits(thr):#x}
        s_mov_b32 s{S_C}, {f32bits(CSCALE):#x}""")
        L = a.label("Lpc")
        a(f"s_getpc_b64 s[{S_PC}:{S_PC+1}]\n{L}:")
        for qt in range(3):
            a(f"""s_add_u32 s{S_SUB+2*qt}, s{S_PC}, L_rescale{qt}-{L}
            s_addc_u32 s{S_SUB+2*qt+1}, s{S_PC+1}, 0""")
        a(f"""s_lshl_b32 s{S_WOB}, s{S_HKV}, 19
        s_lshl_b32 s{S_T2}, s{S_S}, 8
        s_add_u32 s{S_WOB}, s{S_WOB}, s{S_T2}""")
        if stamps:
            a(f"""s_mul_i32 s{S_T2}, s2, {NST*8}
            s_add_u32 s{S_STB}, s{S_PTR+14}, {STAMP:#x}
            s_addc_u32 s{S_STB+1}, s{S_PTR+15}, 0
            s_add_u32 s{S_STB}, s{S_STB}, s{S_T2}
            s_addc_u32 s{S_STB+1}, s{S_STB+1}, 0""")

    def dma(vm, tag, lds_off, srd, vo, sbase, soff, pol):
        a(f"s_add_u32 s{S_T2}, s{S_M0B}, {lds_off & 0xffffffff:#x}")
        a(f"s_mov_b32 m0, s{S_T2}")
        a(f"s_add_u32 s{S_T3}, s{sbase}, {soff:#x}")
        a(f"buffer_load_dwordx4 v{vo}, s[{srd}:{srd+3}], s{S_T3} offen {pol} lds")
        vm.issue(tag)
    def dma_piece(vm, n, both=False):
        t, isv = n >> 1, n & 1
        slot = slot_of(t) + isv * 8192
        srd, vo, vo2 = (S_V, V_DV, V_L + 1) if isv else (S_K, V_DK, V_L)
        dma(vm, ("kv", n), slot, srd, vo, S_KVB, t * 8192, kvpol)
        if both:
            dma(vm, ("kv", n), slot - 4096, srd, vo2, S_KVB, t * 8192, kvpol)
    def dma_wo(vm, n):
        k, chf = n >> 1, n & 1
        dma(vm, ("wo", n), WOSLOT[k] * SLOT + chf * 8192, S_WO, V_DWO, S_WOB, n * 32768, wpol)

    def touch_ld(vm, n):
        rec, base, nl = ((OREC, OX, 52), (3072, YX, 24))[n]
        a(f"""v_lshlrev_b32 v{V_X0+4}, 7, v{V_LANE}
        s_lshl_b32 s{S_T2}, s2, 3
        s_add_u32 s{S_T2}, s{S_T2}, s{S_WAVE}
        s_mul_i32 s{S_T3}, s{S_T2}, {rec}
        s_add_u32 s{S_T3}, s{S_T3}, {base}
        s_bfm_b64 exec, {nl}, 0
        buffer_load_dword v{V_DK}, v{V_X0+4}, s[{S_WS}:{S_WS+3}], s{S_T3} offen
        s_mov_b64 exec, -1
        s_nop 3""")
        vm.issue(("pt", n))

    def xlane(op, x, ta, tb):
        a(f"""v_mov_b32 v{ta}, v{x}
        v_mov_b32 v{tb}, v{x}
        s_nop 1
        v_permlane16_swap_b32 v{ta}, v{tb}
        s_nop 1
        {op} v{ta}, v{ta}, v{tb}
        v_mov_b32 v{tb}, v{ta}
        s_nop 1
        v_permlane32_swap_b32 v{ta}, v{tb}
        s_nop 1
        {op} v{x}, v{ta}, v{tb}""")

    def k_read(idx):
        kt, ks = idx >> 2, idx & 3
        return f"ds_read_b128 {vr(F(idx),4)}, v{V_KA} offset:{kt*4096 + ks*256}"
    def v_read(dt, j2):
        ad = V_VA1 if (dt & 1) else V_VA0
        return f"ds_read_b64_tr_b16 {vr(F(dt)+2*j2,2)}, v{ad} offset:{8192 + j2*4096 + (dt>>2)*1024 + ((dt>>1)&1)*512}"
    def qk_mfma(idx, qt, first):
        kt, ks = idx >> 2, idx & 3
        c = ("0" if first else vr(NM(qt), 4)) if ks == 0 else vr(S(kt, qt), 4)
        return f"v_mfma_f32_16x16x32_bf16 {vr(S(kt,qt),4)}, {vr(F(idx),4)}, {vr(Q(qt,ks),4)}, {c}"
    def pv_mfma(dt, qt, first):
        c = "0" if first else vr(O(dt, qt), 4)
        return f"v_mfma_f32_16x16x32_bf16 {vr(O(dt,qt),4)}, {vr(F(dt),4)}, {vr(P(qt),4)}, {c}"
    def sm_ops(qt, check):
        T, u = V_T, V_U + qt
        ex = [f"v_exp_f32 v{T+kt*4+i}, v{S(kt,qt)+i}" for kt in range(2) for i in range(4)]
        ops = ex[0:4] + [f"v_add_f32 v{u}, v{T}, v{T+1}", f"v_cvt_pk_bf16_f32 v{P(qt)}, v{T}, v{T+1}",
                         f"v_add_f32 v{u}, v{u}, v{T+2}"] + ex[4:6] + \
              [f"v_cvt_pk_bf16_f32 v{P(qt)+1}, v{T+2}, v{T+3}", f"v_add_f32 v{u}, v{u}, v{T+3}"] + ex[6:8] + \
              [f"v_add_f32 v{u}, v{u}, v{T+4}", f"v_cvt_pk_bf16_f32 v{P(qt)+2}, v{T+4}, v{T+5}",
               f"v_add_f32 v{u}, v{u}, v{T+5}", f"v_add_f32 v{u}, v{u}, v{T+6}",
               f"v_cvt_pk_bf16_f32 v{P(qt)+3}, v{T+6}, v{T+7}", f"v_add_f32 v{u}, v{u}, v{T+7}"]
        if check:
            L = a.label("Lok")
            ops.append(f"""v_cmp_lt_f32 vcc, s{S_THR}, v{u}
            s_cbranch_vccz {L}
            s_swappc_b64 s[{S_RET}:{S_RET+1}], s[{S_SUB+2*qt}:{S_SUB+2*qt+1}]
            {L}:""")
        ops.append(f"v_add_f32 v{V_L+qt}, v{V_L+qt}, v{u}")
        return ops
    def tile_max(qt, d):
        s0, s1 = S(0, qt), S(1, qt)
        a(f"""v_max3_f32 v{d}, v{s0}, v{s0+1}, v{s0+2}
        v_max3_f32 v{d}, v{d}, v{s0+3}, v{s1}
        v_max3_f32 v{d}, v{d}, v{s1+1}, v{s1+2}
        v_max_f32 v{d}, v{d}, v{s1+3}""")
        xlane("v_max_f32", d, V_T + 6, V_T + 7)
    def init_max(qt):
        d = V_T
        tile_max(qt, d)
        for i in range(4):
            a(f"v_sub_f32 v{NM(qt)+i}, 0, v{d}")
        for kt in range(2):
            for i in range(4):
                a(f"v_sub_f32 v{S(kt,qt)+i}, v{S(kt,qt)+i}, v{d}")
        a(f"v_mov_b32 v{V_L+qt}, 0")
    def interleave(mf, fill, lead=0):
        nm = len(mf); slots = nm - lead; k = 0
        for i, m in enumerate(mf):
            a(m)
            if i >= lead:
                tgt = (len(fill) * (i - lead + 1) + slots - 1) // slots
                while k < tgt:
                    a(fill[k]); k += 1
        while k < len(fill):
            a(fill[k]); k += 1
    def capture(fn):
        sv = a.lines; a.lines = []
        fn()
        out = "\n".join(l.strip() for l in a.lines); a.lines = sv
        return out

    NPRO = npro
    plan = {}
    nxt = NPRO
    for r, c in enumerate(sched):
        plan[r] = [("kv", x) for x in range(nxt, min(nxt + c, 32))]; nxt += c
    assert nxt >= 32
    for r, lst in plan.items():
        for _, pc in lst:
            t = pc >> 1
            assert t < 10 or (t - 10) // 2 < r, (r, pc)
    if touch & 1:
        plan.setdefault(7, []); plan[7] += [("pt", 0)]
    for r, lst in wosched:
        plan.setdefault(r, [])
        plan[r] += [("wo", x) for x in lst]
    if touch & 2:
        plan[7] += [("pt", 1)]

    vq = VM(a)
    n = V_T
    S_R0, S_R1, S_R2 = S_TAG, S_TAG + 1, S_TAG + 2
    if stamps: a(f"s_memrealtime s[{S_RET}:{S_RET+1}]")
    a(f"s_mul_i32 s{S_R0}, s{S_S}, 3\ns_lshr_b32 s{S_R0}, s{S_R0}, 1" if rot else f"s_mov_b32 s{S_R0}, 0")
    a(f"s_mov_b32 s{S_CNT}, 0\nL_xl:")
    a(f"""s_lshl_b32 s{S_T0}, s{S_R0}, 1
    s_add_u32 s{S_T0}, s{S_T0}, s{S_P}
    s_mul_i32 s{S_T1}, s{S_T0}, 11
    s_lshr_b32 s{S_T1}, s{S_T1}, 5
    s_mul_i32 s{S_T2}, s{S_T1}, 3
    s_sub_u32 s{S_T2}, s{S_T0}, s{S_T2}
    s_lshl_b32 s{S_T2}, s{S_T2}, 14
    s_lshl_b32 s{S_T1}, s{S_T1}, 8
    s_add_u32 s{S_T2}, s{S_T2}, s{S_T1}
    s_lshl_b32 s{S_T3}, s{S_R0}, 13
    s_add_u32 s{S_T3}, s{S_T3}, s{S_M0B}
    s_add_u32 m0, s{S_T3}, {XB}
    s_add_u32 s{S_T2}, s{S_T2}, s{S_XB}
    buffer_load_dwordx4 v{V_DX}, s[{S_X}:{S_X+3}], s{S_T2} offen {wpol} lds
    s_add_u32 s{S_R0}, s{S_R0}, 1
    s_cmp_eq_u32 s{S_R0}, 6
    s_cselect_b32 s{S_R0}, 0, s{S_R0}
    s_add_u32 s{S_CNT}, s{S_CNT}, 1
    s_cmp_lt_u32 s{S_CNT}, 6
    s_cbranch_scc1 L_xl""")
    for _ in range(6): vq.issue("x")
    a(f"""s_mul_i32 s{S_R1}, s{S_WAVE}, 12288
    s_mov_b32 s{S_R2}, {"s%d" % S_B if rot else "0"}""")
    def dma_wq(i):
        a(f"""s_add_u32 s{S_T0}, s{S_R2}, {i}
        s_and_b32 s{S_T0}, s{S_T0}, 7
        s_lshl_b32 s{S_T0}, s{S_T0}, 18
        s_add_u32 m0, s{S_R1}, {(i % 6) * 2048}
        s_add_u32 s{S_T0}, s{S_T0}, s{S_WQB}
        buffer_load_dwordx4 v{V_DWQ}, s[{S_WQ}:{S_WQ+3}], s{S_T0} offen {wpol} lds
        s_add_u32 m0, s{S_R1}, {(i % 6) * 2048 + 1024}
        s_add_u32 s{S_T0}, s{S_T0}, 0x8000
        buffer_load_dwordx4 v{V_DWQ}, s[{S_WQ}:{S_WQ+3}], s{S_T0} offen {wpol} lds""")
        vq.issue(("w", i)); vq.issue(("w", i))
    for i in range(2): dma_wq(i)
    if stamps: a(f"s_memrealtime s[{S_ACC}:{S_ACC+1}]")
    setup2()
    a(f"""s_lshl_b32 s{S_T2}, s{S_B}, 3
    v_mov_b32 v{n+4}, s{S_T2}
    s_and_b32 s{S_T2}, s2, 31
    s_lshl_b32 s{S_T2}, s{S_T2}, 3
    s_add_u32 s{S_T2}, s{S_T2}, s{S_WAVE}
    s_cmp_lg_u32 s{S_T2}, 4
    s_cbranch_scc1 L_nonce_skip
    s_or_b32 s{S_T2}, s{S_NONCE}, 1
    v_mov_b32 v{n}, s{S_T2}
    v_mov_b32 v{n+1}, s{S_NONCE+1}
    s_mov_b64 exec, 1
    buffer_store_dwordx2 {vr(n,2)}, v{n+4}, s[{S_DBG}:{S_DBG+3}], 0 offen sc1
    s_mov_b64 exec, -1
    L_nonce_skip:""")
    wa0, wa1, xa = V_U, V_U + 1, V_U + 2
    a(f"""v_lshrrev_b32 v{t0}, 2, v{V_LANE}
    v_lshlrev_b32 v{t0}, 6, v{t0}
    v_and_b32 v{t1}, 1, v{V_G}
    v_lshl_add_u32 v{t0}, v{t1}, 5, v{t0}
    v_and_b32 v{t1}, 3, v{V_LANE}
    v_lshl_add_u32 v{t0}, v{t1}, 3, v{t0}
    v_add_u32 v{wa0}, s{S_R1}, v{t0}
    v_xor_b32 v{wa1}, 32, v{wa0}
    s_mul_i32 s{S_T2}, s{S_P}, {2*3*4096}
    s_add_u32 s{S_T2}, s{S_T2}, {XB}
    v_add_u32 v{xa}, s{S_T2}, v{V_KA}""")
    if stamps:
        a("s_waitcnt lgkmcnt(0)")
        stamp(0, 0, reg=S_NONCE); stamp(9); stamp(10, 0, reg=S_RET); stamp(11, 0, reg=S_ACC)
    QA = 32
    FR = 64
    def fs(i): return FR + (i % 3) * 20
    def q_reads(i):
        b_ = fs(i)
        vq.wait(("w", i))
        a(f"""s_add_u32 s{S_T0}, s{S_R2}, {i}
        s_bfe_u32 s{S_T1}, s{S_T0}, 0x10002
        s_mul_i32 s{S_T1}, s{S_T1}, 12288
        s_and_b32 s{S_T0}, s{S_T0}, 3
        s_lshl_b32 s{S_T0}, s{S_T0}, 8
        s_add_u32 s{S_T0}, s{S_T0}, s{S_T1}
        v_add_u32 v{t0}, s{S_T0}, v{xa}""")
        for u in range(2):
            for j2 in range(2):
                a(f"ds_read_b64_tr_b16 {vr(b_+u*4+2*j2,2)}, v{wa1 if u else wa0} offset:{(i%6)*2048 + j2*1024}")
        for qt in range(3):
            a(f"ds_read_b128 {vr(b_+8+qt*4,4)}, v{t0} offset:{qt*4096}")
    vq.wait("x")
    a("s_waitcnt lgkmcnt(0)")
    stamp(18)
    a("s_barrier")
    stamp(12)
    for i in range(2, 2 + qahead): dma_wq(i)
    q_reads(0)
    for i in range(8):
        if i + 2 + qahead < 8 and i + 2 + qahead < 6: dma_wq(i + 2 + qahead)
        if i + 1 < 8: q_reads(i + 1)
        a(f"s_waitcnt lgkmcnt({7 if i + 1 < 8 else 0})")
        if 6 <= i + 2 + qahead < 8:
            assert i + 2 + qahead - 6 <= i
            dma_wq(i + 2 + qahead)
        if i == 7 - 2 - qahead + 0:
            a(f"""s_cmp_lg_u32 s{S_WAVE}, 0
            s_cbranch_scc1 L_nonce_skip1
            buffer_load_dwordx2 {vr(n,2)}, v{n+4}, s[{S_DBG}:{S_DBG+3}], 0 offen sc1
            L_nonce_skip1:""")
            if touch & 4:
                a(f"""s_cmp_eq_u32 s{S_P}, 0
                s_cbranch_scc1 L_qt_skip
                v_lshlrev_b32 v61, 7, v{V_LANE}
                s_mul_i32 s{S_T2}, s2, {QSTR}
                s_mul_i32 s{S_T3}, s{S_HH}, 3200
                s_add_u32 s{S_T2}, s{S_T2}, s{S_T3}
                s_bfm_b64 exec, 25, 0
                buffer_load_dword v31, v61, s[{S_WS}:{S_WS+3}], s{S_T2} offen
                s_mov_b64 exec, -1
                L_qt_skip:""")
        b_ = fs(i)
        for u in range(2):
            for qt in range(3):
                y = QA + (u * 3 + qt) * 4
                cc = "0" if i == 0 else vr(y, 4)
                a(f"v_mfma_f32_16x16x32_bf16 {vr(y,4)}, {vr(b_+u*4,4)}, {vr(b_+8+qt*4,4)}, {cc}")
    stamp(15)
    a(f"""v_add_u32 v{t0}, s{S_R1}, v{V_L16}
    s_xor_b32 s{S_T2}, s{S_WAVE}, 4
    s_mul_i32 s{S_T2}, s{S_T2}, 12288
    v_add_u32 v{t1}, s{S_T2}, v{V_L16}
    s_cmp_lg_u32 s{S_WAVE}, 0
    s_cbranch_scc1 L_nonce_skip2
    s_mov_b32 s{S_CNT}, 0
    L_nonce_retry:
    s_waitcnt vmcnt(0)
    v_readfirstlane_b32 s{S_T2}, v{n}
    s_add_u32 s{S_CNT}, s{S_CNT}, 1
    s_cmp_lg_u32 s{S_T2}, 0
    s_cbranch_scc1 L_nonce_ok
    s_cmp_gt_u32 s{S_CNT}, 0x10000
    s_cbranch_scc1 L_nonce_ok
    buffer_load_dwordx2 {vr(n,2)}, v{n+4}, s[{S_DBG}:{S_DBG+3}], 0 offen sc1
    s_branch L_nonce_retry
    L_nonce_ok:
    v_mov_b32 v{n+2}, {MISC}
    ds_write_b64 v{n+2}, {vr(n,2)}
    L_nonce_skip2:
    s_nop 4
    s_cmp_lg_u32 s{S_P}, 0
    s_cbranch_scc1 L_role1""")

    for p in range(2):
        vm = VM(a)
        a(f"L_role{p}:")
        for qt in range(3):
            a(f"ds_write_b128 v{t0}, {vr(QA+((1-p)*3+qt)*4,4)} offset:{qt*1024}")
        a(f"v_mov_b32 v{V_T+2}, {MISC}\ns_waitcnt lgkmcnt(0)\ns_barrier")
        RC = 64
        for qt in range(3):
            a(f"ds_read_b128 {vr(RC+qt*4,4)}, v{t1} offset:{qt*1024}")
        a(f"ds_read_b64 {vr(V_T,2)}, v{V_T+2}")
        G = 48
        a(f"""s_lshl_b32 s{S_T3}, s{S_HH}, 10
        s_add_u32 s{S_T2}, s{S_T3}, {SCR + p*512}
        v_lshrrev_b32 v{t0}, 1, v{V_G}
        v_lshlrev_b32 v{t0}, 8, v{t0}
        v_lshl_add_u32 v{t0}, v{V_Q16}, 4, v{t0}
        v_and_b32 v{t1}, 1, v{V_G}
        v_lshl_add_u32 v{t0}, v{t1}, 3, v{t0}
        v_add_u32 v{t0}, s{S_T2}, v{t0}
        s_getreg_b32 s{S_XCC}, hwreg(HW_REG_XCC_ID)
        s_and_b32 s{S_XCC}, s{S_XCC}, 15
        s_waitcnt lgkmcnt(0)""")
        if exp and "fakexcc" in exp:
            a(f"s_lshr_b32 s{S_XCC}, s2, 3")
        for qt in range(3):
            for i in range(4):
                a(f"v_add_f32 v{RC+qt*4+i}, v{RC+qt*4+i}, v{QA+(p*3+qt)*4+i}")
                a(f"v_mul_f32 v{RC+qt*4+i}, s{S_C}, v{RC+qt*4+i}")
            g = 80 + qt * 2
            a(f"""v_cvt_pk_bf16_f32 v{g}, v{RC+qt*4}, v{RC+qt*4+1}
            v_cvt_pk_bf16_f32 v{g+1}, v{RC+qt*4+2}, v{RC+qt*4+3}
            ds_write_b64 v{t0}, {vr(g,2)} offset:{qt*4096}""")
        a(f"""s_waitcnt lgkmcnt(0)
        s_barrier
        v_readfirstlane_b32 s{S_NONCE}, v{V_T}
        v_readfirstlane_b32 s{S_NONCE+1}, v{V_T+1}""")
        if p == 0: stamp(8)
        if exp and "stopq" in exp:
            a("s_waitcnt vmcnt(0)\ns_endpgm")
        for x in (V_KA, V_VA0, V_VA1):
            a(f"v_add_u32 v{x}, {slot_of(p)}, v{x}")
        qst = V_X0 + 1
        a(f"""s_sub_u32 s{S_T0}, s{S_HH}, s{S_S}
        s_and_b32 s{S_T0}, s{S_T0}, 3
        s_mul_i32 s{S_T0}, s{S_T0}, 12288
        s_add_u32 s{S_T0}, s{S_T0}, {SCR}
        v_add_u32 v{qst}, s{S_T0}, v{V_L16}""")
        if p == 0:
            sa = V_X0
            FL = 60
            a(f"""s_mul_i32 s{S_T4}, s{S_HH}, 3072
            s_add_u32 s{S_T1}, s{S_T4}, {SCR}
            v_add_u32 v{t0}, s{S_T1}, v{V_L16}""")
            for i in range(3):
                a(f"ds_read_b128 {vr(G+i*4,4)}, v{t0} offset:{i*1024}")
            a(f"""s_mul_i32 s{S_T0}, s2, {QSTR}
            s_add_u32 s{S_T1}, s{S_T0}, s{S_T4}
            s_lshl_b32 s{S_T2}, s{S_HH}, 7
            s_add_u32 s{S_T2}, s{S_T2}, s{S_T0}
            s_add_u32 s{S_T2}, s{S_T2}, {QREC}
            v_mov_b32 v{FL}, v{V_T}
            v_mov_b32 v{FL+1}, v{V_T+1}
            v_mov_b32 v{FL+2}, s{S_XCC}
            v_mov_b32 v{FL+3}, 0
            v_bfe_u32 v{sa}, v{V_LANE}, 2, 2
            v_mul_u32_u24 v{sa}, {8*QSTR}, v{sa}
            v_and_b32 v{t1}, 3, v{V_LANE}
            v_lshl_add_u32 v{sa}, v{t1}, 7, v{sa}
            s_mov_b32 s{S_T3}, {QB - QX:#x}
            v_mul_lo_u32 v{t1}, v{V_G}, s{S_T3}
            v_add_u32 v{sa}, v{sa}, v{t1}
            s_andn2_b32 s{S_T0}, s2, 24
            s_mul_i32 s{S_T0}, s{S_T0}, {QSTR}
            s_add_u32 s{S_T3}, s{S_T0}, {QREC}
            s_waitcnt lgkmcnt(0)""")
            def q_publish(pol):
                for i in range(3):
                    a(f"buffer_store_dwordx4 {vr(G+i*4,4)}, v{V_L16}, s[{S_WS}:{S_WS+3}], s{S_T1} offen offset:{i*1024} {pol}")
                a(f"""s_waitcnt vmcnt(0)
                s_mov_b64 exec, 1
                buffer_store_dwordx4 {vr(FL,4)}, v{V_L16}, s[{S_WS}:{S_WS+3}], s{S_T2} offen {pol}""")
            if not (exp and "noA" in exp):
                q_publish("")
            a("s_mov_b64 exec, -1")
            stamp(1)
            a(f"""s_mov_b32 s{S_CNT}, 0
            s_mov_b64 exec, 0xffff
            L_qs1:
            buffer_load_dwordx4 {vr(V_T+4,4)}, v{sa}, s[{S_WS}:{S_WS+3}], s{S_T3} offen {lpoll}
            s_add_u32 s{S_CNT}, s{S_CNT}, 1
            s_waitcnt vmcnt(0)
            v_cmp_eq_u64 vcc, s[{S_NONCE}:{S_NONCE+1}], {vr(V_T+4,2)}
            v_cmp_eq_u32 s[{S_ACC}:{S_ACC+1}], s{S_XCC}, v{V_T+6}
            s_andn2_b32 s{S_ACC+1}, vcc_lo, s{S_ACC}
            s_cbranch_scc1 L_qremote
            s_cmp_eq_u32 vcc_lo, 0xffff
            s_cbranch_scc1 L_qlocal
            s_cmp_lt_u32 s{S_CNT}, 10
            s_cbranch_scc1 L_qs1
            L_qremote:
            s_mov_b64 exec, -1
            s_add_u32 s{S_T1}, s{S_T1}, {QB - QX:#x}
            s_add_u32 s{S_T2}, s{S_T2}, {QB - QX:#x}""")
            q_publish("sc1")
            a(f"""s_mov_b64 exec, 0xffffffff
            L_qs2:
            buffer_load_dwordx4 {vr(V_T+4,4)}, v{sa}, s[{S_WS}:{S_WS+3}], s{S_T3} offen sc1
            s_add_u32 s{S_CNT}, s{S_CNT}, 1
            s_waitcnt vmcnt(0)
            v_cmp_eq_u64 vcc, s[{S_NONCE}:{S_NONCE+1}], {vr(V_T+4,2)}
            v_cmp_eq_u32 s[{S_ACC}:{S_ACC+1}], s{S_XCC}, v{V_T+6}
            s_and_b32 s{S_ACC}, s{S_ACC}, vcc_lo
            s_and_b32 s{S_ACC}, s{S_ACC}, 0xffff
            s_cmp_eq_u32 s{S_ACC}, 0xffff
            s_cbranch_scc1 L_qlocal
            s_lshr_b32 s{S_ACC}, vcc_lo, 16
            s_cmp_eq_u32 s{S_ACC}, 0xffff
            s_cbranch_scc1 L_qfar
            s_cmp_lt_u32 s{S_CNT}, 0x8000
            s_cbranch_scc1 L_qs2
            L_qfar:
            s_mov_b32 s{S_LOCAL}, 1
            s_add_u32 s{S_T0}, s{S_T0}, {QB - QX:#x}
            s_branch L_qgo
            L_qlocal:
            s_mov_b32 s{S_LOCAL}, 3
            L_qgo:
            s_mov_b64 exec, -1
            v_mov_b32 v{V_T+4}, s{S_LOCAL}
            s_lshl_b32 s{S_T2}, s{S_HH}, 2
            s_add_u32 s{S_T2}, s{S_T2}, {MISC2}
            v_mov_b32 v{V_T+5}, s{S_T2}
            ds_write_b32 v{V_T+5}, v{V_T+4}
            s_add_u32 s{S_T0}, s{S_T0}, s{S_T4}
            s_add_u32 s{S_T4}, s{S_T4}, {SCR}""")
            if stamps:
                a(f"s_mov_b32 s{S_ACC}, s{S_CNT}\ns_mov_b32 s{S_ACC+1}, 0")
                stamp(17, 1, reg=S_ACC); stamp(16, 1)
            a(f"s_cmp_eq_u32 s{S_LOCAL}, 3\ns_cbranch_scc1 L_qld_local")
            for fl in ("sc1", ""):
                if not fl: a("L_qld_local:")
                for j in range(1, 4):
                    a(f"""s_add_u32 s{S_T1}, s{S_S}, {j}
                    s_and_b32 s{S_T1}, s{S_T1}, 3
                    s_mul_i32 s{S_T1}, s{S_T1}, {8*QSTR}
                    s_add_u32 s{S_T2}, s{S_T4}, {j*12288}
                    s_mov_b32 m0, s{S_T2}
                    s_add_u32 s{S_T1}, s{S_T1}, s{S_T0}""")
                    for i in range(3):
                        a(f"buffer_load_dwordx4 v{V_L16}, s[{S_WS}:{S_WS+3}], s{S_T1} offen offset:{i*1024} {fl} lds")
                if fl: a("s_branch L_qld_done")
            a(f"""L_qld_done:
            v_mov_b32 v{V_T+4}, {MISC2}
            s_waitcnt vmcnt(0) lgkmcnt(0)""")
            vm.ops = []
            stamp(28, 1)
            stamp(2)
            a("s_barrier")
            a(f"ds_read_b128 {vr(V_T,4)}, v{V_T+4}")
            for i in range(12):
                a(f"ds_read_b128 {vr(V_Q+i*4,4)}, v{qst} offset:{i*1024}")
            a("s_waitcnt lgkmcnt(0)\ns_barrier")
            for idx in range(8): a(k_read(idx))
        else:
            a(f"v_mov_b32 v{V_T+4}, {MISC2}\ns_mov_b32 s{S_CNT}, 0")
            for pc in range(0, ekv): dma_piece(vm, pc, True)
            for pc in range(ekv, NPRO):
                L = a.label("Lgo")
                a(f"""s_cmp_lg_u32 s{S_CNT}, 0
                s_cbranch_scc1 {L}
                ds_read_b128 {vr(V_T,4)}, v{V_T+4}
                s_waitcnt vmcnt({max(depth-2,0)}) lgkmcnt(0)
                v_and_b32 v{V_T}, v{V_T}, v{V_T+1}
                v_and_b32 v{V_T+2}, v{V_T+2}, v{V_T+3}
                v_and_b32 v{V_T}, v{V_T}, v{V_T+2}
                s_nop 0
                v_readfirstlane_b32 s{S_CNT}, v{V_T}
                {L}:""")
                dma_piece(vm, pc, True)
            stamp(19, 4)
            if vm.has(("kv", 3)): vm.wait(("kv", 3))
            a(f"v_mov_b32 v{V_T+4}, {MISC2}")
            a("s_barrier")
            a(f"ds_read_b128 {vr(V_T,4)}, v{V_T+4}")
            for i in range(12):
                a(f"ds_read_b128 {vr(V_Q+i*4,4)}, v{qst} offset:{i*1024}")
            a("s_waitcnt lgkmcnt(0)\ns_barrier")
            for idx in range(8): a(k_read(idx))
        a(f"""v_and_b32 v{V_T}, v{V_T}, v{V_T+1}
        v_and_b32 v{V_T+2}, v{V_T+2}, v{V_T+3}
        v_and_b32 v{V_T}, v{V_T}, v{V_T+2}
        v_lshrrev_b32 v{V_T}, 1, v{V_T}
        s_nop 0
        v_readfirstlane_b32 s{S_LOCAL}, v{V_T}""")
        if exp and "nolocal" in exp:
            a(f"s_mov_b32 s{S_LOCAL}, 0")
        def pr(i):
            if lad: a(f"s_setprio {lad[p][i]}")
        WA = V_Q
        woa0, woa1 = V_X0, V_X0 + 1
        for r in range(8):
            t = 2 * r + p
            first = (r == 0)
            if r > 0:
                need = ("kv", 4 * r + 3)
                if vm.has(need): vm.wait(need)
                if p == 1: stamp(20 + r, 4)
                a("s_barrier")
                if p == 0:
                    stamp(30 + r, 0)
                    if r == 4: stamp(38, 0, True)
                    if r == 7: stamp(39, 0, True)
            pr(0)
            if r > 0 and p == 0:
                for idx in range(8): a(k_read(idx))
            dm = [capture(lambda: {"kv": dma_piece, "wo": dma_wo, "pt": touch_ld}[k](vm, x)) for k, x in plan.get(r, [])]
            h = (len(dm) + 1) // 2
            if p == 1 and r > 0:
                f1 = (r == 1)
                interleave([pv_mfma(dt, 0, f1) for dt in range(8)], dm[:h])
                interleave([pv_mfma(dt, 1, f1) for dt in range(8)], dm[h:])
                for dt in range(8):
                    a(pv_mfma(dt, 2, f1)); a(k_read(dt))
                dm = []
            elif r == 0 or r == 7:
                for d in dm: a(d)
                dm = []
            pr(1)
            for idx in range(8):
                a(f"s_waitcnt lgkmcnt({7-idx})")
                a(qk_mfma(idx, 0, first))
            pr(2)
            if first:
                def first_ops(qt):
                    txt = capture(lambda: init_max(qt)).split("\n")
                    ops, cur = [], []
                    for l in txt:
                        cur.append(l)
                        if not (l.startswith("s_nop") or l.startswith("v_permlane") or l.startswith("v_mov_b32 v3")):
                            ops.append("\n".join(cur)); cur = []
                    if cur: ops.append("\n".join(cur))
                    return ops + sm_ops(qt, False)
                interleave([qk_mfma(idx, 1, first) for idx in range(8)], first_ops(0), lead=0 if False else 0) if False else None
                mf1 = [qk_mfma(idx, 1, first) for idx in range(8)]
                for m_ in mf1[:4]: a(m_)
                a("s_nop 3")
                interleave(mf1[4:], first_ops(0))
                mf = [qk_mfma(idx, 2, first) + "\n" + v_read(idx, 0) + "\n" + v_read(idx, 1) for idx in range(8)]
                interleave(mf, first_ops(1), lead=2)
                smq2 = first_ops(2)
            else:
                interleave([qk_mfma(idx, 1, False) for idx in range(8)], sm_ops(0, True))
                s1 = sm_ops(1, True)
                mf = [qk_mfma(idx, 2, False) + "\n" + v_read(idx, 0) + "\n" + v_read(idx, 1) for idx in range(8)]
                interleave(mf, s1)
                smq2 = sm_ops(2, True)
            if r < 7:
                d = slot_of(t + 2) - slot_of(t)
                adv = [f"v_add_u32 v{x}, {d & 0xffffffff:#x}, v{x}" for x in (V_KA, V_VA0, V_VA1)]
                wor = []
            else:
                adv = [f"""v_subrev_u32 v{woa0}, {slot_of(t)}, v{V_VA0}
                s_and_b32 s{S_T2}, s{S_WAVE}, 1
                s_lshl_b32 s{S_T2}, s{S_T2}, 5
                v_xor_b32 v{woa0}, s{S_T2}, v{woa0}
                s_lshr_b32 s{S_T2}, s{S_WAVE}, 1
                s_lshl_b32 s{S_T2}, s{S_T2}, 9
                s_add_u32 s{S_T2}, s{S_T2}, {2*SLOT}
                v_add_u32 v{woa0}, s{S_T2}, v{woa0}
                v_add_u32 v{woa1}, {4*SLOT}, v{woa0}"""]
                wor = []
                for k in range(12):
                    sl = WOSLOT[k >> 1]
                    ad = woa0 if sl < 6 else woa1
                    off = (sl - 2 if sl < 6 else sl - 6) * SLOT + (k & 1) * 8192
                    for j2 in range(2):
                        wor.append(f"ds_read_b64_tr_b16 {vr(WA+k*4+2*j2,2)}, v{ad} offset:{off + j2*4096}")
            pr(3)
            if p == 0:
                mf = [f"s_waitcnt lgkmcnt({14-2*dt})\n" + pv_mfma(dt, 0, first) for dt in range(8)]
                interleave(mf, smq2, lead=2)
                pr(4)
                interleave([pv_mfma(dt, 1, first) for dt in range(8)], adv + dm[:h])
                a("s_nop 1")
                interleave([pv_mfma(dt, 2, first) for dt in range(8)], dm[h:])
            else:
                for o in adv: a(o)
                a("s_nop 3")
                for o in smq2: a(o)
                a("s_waitcnt lgkmcnt(0)")
        vm.wait(("wo", 11))
        a("s_waitcnt lgkmcnt(0)\ns_barrier")
        a("s_setprio 0")
        if p == 0:
            stamp(3)
            for o in wor: a(o)
            for qt in range(3):
                xlane("v_add_f32", V_L + qt, V_T + 6, V_T + 7)
            a("s_waitcnt lgkmcnt(0)\ns_barrier")
        else:
            interleave([pv_mfma(dt, 0, False) for dt in range(8)], wor)
            xl = [capture(lambda: xlane("v_add_f32", V_L + qt, V_T + 6, V_T + 7)) for qt in range(3)]
            interleave([pv_mfma(dt, 1, False) for dt in range(8)], xl)
            a("s_waitcnt lgkmcnt(0)\ns_barrier")
            for dt in range(8): a(pv_mfma(dt, 2, False))
        cw, cr, mw, mr = V_T, V_KA, V_T + 2, V_T + 3
        def cb_const(v): return 98304 + v * 12288 if v < 5 else (32768 + (v - 5) * 12288 if v < 7 else 0)
        def cb_addr(sdst, pp):
            c = [cb_const(4 * pp + h_) for h_ in range(4)]
            if pp == 0:
                a(f"s_mul_i32 s{sdst}, s{S_HH}, 12288\ns_add_u32 s{sdst}, s{sdst}, 98304")
            else:
                a(f"""s_mov_b32 s{sdst}, {c[0]}
                s_cmp_eq_u32 s{S_HH}, 1
                s_cselect_b32 s{sdst}, {c[1]}, s{sdst}
                s_cmp_eq_u32 s{S_HH}, 2
                s_cselect_b32 s{sdst}, {c[2]}, s{sdst}
                s_cmp_eq_u32 s{S_HH}, 3
                s_cselect_b32 s{sdst}, {c[3]}, s{sdst}""")
        cb_addr(S_T0, p); cb_addr(S_T1, 1 - p)
        a(f"""v_add_u32 v{cr}, s{S_T1}, v{V_L16}
        v_add_u32 v{cw}, s{S_T0}, v{V_L16}
        s_lshl_b32 s{S_T0}, s{S_WAVE}, 11
        s_add_u32 s{S_T0}, s{S_T0}, {SLOT}
        s_xor_b32 s{S_T1}, s{S_T0}, 0x2000
        v_lshlrev_b32 v{mw}, 2, v{V_LANE}
        v_add_u32 v{mr}, s{S_T1}, v{mw}
        v_add_u32 v{mw}, s{S_T0}, v{mw}""")
        own0, oth0 = 4 * p, 4 * (1 - p)
        for qt in range(3):
            a(f"ds_write_b32 v{mw}, v{NM(qt)} offset:{qt*256}")
            a(f"ds_write_b32 v{mw}, v{V_L+qt} offset:{768+qt*256}")
        for i in range(12):
            a(f"ds_write_b128 v{cw}, {vr(O(oth0,0)+i*4,4)} offset:{i*1024}")
        a("s_waitcnt lgkmcnt(0)\ns_barrier")
        NMo, Lo = V_P, V_P + 3
        for qt in range(3):
            a(f"ds_read_b32 v{NMo+qt}, v{mr} offset:{qt*256}")
            a(f"ds_read_b32 v{Lo+qt}, v{mr} offset:{768+qt*256}")
        for i in range(12):
            a(f"ds_read_b128 {vr(O(oth0,0)+i*4,4)}, v{cr} offset:{i*1024}")
        a("s_waitcnt lgkmcnt(12)")
        FA, FB, LL = 88, 96, 104
        for qt in range(3):
            n_ = V_F + qt
            fa, fb = FA + 2 * qt, FB + 2 * qt
            a(f"""v_min_f32 v{n_}, v{NM(qt)}, v{NMo+qt}
            v_sub_f32 v{fa}, v{n_}, v{NM(qt)}
            v_sub_f32 v{fb}, v{n_}, v{NMo+qt}
            v_exp_f32 v{fa}, v{fa}
            v_exp_f32 v{fb}, v{fb}
            s_nop 0
            v_mul_f32 v{LL+qt}, v{fa}, v{V_L+qt}
            v_fma_f32 v{LL+qt}, v{fb}, v{Lo+qt}, v{LL+qt}
            v_rcp_f32 v{V_F+4}, v{LL+qt}
            v_log_f32 v{LL+qt}, v{LL+qt}
            s_nop 0
            v_mul_f32 v{fa}, v{fa}, v{V_F+4}
            v_mul_f32 v{fb}, v{fb}, v{V_F+4}
            v_sub_f32 v{LL+qt}, v{LL+qt}, v{n_}""")
        a(f"""s_lshl_b32 s{S_T0}, s2, 3
        s_add_u32 s{S_T0}, s{S_T0}, s{S_WAVE}
        s_mul_i32 s{S_T1}, s{S_T0}, {OREC}
        s_add_u32 s{S_T1}, s{S_T1}, {OX}
        s_add_u32 s{S_T2}, s{S_T1}, 6144
        s_mov_b64 exec, 0xffff
        """)
        def st1(txt):
            La, Lb = a.label("Ls"), a.label("Ls")
            a(f"""s_cbranch_scc1 {La}
            {txt} sc1
            s_branch {Lb}
            {La}:
            {txt}
            {Lb}:""")
        a(f"s_cmp_lg_u32 s{S_LOCAL}, 0")
        st1(f"buffer_store_dwordx4 {vr(LL,4)}, v{V_L16}, s[{S_WS}:{S_WS+3}], s{S_T2} offen")
        a("s_mov_b64 exec, -1")
        OF = V_F + 8
        for tl in range(2):
            a(f"s_waitcnt lgkmcnt({6 - 6*tl})")
            for qt in range(3):
                for h2 in range(2):
                    dt = own0 + tl * 2 + h2
                    o = O(dt, qt); x = O(oth0 + tl * 2 + h2, qt)
                    for k in range(2):
                        a(f"v_pk_mul_f32 {vr(o+2*k,2)}, {vr(o+2*k,2)}, {vr(FA+2*qt,2)} op_sel_hi:[1,0]")
                        a(f"v_pk_fma_f32 {vr(o+2*k,2)}, {vr(x+2*k,2)}, {vr(FB+2*qt,2)}, {vr(o+2*k,2)} op_sel_hi:[1,0,1]")
                    d = OF + (tl * 3 + qt) * 4 + h2 * 2
                    a(f"v_cvt_pk_bf16_f32 v{d}, v{o}, v{o+1}")
                    a(f"v_cvt_pk_bf16_f32 v{d+1}, v{o+2}, v{o+3}")
                i = tl * 3 + qt
                if i == 4:
                    a(f"s_add_u32 s{S_T1}, s{S_T1}, 4096\ns_cmp_lg_u32 s{S_LOCAL}, 0")
                st1(f"buffer_store_dwordx4 {vr(OF+i*4,4)}, v{V_L16}, s[{S_WS}:{S_WS+3}], s{S_T1} offen offset:{(i&3)*1024}")
        if p == 0:
            a("s_branch L_tail")
    a("L_tail:")
    woa0 = V_X0
    fa_ = V_X0 + 2
    OF = V_F + 8
    LL = 104
    a(f"""v_mov_b32 v{V_T+2}, s{S_NONCE}
    v_mov_b32 v{V_T+3}, s{S_NONCE+1}
    v_mov_b32 v{V_T+4}, 0
    s_mul_i32 s{S_T1}, s{S_T0}, {OREC}
    s_add_u32 s{S_T1}, s{S_T1}, {OX + 6400}
    s_andn2_b32 s{S_T0}, s{S_T0}, 0xc0
    s_mul_i32 s{S_T0}, s{S_T0}, {OREC}
    s_add_u32 s{S_T0}, s{S_T0}, {OX}
    v_add_u32 v{fa_}, s{S_S}, v{V_LANE}
    v_add_u32 v{fa_}, 1, v{fa_}
    v_and_b32 v{fa_}, 3, v{fa_}
    v_mul_u32_u24 v{fa_}, {64*OREC}, v{fa_}
    s_add_u32 s{S_T3}, s{S_T0}, 6400
    s_mov_b32 s{S_CNT}, 0
    s_cmp_lg_u32 s{S_LOCAL}, 0
    s_waitcnt vmcnt(0)
    s_mov_b64 exec, 1""")
    st1(f"buffer_store_dwordx2 {vr(V_T+2,2)}, v{V_T+4}, s[{S_WS}:{S_WS+3}], s{S_T1} offen")
    a("s_mov_b64 exec, -1")
    stamp(4)
    SP = [S_TAG, S_TAG + 1, S_TAG + 2]
    for j in range(3):
        a(f"""s_add_u32 s{SP[j]}, s{S_S}, {j+1}
        s_and_b32 s{SP[j]}, s{SP[j]}, 3
        s_mul_i32 s{SP[j]}, s{SP[j]}, {64*OREC}
        s_add_u32 s{SP[j]}, s{SP[j]}, s{S_T0}""")
    q16 = V_X0 + 3
    a(f"""v_lshlrev_b32 v{q16}, 4, v{V_Q16}
    v_add_u32 v{q16}, 6144, v{q16}
    s_mov_b64 exec, 7
    L_fpoll:
    s_cmp_lg_u32 s{S_LOCAL}, 0
    s_cbranch_scc1 L_fp_l
    buffer_load_dwordx2 {vr(V_T,2)}, v{fa_}, s[{S_WS}:{S_WS+3}], s{S_T3} offen sc1
    s_branch L_fp_d
    L_fp_l:
    buffer_load_dwordx2 {vr(V_T,2)}, v{fa_}, s[{S_WS}:{S_WS+3}], s{S_T3} offen {lpoll}
    L_fp_d:
    s_add_u32 s{S_CNT}, s{S_CNT}, 1
    s_waitcnt vmcnt(0)
    v_cmp_ne_u64 vcc, s[{S_NONCE}:{S_NONCE+1}], {vr(V_T,2)}
    s_cmp_gt_u32 s{S_CNT}, 0x10000
    s_cbranch_scc1 L_fok
    s_cbranch_vccnz L_fpoll
    L_fok:
    s_mov_b64 exec, -1""")
    stamp(5)
    PL = 32
    PF = 160
    a(f"s_cmp_lg_u32 s{S_LOCAL}, 0\ns_cbranch_scc1 L_old_local")
    for fl in (" sc1", ""):
        if not fl: a("L_old_local:")
        for j in range(3):
            a(f"buffer_load_dwordx4 {vr(PL+j*4,4)}, v{q16}, s[{S_WS}:{S_WS+3}], s{SP[j]} offen{fl}")
        for half in range(2):
            for j in range(3):
                for i3 in range(3):
                    i = half * 3 + i3
                    a(f"buffer_load_dwordx4 {vr(PF+(j*6+i)*4,4)}, v{V_L16}, s[{S_WS}:{S_WS+3}], s{SP[j]} offen offset:{i3*1024}{fl}")
                if half == 0: a(f"s_add_u32 s{SP[j]}, s{SP[j]}, 3072")
        if fl: a("s_branch L_old_done")
    a("L_old_done:")
    a("s_waitcnt vmcnt(18)")
    def W(j, qt): return 232 + (j * 3 + qt) * 2
    for qt in range(3):
        mx = V_T
        w = [LL + qt] + [PL + j * 4 + qt for j in range(3)]
        a(f"""v_max3_f32 v{mx}, v{w[0]}, v{w[1]}, v{w[2]}
        v_max_f32 v{mx}, v{mx}, v{w[3]}""")
        for j in range(4): a(f"v_sub_f32 v{w[j]}, v{w[j]}, v{mx}")
        for j in range(4): a(f"v_exp_f32 v{w[j]}, v{w[j]}")
        a(f"""s_nop 0
        v_add_f32 v{mx}, v{w[0]}, v{w[1]}
        v_add_f32 v{mx+1}, v{w[2]}, v{w[3]}
        v_add_f32 v{mx}, v{mx}, v{mx+1}
        v_rcp_f32 v{mx}, v{mx}
        s_nop 0""")
        for j in range(4): a(f"v_mul_f32 v{W(j,qt)}, v{w[j]}, v{mx}")
    CA = 32
    def cb_const(v): return 98304 + v * 12288 if v < 5 else (32768 + (v - 5) * 12288 if v < 7 else 0)
    a(f"""s_mov_b32 s{S_T3}, 0xffff0000
    v_add_u32 v{V_VA0}, 0x10000, v{V_L16}
    v_add_u32 v{V_VA1}, 0x20000, v{V_L16}""")
    for half in range(2):
        for j in range(4):
            if j > 0:
                a(f"s_waitcnt vmcnt({18 - 9*half - 3*j})")
            for qt in range(3):
                i = half * 3 + qt
                src = OF + i * 4 if j == 0 else PF + ((j - 1) * 6 + i) * 4
                for d in range(4):
                    c0 = CA + qt * 8 + 2 * d
                    tt = V_T + (d & 1) * 2
                    a(f"v_lshlrev_b32 v{tt}, 16, v{src+d}")
                    a(f"v_and_b32 v{tt+1}, s{S_T3}, v{src+d}")
                    if j == 0:
                        a(f"v_pk_mul_f32 {vr(c0,2)}, {vr(tt,2)}, {vr(W(j,qt),2)} op_sel_hi:[1,0]")
                    else:
                        a(f"v_pk_fma_f32 {vr(c0,2)}, {vr(tt,2)}, {vr(W(j,qt),2)}, {vr(c0,2)} op_sel_hi:[1,0,1]")
        for qt in range(3):
            i = half * 3 + qt
            for d in range(4):
                a(f"v_cvt_pk_bf16_f32 v{OF+i*4+d}, v{CA+qt*8+2*d}, v{CA+qt*8+2*d+1}")
            a(f"ds_write_b128 v{V_KA}, {vr(OF+i*4,4)} offset:{i*1024}")
    WB = 32
    a("s_waitcnt lgkmcnt(0)\ns_barrier")
    stamp(6)
    YA = 88
    NB = 8
    def bset(k): return 160 + (k % NB) * 12
    def breads(k):
        for qt in range(3):
            hh_, p_, tl_ = k >> 2, (k >> 1) & 1, k & 1
            off = cb_const((4 * p_ + hh_) ^ 4) + (tl_ * 3 + qt) * 1024
            a(f"ds_read_b128 {vr(bset(k)+qt*4,4)}, v{(V_L16, V_VA0, V_VA1)[off >> 16]} offset:{off & 0xffff}")
        if 4 <= k < 8:
            kk = k + 8
            for j2 in range(2):
                a(f"ds_read_b64_tr_b16 {vr(WB+(kk-12)*4+2*j2,2)}, v{woa0} offset:{(WOSLOT[kk>>1]-2)*SLOT + (kk&1)*8192 + j2*4096}")
    def nreads(k): return 3 + (2 if 4 <= k < 8 else 0)
    LA = 3
    for k in range(LA): breads(k)
    for k in range(16):
        if k + LA < 16: breads(k + LA)
        a(f"s_waitcnt lgkmcnt({min(15, sum(nreads(x) for x in range(k + 1, min(16, k + LA + 1))))})")
        af = V_Q + k * 4 if k < 12 else WB + (k - 12) * 4
        for qt in range(3):
            y = YA + qt * 4
            c = "0" if k == 0 else vr(y, 4)
            a(f"v_mfma_f32_16x16x32_bf16 {vr(y,4)}, {vr(af,4)}, {vr(bset(k)+qt*4,4)}, {c}")
    a(f"""s_and_b32 s{S_TAG}, s{S_NONCE}, 0xfff
    s_bfe_u32 s{S_TAG+1}, s{S_NONCE}, 0xc000c
    s_lshr_b64 s[{S_T0}:{S_T1}], s[{S_NONCE}:{S_NONCE+1}], 24
    s_and_b32 s{S_TAG+2}, s{S_T0}, 0xfff
    s_bfe_u32 s{S_TAG+3}, s{S_T0}, 0xc000c
    v_mov_b32 v{V_T}, 0xfff
    s_lshl_b32 s{S_T0}, s2, 3
    s_add_u32 s{S_T0}, s{S_T0}, s{S_WAVE}
    s_mul_i32 s{S_T0}, s{S_T0}, 3072
    s_add_u32 s{S_T0}, s{S_T0}, {YX}
    s_mul_i32 s{S_T1}, s{S_HH}, 3072
    s_add_u32 s{S_T1}, s{S_T1}, {SLOT}
    v_add_u32 v{V_X0+2}, s{S_T1}, v{V_L16}""")
    for i in range(3):
        y = YA + i * 4
        for e in range(4):
            a(f"v_add_u32 v{y+e}, 0x800, v{y+e}")
            a(f"v_bfi_b32 v{y+e}, v{V_T}, s{S_TAG+e}, v{y+e}")
    def ystores(base):
        for i in range(3):
            a(f"buffer_store_dwordx4 {vr(base+i*4,4)}, v{V_L16}, s[{S_WS}:{S_WS+3}], s{S_T0} offen offset:{i*1024} sc1")
    a(f"s_cmp_lg_u32 s{S_P}, 0\ns_cbranch_scc1 L_y1")
    for i in range(3):
        a(f"ds_write_b128 v{V_X0+2}, {vr(YA+i*4,4)} offset:{i*1024}")
    a("s_waitcnt lgkmcnt(0)\ns_barrier\ns_branch L_y2\nL_y1:")
    ystores(YA)
    a("s_barrier")
    for i in range(3):
        a(f"ds_read_b128 {vr(160+i*4,4)}, v{V_X0+2} offset:{i*1024}")
    a(f"s_sub_u32 s{S_T0}, s{S_T0}, {4*3072}\ns_waitcnt lgkmcnt(0)")
    ystores(160)
    a("s_endpgm\nL_y2:")
    stamp(29)
    ys = V_X0
    a(f"""s_cmp_ge_u32 s{S_WAVE}, 3
    s_cbranch_scc1 L_end
    s_andn2_b32 s{S_T0}, s2, 7
    s_lshl_b32 s{S_T0}, s{S_T0}, 3
    s_add_u32 s{S_T0}, s{S_T0}, s{S_HKV}
    s_mul_i32 s{S_T0}, s{S_T0}, 3072
    s_lshl_b32 s{S_T1}, s{S_WAVE}, 10
    s_add_u32 s{S_T0}, s{S_T0}, s{S_T1}
    s_add_u32 s{S_T0}, s{S_T0}, {YX}
    s_mov_b32 s{S_CNT}, 0
    s_mov_b32 s{S_T3}, 0xfffff000
    """)
    if ysent:
        a(f"""    v_mul_u32_u24 v{ys}, {8*3072}, v{V_LANE}
    v_add_u32 v{ys}, 1008, v{ys}
    s_mov_b64 exec, 0xff
    L_ysent:
    buffer_load_dwordx4 {vr(V_T+4,4)}, v{ys}, s[{S_WS}:{S_WS+3}], s{S_T0} offen sc1
    s_add_u32 s{S_CNT}, s{S_CNT}, 1
    s_waitcnt vmcnt(0)
    v_xor_b32 v{V_T+1}, s{S_TAG}, v{V_T+4}
    v_bitop3_b32 v{V_T+1}, v{V_T+1}, v{V_T+5}, s{S_TAG+1} bitop3:0xf6
    v_bitop3_b32 v{V_T+1}, v{V_T+1}, v{V_T+6}, s{S_TAG+2} bitop3:0xf6
    v_and_b32 v{V_T+1}, v{V_T+1}, v{V_T}
    v_cmp_ne_u32 vcc, 0, v{V_T+1}
    s_cmp_gt_u32 s{S_CNT}, 0x10000
    s_cbranch_scc1 L_ysent_x
    s_cbranch_vccnz L_ysent
    L_ysent_x:
    s_mov_b64 exec, -1
    s_mov_b32 s{S_CNT}, 0""")
    a(f"""    L_ypoll:
    s_mov_b32 s{S_T1}, s{S_T0}""")
    YR = 160
    for j in range(8):
        a(f"buffer_load_dwordx4 {vr(YR+j*4,4)}, v{V_L16}, s[{S_WS}:{S_WS+3}], s{S_T1} offen sc1")
        if j < 7:
            a(f"s_add_u32 s{S_T1}, s{S_T1}, {8*3072}")
    for e in range(4):
        a(f"v_mov_b32 v{V_T+1+e}, 0")
    SUMR = 112
    for j in range(8):
        if j % 2 == 0:
            a(f"s_waitcnt vmcnt({6 - j})")
        for e in range(4):
            r = YR + j * 4 + e
            a(f"v_bitop3_b32 v{V_T+1+e}, v{V_T+1+e}, v{r}, s{S_TAG+e} bitop3:0xf6")
            if j == 0:
                a(f"v_and_b32 v{SUMR+e}, s{S_T3}, v{r}")
            else:
                a(f"v_and_b32 v{r}, s{S_T3}, v{r}")
                a(f"v_add_f32 v{SUMR+e}, v{SUMR+e}, v{r}")
    a(f"""v_or3_b32 v{V_T+1}, v{V_T+1}, v{V_T+2}, v{V_T+3}
    v_or_b32 v{V_T+1}, v{V_T+1}, v{V_T+4}
    v_and_b32 v{V_T+1}, v{V_T+1}, v{V_T}
    v_cmp_ne_u32 vcc, 0, v{V_T+1}
    s_cbranch_vccz L_yok
    s_add_u32 s{S_CNT}, s{S_CNT}, 1
    s_cmp_lt_u32 s{S_CNT}, 0x10000
    s_cbranch_scc1 L_ypoll
    L_yok:
    v_cvt_pk_bf16_f32 v{V_T+2}, v{SUMR}, v{SUMR+1}
    v_cvt_pk_bf16_f32 v{V_T+3}, v{SUMR+2}, v{SUMR+3}
    v_lshlrev_b32 v{V_X0}, 10, v{V_Q16}
    v_lshl_add_u32 v{V_X0}, v{V_G}, 3, v{V_X0}
    s_mul_i32 s{S_T0}, s{S_B}, {48*1024}
    s_lshl_b32 s{S_T1}, s{S_WAVE}, 14
    s_add_u32 s{S_T0}, s{S_T0}, s{S_T1}
    s_lshl_b32 s{S_T1}, s{S_S}, 8
    s_add_u32 s{S_T0}, s{S_T0}, s{S_T1}
    s_lshl_b32 s{S_T1}, s{S_HKV}, 5
    s_add_u32 s{S_T0}, s{S_T0}, s{S_T1}
    buffer_store_dwordx2 {vr(V_T+2,2)}, v{V_X0}, s[{S_OUT}:{S_OUT+3}], s{S_T0} offen""")
    if stamps: a("s_waitcnt vmcnt(0)")
    stamp(7)
    a("L_end:\ns_endpgm")

    for qt in range(3):
        a(f"L_rescale{qt}:")
        a("s_nop 7")
        d, al = V_T, V_T + 1
        tile_max(qt, d)
        a(f"""v_max_f32 v{d}, 0, v{d}
        v_sub_f32 v{al}, 0, v{d}
        v_exp_f32 v{al}, v{al}""")
        for i in range(4):
            a(f"v_sub_f32 v{NM(qt)+i}, v{NM(qt)+i}, v{d}")
        for kt in range(2):
            for i in range(4):
                a(f"v_sub_f32 v{S(kt,qt)+i}, v{S(kt,qt)+i}, v{d}")
        a(f"v_mul_f32 v{V_L+qt}, v{V_L+qt}, v{al}")
        for dt in range(8):
            for i in range(4):
                a(f"v_mul_f32 v{O(dt,qt)+i}, v{O(dt,qt)+i}, v{al}")
        for o in sm_ops(qt, False)[:-1]:
            a(o)
        a("s_nop 1")
        a(f"s_setpc_b64 s[{S_RET}:{S_RET+1}]")
    a("L_code_end:")
    a(".fill 2048, 4, 0xBF800000")
    a.end_kernel(MAIN, 256, sgpr=102, accum=256)
    hdr = """Fused GQA block (Q-proj + split-K attention over the KV cache + out-proj), one launch.
Generated by gen/attn5.py (hand-written generator).
kernarg: x, k_cache, v_cache, wq, wo, out, debug, ws"""
    txt = a.text(hdr)
    est = 0
    for l in a.lines:
        t = l.strip()
        if not l.startswith("  ") or t.startswith("."): continue
        est += 4 if (t.startswith("s_") and not t.startswith("s_load") and not t.startswith("s_mem")) else 8
    nld = max(1, int(est * 0.9) // 8192)
    pf = []
    for i in range(nld):
        pf.append(f"  global_load_dword v31, v{t0}, s[{S_ACC}:{S_ACC+1}]")
        pf.append(f"  v_add_u32 v{t0}, 0x2000, v{t0}")
    txt = txt.replace("  PFC_LOADS", "\n".join(pf))
    return txt


if __name__ == "__main__":
    import argparse
    ap = argparse.ArgumentParser()
    ap.add_argument("-o", default="standalone__gqa_block_cached__near_ridge.s")
    ap.add_argument("--stamps", action="store_true")
    ap.add_argument("--kvpol", default="nt")
    ap.add_argument("--wpol", default="")
    ap.add_argument("--thr", type=float, default=256.0)
    ap.add_argument("--depth", type=int, default=5)
    ap.add_argument("--sched", default="3,4,4,4,4")
    ap.add_argument("--nopfc", action="store_true")
    ap.add_argument("--nolad", action="store_true")
    ap.add_argument("--exp", default="")
    ap.add_argument("--norot", action="store_true")
    ap.add_argument("--ekv", type=int, default=2)
    ap.add_argument("--lpoll", default="nt")
    ap.add_argument("--touch", type=int, default=4)
    ap.add_argument("--npro", type=int, default=13)
    ap.add_argument("--noysep", action="store_true")
    ap.add_argument("--qahead", type=int, default=2)
    args = ap.parse_args()
    kw = {}
    if args.nolad: kw["lad"] = None
    if args.exp: kw["exp"] = args.exp.split(",")
    kw["rot"] = not args.norot
    kw["ekv"] = args.ekv
    kw["lpoll"] = args.lpoll
    kw["touch"] = args.touch
    kw["npro"] = args.npro
    kw["ysep"] = not args.noysep
    kw["qahead"] = args.qahead
    open(args.o, "w").write(gen(kvpol=args.kvpol, wpol=args.wpol, stamps=args.stamps, thr=args.thr, depth=args.depth,
                                sched=tuple(int(x) for x in args.sched.split(",")), pf_code=not args.nopfc, **kw))
    print("wrote", args.o)
```

```python
import sys, math, struct
sys.path.insert(0, "gen")
from asmlib import *

QX = 0x0000000
QB = 0x3000000
QREC = 12288
QSTR = 12800
OREC = 6656
OX = 0x0800000
LX = 0x1800000
FX = 0x1900000
YX = 0x2000000
STAMP = 0xF000000
WS_BYTES = 0x10000000

S_X, S_K, S_V, S_WQ, S_WO, S_OUT, S_DBG, S_WS = 4, 8, 12, 16, 20, 24, 28, 32
S_PTR = 40
S_WAVE, S_HH, S_P, S_HKV, S_B, S_S, S_KVB = 56, 57, 58, 59, 60, 61, 62
S_M0B = 63
S_NONCE = 64
S_T0, S_T1, S_T2, S_T3 = 66, 67, 68, 69
S_WQB, S_XB = 70, 71
S_THR = 72
S_WOB = 73
S_T4 = 74
S_RET = 76
S_SUB = 78
S_ACC = 84
S_CNT = 86
S_C = 87
S_TAG = 88
S_ST = 92
S_STB = 94
S_PC = 96
S_XCC = 98
S_LOCAL = 99
S_ROT = 75

V_L16, V_LANE, V_Q16, V_G = 0, 1, 2, 3
V_KA, V_VA0, V_VA1, V_DK, V_DV = 4, 5, 6, 7, 8
V_L, V_U = 9, 12
V_X0 = 15
V_T = 24
V_NM = 32
V_P = 44
V_F = 56
V_S = 88
V_Q = 112
V_O = 160

SLOT = 16384
SLOTMAP = [4, 5, 2, 3, 0, 1, 6, 7, 8, 9]
def slot_of(t): return SLOTMAP[t % 10] * SLOT
XB = 13 * 8192
SCR = XB
MISC = XB + 49152
MISC2 = MISC + 64
def wq_lds(t): return t * 8192 if t < 13 else (t - 13) * 8192
WOSLOT = [6, 7, 8, 9, 4, 5, 2, 3]
LOG2E = 1.4426950408889634
CSCALE = (128 ** -0.5) * LOG2E

def f32bits(x): return struct.unpack("<I", struct.pack("<f", x))[0]
def vr(base, n): return f"v[{base}:{base+n-1}]"

class VM:
    def __init__(self, a):
        self.a = a; self.ops = []
    def issue(self, tag): self.ops.append(tag)
    def count_after(self, tag):
        idx = max(i for i, t in enumerate(self.ops) if t == tag)
        return len(self.ops) - 1 - idx
    def wait(self, tag):
        n = self.count_after(tag)
        assert n <= 63
        self.a(f"s_waitcnt vmcnt({n})")
    def has(self, tag): return tag in self.ops


def gen(kvpol="nt", wpol="", stamps=False, thr=256.0, depth=6, sched=(3, 4, 4, 4, 4), pf_code=True,
        lad=((3, 3, 3, 1, 0), (2, 2, 2, 2, 2)), exp=None, rot=True, ekv=1, lpoll="nt", touch=4, npro=13, ysep=True, ysent=True, qahead=2, krot=0, early=0,
        wosched=((5, range(0, 3)), (6, range(3, 10)), (7, range(10, 16)))):
    a = Asm()
    NST = 40
    def stamp(i, wave=0, cyc=False, reg=None):
        if not stamps: return
        L = a.label("Lst")
        a(f"s_cmp_lg_u32 s{S_WAVE}, {wave}\ns_cbranch_scc1 {L}")
        if reg is None:
            a(f"""{"s_memtime" if cyc else "s_memrealtime"} s[{S_ST}:{S_ST+1}]
            s_waitcnt lgkmcnt(0)""")
            reg = S_ST
        a(f"""v_mov_b32 v22, s{reg}
        v_mov_b32 v23, s{reg+1}
        v_mov_b32 v21, 0
        s_mov_b64 exec, 1
        global_store_dwordx2 v21, v[22:23], s[{S_STB}:{S_STB+1}] offset:{i*8}
        s_mov_b64 exec, -1
        {L}:""")

    def S(kt, qt): return V_S + (kt * 3 + qt) * 4
    def Q(qt, ks): return V_Q + (qt * 4 + ks) * 4
    def O(dt, qt): return V_O + (dt * 3 + qt) * 4
    def NM(qt): return V_NM + qt * 4
    def P(qt): return V_P + qt * 4
    def F(i): return V_F + i * 4
    t0, t1, t2 = V_X0 + 2, V_X0 + 3, V_X0 + 4
    V_DWQ, V_DX = V_X0, V_X0 + 1

    a.begin_kernel(MAIN, 256, 512, 163840, listed=False)
    a(f"""s_cmp_ge_u32 s2, 256
    s_cbranch_scc1 L_end
    s_load_dwordx16 s[{S_PTR}:{S_PTR+15}], s[0:1], 0
    s_memrealtime s[{S_NONCE}:{S_NONCE+1}]
    v_lshrrev_b32 v{t0}, 6, v0
    v_and_b32 v{V_LANE}, 63, v0
    v_readfirstlane_b32 s{S_WAVE}, v{t0}
    v_and_b32 v{V_Q16}, 15, v0
    v_bfe_u32 v{V_G}, v0, 4, 2
    v_lshlrev_b32 v{V_L16}, 4, v{V_LANE}""")
    if pf_code:
        a(f"""s_cmp_lg_u32 s{S_WAVE}, 7
        s_cbranch_scc1 L_pfc_skip
        s_getpc_b64 s[{S_ACC}:{S_ACC+1}]
        v_lshlrev_b32 v{t0}, 7, v{V_LANE}
        PFC_LOADS
        L_pfc_skip:""")
    a(f"""s_and_b32 s{S_HKV}, s2, 7
    s_lshr_b32 s{S_B}, s2, 5
    s_bfe_u32 s{S_S}, s2, 0x20003
    s_and_b32 s{S_HH}, s{S_WAVE}, 3
    s_lshr_b32 s{S_P}, s{S_WAVE}, 2
    s_lshl_b32 s{S_M0B}, s{S_WAVE}, 10""")
    a(f"""s_lshr_b32 s{S_T2}, s{S_HH}, 1
    s_xor_b32 s{S_T3}, s{S_HH}, s{S_T2}
    s_and_b32 s{S_T3}, s{S_T3}, 1
    s_lshl_b32 s{S_T3}, s{S_T3}, 1
    s_or_b32 s{S_T3}, s{S_T3}, s{S_T2}
    v_and_b32 v{t2}, 3, v{V_LANE}
    v_xor_b32 v{t0}, s{S_T3}, v{t2}
    v_lshlrev_b32 v{t0}, 4, v{t0}
    v_lshl_add_u32 v{t0}, v{V_G}, 6, v{t0}
    v_bfe_u32 v{t1}, v{V_LANE}, 2, 2
    v_lshl_add_u32 v{V_DK}, v{t1}, 8, v{t0}
    v_lshl_add_u32 v{V_DX}, v{t1}, 10, v{t0}
    s_lshl_b32 s{S_T2}, s{S_HH}, 12
    v_add_u32 v{V_DX}, s{S_T2}, v{V_DX}""")
    a(f"""v_lshl_add_u32 v{t1}, v{V_G}, 3, v{t1}
    v_and_b32 v{t0}, 1, v{V_G}
    v_lshlrev_b32 v{t0}, 1, v{t0}
    v_xor_b32 v{t0}, v{t0}, v{t2}
    v_lshlrev_b32 v{t0}, 4, v{t0}
    v_lshl_add_u32 v{V_DWQ}, v{t1}, 13, v{t0}
    s_lshl_b32 s{S_WQB}, s{S_HKV}, 2
    s_add_u32 s{S_WQB}, s{S_WQB}, s{S_S}
    s_lshl_b32 s{S_WQB}, s{S_WQB}, 2
    s_add_u32 s{S_WQB}, s{S_WQB}, s{S_HH}
    s_lshl_b32 s{S_WQB}, s{S_WQB}, 6
    s_lshl_b32 s{S_T2}, s{S_P}, 21
    s_add_u32 s{S_WQB}, s{S_WQB}, s{S_T2}
    s_mul_i32 s{S_XB}, s{S_B}, {48*1024}
    s_waitcnt lgkmcnt(0)""")
    a.srd(S_X, S_PTR + 0, 8 * 48 * 512 * 2)
    a.srd(S_WQ, S_PTR + 6, 512 * 4096 * 2)
    V_DWO = V_X0 + 5

    def setup2():
        a.srd(S_WS, S_PTR + 14, WS_BYTES)
        a.srd(S_DBG, S_PTR + 12, 256)
        a(f"""v_add_u32 v{V_DK}, s{S_M0B}, v{V_DK}
        v_mov_b32 v{t0}, 0
        v_lshlrev_b32 v{t1}, 2, v{V_LANE}
        v_add_u32 v{t1}, {MISC}, v{t1}
        ds_write_b32 v{t1}, v{t0}""")
        a(f"""v_bfe_u32 v{t1}, v{V_LANE}, 2, 3
        v_and_b32 v{t2}, 1, v{V_G}
        v_lshlrev_b32 v{t2}, 1, v{t2}
        v_and_b32 v{t0}, 3, v{V_LANE}
        v_xor_b32 v{t0}, v{t0}, v{t2}
        v_lshlrev_b32 v{t0}, 4, v{t0}
        v_lshrrev_b32 v{t2}, 5, v{V_LANE}
        v_lshl_add_u32 v{t0}, v{t2}, 6, v{t0}
        s_and_b32 s{S_T2}, s{S_WAVE}, 1
        s_lshl_b32 s{S_T2}, s{S_T2}, 7
        v_add_u32 v{t0}, s{S_T2}, v{t0}
        s_lshr_b32 s{S_T2}, s{S_WAVE}, 1
        s_lshl_b32 s{S_T3}, s{S_T2}, 3
        v_add_u32 v{t2}, s{S_T3}, v{t1}
        v_lshl_add_u32 v{V_DV}, v{t2}, 8, v{t0}
        v_lshl_add_u32 v{V_DWO}, v{t2}, 10, v{t0}
        v_subrev_u32 v{V_L}, 4096, v{V_DK}
        v_subrev_u32 v{V_L+1}, 4096, v{V_DV}""")
        a(f"s_mul_i32 s{S_ROT}, s2, {krot}\ns_lshr_b32 s{S_ROT}, s{S_ROT}, 3\ns_and_b32 s{S_ROT}, s{S_ROT}, 15\ns_lshl_b32 s{S_ROT}, s{S_ROT}, 13")
        a.srd(S_K, S_PTR + 2, 0x2000000)
        a.srd(S_V, S_PTR + 4, 0x2000000)
        a.srd(S_WO, S_PTR + 8, 4096 * 512 * 2)
        a.srd(S_OUT, S_PTR + 10, 8 * 48 * 512 * 2)
        a(f"""s_lshl_b32 s{S_KVB}, s{S_B}, 3
        s_add_u32 s{S_KVB}, s{S_KVB}, s{S_HKV}
        s_lshl_b32 s{S_KVB}, s{S_KVB}, 19
        s_lshl_b32 s{S_T2}, s{S_S}, 17
        s_add_u32 s{S_KVB}, s{S_KVB}, s{S_T2}""")
        a(f"""v_lshrrev_b32 v{t0}, 2, v{V_Q16}
        v_lshrrev_b32 v{t1}, 1, v{t0}
        v_xor_b32 v{t2}, v{t0}, v{t1}
        v_and_b32 v{t2}, 1, v{t2}
        v_lshl_or_b32 v{t1}, v{t2}, 1, v{t1}
        v_xor_b32 v{t1}, v{t1}, v{V_G}
        v_lshlrev_b32 v{t0}, 10, v{t0}
        v_lshl_add_u32 v{t0}, v{t1}, 4, v{t0}
        v_and_b32 v{t1}, 3, v{V_Q16}
        v_lshl_add_u32 v{V_KA}, v{t1}, 6, v{t0}""")
        a(f"""v_lshrrev_b32 v{t0}, 5, v{V_LANE}
        v_lshlrev_b32 v{t0}, 11, v{t0}
        v_bfe_u32 v{t1}, v{V_LANE}, 2, 3
        v_lshl_add_u32 v{t0}, v{t1}, 6, v{t0}
        v_and_b32 v{t1}, 1, v{V_G}
        v_lshl_add_u32 v{t0}, v{t1}, 5, v{t0}
        v_and_b32 v{t1}, 3, v{V_LANE}
        v_lshl_add_u32 v{V_VA0}, v{t1}, 3, v{t0}
        v_xor_b32 v{V_VA1}, 32, v{V_VA0}
        s_mov_b32 s{S_THR}, {f32bits(thr):#x}
        s_mov_b32 s{S_C}, {f32bits(CSCALE):#x}""")
        L = a.label("Lpc")
        a(f"s_getpc_b64 s[{S_PC}:{S_PC+1}]\n{L}:")
        for qt in range(3):
            a(f"""s_add_u32 s{S_SUB+2*qt}, s{S_PC}, L_rescale{qt}-{L}
            s_addc_u32 s{S_SUB+2*qt+1}, s{S_PC+1}, 0""")
        a(f"""s_lshl_b32 s{S_WOB}, s{S_HKV}, 19
        s_lshl_b32 s{S_T2}, s{S_S}, 8
        s_add_u32 s{S_WOB}, s{S_WOB}, s{S_T2}""")
        if stamps:
            a(f"""s_mul_i32 s{S_T2}, s2, {NST*8}
            s_add_u32 s{S_STB}, s{S_PTR+14}, {STAMP:#x}
            s_addc_u32 s{S_STB+1}, s{S_PTR+15}, 0
            s_add_u32 s{S_STB}, s{S_STB}, s{S_T2}
            s_addc_u32 s{S_STB+1}, s{S_STB+1}, 0""")

    def dma(vm, tag, lds_off, srd, vo, sbase, soff, pol):
        a(f"s_add_u32 s{S_T2}, s{S_M0B}, {lds_off & 0xffffffff:#x}")
        a(f"s_mov_b32 m0, s{S_T2}")
        a(f"s_add_u32 s{S_T3}, s{sbase}, {soff:#x}")
        a(f"buffer_load_dwordx4 v{vo}, s[{srd}:{srd+3}], s{S_T3} offen {pol} lds")
        vm.issue(tag)
    def dma_piece(vm, n, both=False):
        t, isv = n >> 1, n & 1
        slot = slot_of(t) + isv * 8192
        srd, vo, vo2 = (S_V, V_DV, V_L + 1) if isv else (S_K, V_DK, V_L)
        if krot:
            a(f"""s_add_u32 s{S_T3}, s{S_ROT}, {t*8192}
            s_and_b32 s{S_T3}, s{S_T3}, 0x1ffff
            s_add_u32 m0, s{S_M0B}, {slot:#x}
            s_add_u32 s{S_T3}, s{S_T3}, s{S_KVB}
            buffer_load_dwordx4 v{vo}, s[{srd}:{srd+3}], s{S_T3} offen {kvpol} lds""")
            vm.issue(("kv", n))
            if both:
                a(f"""s_add_u32 m0, s{S_M0B}, {(slot - 4096) & 0xffffffff:#x}
                s_nop 0
                buffer_load_dwordx4 v{vo2}, s[{srd}:{srd+3}], s{S_T3} offen {kvpol} lds""")
                vm.issue(("kv", n))
            return
        dma(vm, ("kv", n), slot, srd, vo, S_KVB, t * 8192, kvpol)
        if both:
            dma(vm, ("kv", n), slot - 4096, srd, vo2, S_KVB, t * 8192, kvpol)
    def dma_wo(vm, n):
        k, chf = n >> 1, n & 1
        dma(vm, ("wo", n), WOSLOT[k] * SLOT + chf * 8192, S_WO, V_DWO, S_WOB, n * 32768, wpol)

    def touch_ld(vm, n):
        rec, base, nl = ((OREC, OX, 52), (3072, YX, 24))[n]
        a(f"""v_lshlrev_b32 v{V_X0+4}, 7, v{V_LANE}
        s_lshl_b32 s{S_T2}, s2, 3
        s_add_u32 s{S_T2}, s{S_T2}, s{S_WAVE}
        s_mul_i32 s{S_T3}, s{S_T2}, {rec}
        s_add_u32 s{S_T3}, s{S_T3}, {base}
        s_bfm_b64 exec, {nl}, 0
        buffer_load_dword v{V_DK}, v{V_X0+4}, s[{S_WS}:{S_WS+3}], s{S_T3} offen
        s_mov_b64 exec, -1
        s_nop 3""")
        vm.issue(("pt", n))

    def xlane(op, x, ta, tb):
        a(f"""v_mov_b32 v{ta}, v{x}
        v_mov_b32 v{tb}, v{x}
        s_nop 1
        v_permlane16_swap_b32 v{ta}, v{tb}
        s_nop 1
        {op} v{ta}, v{ta}, v{tb}
        v_mov_b32 v{tb}, v{ta}
        s_nop 1
        v_permlane32_swap_b32 v{ta}, v{tb}
        s_nop 1
        {op} v{x}, v{ta}, v{tb}""")

    def k_read(idx):
        kt, ks = idx >> 2, idx & 3
        return f"ds_read_b128 {vr(F(idx),4)}, v{V_KA} offset:{kt*4096 + ks*256}"
    def v_read(dt, j2):
        ad = V_VA1 if (dt & 1) else V_VA0
        return f"ds_read_b64_tr_b16 {vr(F(dt)+2*j2,2)}, v{ad} offset:{8192 + j2*4096 + (dt>>2)*1024 + ((dt>>1)&1)*512}"
    def qk_mfma(idx, qt, first):
        kt, ks = idx >> 2, idx & 3
        c = ("0" if first else vr(NM(qt), 4)) if ks == 0 else vr(S(kt, qt), 4)
        return f"v_mfma_f32_16x16x32_bf16 {vr(S(kt,qt),4)}, {vr(F(idx),4)}, {vr(Q(qt,ks),4)}, {c}"
    def pv_mfma(dt, qt, first):
        c = "0" if first else vr(O(dt, qt), 4)
        return f"v_mfma_f32_16x16x32_bf16 {vr(O(dt,qt),4)}, {vr(F(dt),4)}, {vr(P(qt),4)}, {c}"
    def sm_ops(qt, check):
        T, u = V_T, V_U + qt
        ex = [f"v_exp_f32 v{T+kt*4+i}, v{S(kt,qt)+i}" for kt in range(2) for i in range(4)]
        ops = ex[0:4] + [f"v_add_f32 v{u}, v{T}, v{T+1}", f"v_cvt_pk_bf16_f32 v{P(qt)}, v{T}, v{T+1}",
                         f"v_add_f32 v{u}, v{u}, v{T+2}"] + ex[4:6] + \
              [f"v_cvt_pk_bf16_f32 v{P(qt)+1}, v{T+2}, v{T+3}", f"v_add_f32 v{u}, v{u}, v{T+3}"] + ex[6:8] + \
              [f"v_add_f32 v{u}, v{u}, v{T+4}", f"v_cvt_pk_bf16_f32 v{P(qt)+2}, v{T+4}, v{T+5}",
               f"v_add_f32 v{u}, v{u}, v{T+5}", f"v_add_f32 v{u}, v{u}, v{T+6}",
               f"v_cvt_pk_bf16_f32 v{P(qt)+3}, v{T+6}, v{T+7}", f"v_add_f32 v{u}, v{u}, v{T+7}"]
        if check:
            L = a.label("Lok")
            ops.append(f"""v_cmp_lt_f32 vcc, s{S_THR}, v{u}
            s_cbranch_vccz {L}
            s_swappc_b64 s[{S_RET}:{S_RET+1}], s[{S_SUB+2*qt}:{S_SUB+2*qt+1}]
            {L}:""")
        ops.append(f"v_add_f32 v{V_L+qt}, v{V_L+qt}, v{u}")
        return ops
    def tile_max(qt, d):
        s0, s1 = S(0, qt), S(1, qt)
        a(f"""v_max3_f32 v{d}, v{s0}, v{s0+1}, v{s0+2}
        v_max3_f32 v{d}, v{d}, v{s0+3}, v{s1}
        v_max3_f32 v{d}, v{d}, v{s1+1}, v{s1+2}
        v_max_f32 v{d}, v{d}, v{s1+3}""")
        xlane("v_max_f32", d, V_T + 6, V_T + 7)
    def init_max(qt):
        d = V_T
        tile_max(qt, d)
        for i in range(4):
            a(f"v_sub_f32 v{NM(qt)+i}, 0, v{d}")
        for kt in range(2):
            for i in range(4):
                a(f"v_sub_f32 v{S(kt,qt)+i}, v{S(kt,qt)+i}, v{d}")
        a(f"v_mov_b32 v{V_L+qt}, 0")
    def interleave(mf, fill, lead=0):
        nm = len(mf); slots = nm - lead; k = 0
        for i, m in enumerate(mf):
            a(m)
            if i >= lead:
                tgt = (len(fill) * (i - lead + 1) + slots - 1) // slots
                while k < tgt:
                    a(fill[k]); k += 1
        while k < len(fill):
            a(fill[k]); k += 1
    def capture(fn):
        sv = a.lines; a.lines = []
        fn()
        out = "\n".join(l.strip() for l in a.lines); a.lines = sv
        return out

    NPRO = npro
    plan = {}
    nxt = NPRO
    for r, c in enumerate(sched):
        plan[r] = [("kv", x) for x in range(nxt, min(nxt + c, 32))]; nxt += c
    assert nxt >= 32
    for r, lst in plan.items():
        for _, pc in lst:
            t = pc >> 1
            assert t < 10 or (t - 10) // 2 < r, (r, pc)
    if touch & 1:
        plan.setdefault(7, []); plan[7] += [("pt", 0)]
    for r, lst in wosched:
        plan.setdefault(r, [])
        plan[r] += [("wo", x) for x in lst]
    if touch & 2:
        plan[7] += [("pt", 1)]

    vq = VM(a)
    n = V_T
    S_R0, S_R1, S_R2 = S_TAG, S_TAG + 1, S_TAG + 2
    if stamps: a(f"s_memrealtime s[{S_RET}:{S_RET+1}]")
    a(f"s_mul_i32 s{S_R0}, s{S_S}, 3\ns_lshr_b32 s{S_R0}, s{S_R0}, 1" if rot else f"s_mov_b32 s{S_R0}, 0")
    a(f"s_mov_b32 s{S_CNT}, 0\nL_xl:")
    a(f"""s_lshl_b32 s{S_T0}, s{S_R0}, 1
    s_add_u32 s{S_T0}, s{S_T0}, s{S_P}
    s_mul_i32 s{S_T1}, s{S_T0}, 11
    s_lshr_b32 s{S_T1}, s{S_T1}, 5
    s_mul_i32 s{S_T2}, s{S_T1}, 3
    s_sub_u32 s{S_T2}, s{S_T0}, s{S_T2}
    s_lshl_b32 s{S_T2}, s{S_T2}, 14
    s_lshl_b32 s{S_T1}, s{S_T1}, 8
    s_add_u32 s{S_T2}, s{S_T2}, s{S_T1}
    s_lshl_b32 s{S_T3}, s{S_R0}, 13
    s_add_u32 s{S_T3}, s{S_T3}, s{S_M0B}
    s_add_u32 m0, s{S_T3}, {XB}
    s_add_u32 s{S_T2}, s{S_T2}, s{S_XB}
    buffer_load_dwordx4 v{V_DX}, s[{S_X}:{S_X+3}], s{S_T2} offen {wpol} lds
    s_add_u32 s{S_R0}, s{S_R0}, 1
    s_cmp_eq_u32 s{S_R0}, 6
    s_cselect_b32 s{S_R0}, 0, s{S_R0}
    s_add_u32 s{S_CNT}, s{S_CNT}, 1
    s_cmp_lt_u32 s{S_CNT}, 6
    s_cbranch_scc1 L_xl""")
    for _ in range(6): vq.issue("x")
    a(f"""s_lshl_b32 s{S_R1}, s{S_WAVE}, 13
    s_mov_b32 s{S_R2}, {"s%d" % S_B if rot else "0"}""")
    def dma_wq(i):
        a(f"""s_add_u32 s{S_T0}, s{S_R2}, {i}
        s_and_b32 s{S_T0}, s{S_T0}, 7
        s_lshl_b32 s{S_T0}, s{S_T0}, 18
        s_add_u32 m0, s{S_R1}, {(i % 4) * 2048}
        s_add_u32 s{S_T0}, s{S_T0}, s{S_WQB}
        buffer_load_dwordx4 v{V_DWQ}, s[{S_WQ}:{S_WQ+3}], s{S_T0} offen {wpol} lds
        s_add_u32 m0, s{S_R1}, {(i % 4) * 2048 + 1024}
        s_add_u32 s{S_T0}, s{S_T0}, 0x8000
        buffer_load_dwordx4 v{V_DWQ}, s[{S_WQ}:{S_WQ+3}], s{S_T0} offen {wpol} lds""")
        vq.issue(("w", i)); vq.issue(("w", i))
    for i in range(2): dma_wq(i)
    if stamps: a(f"s_memrealtime s[{S_ACC}:{S_ACC+1}]")
    setup2()
    a(f"""s_lshl_b32 s{S_T2}, s{S_B}, 3
    v_mov_b32 v{n+4}, s{S_T2}
    s_and_b32 s{S_T2}, s2, 31
    s_lshl_b32 s{S_T2}, s{S_T2}, 3
    s_add_u32 s{S_T2}, s{S_T2}, s{S_WAVE}
    s_cmp_lg_u32 s{S_T2}, 4
    s_cbranch_scc1 L_nonce_skip
    s_or_b32 s{S_T2}, s{S_NONCE}, 1
    v_mov_b32 v{n}, s{S_T2}
    v_mov_b32 v{n+1}, s{S_NONCE+1}
    s_mov_b64 exec, 1
    buffer_store_dwordx2 {vr(n,2)}, v{n+4}, s[{S_DBG}:{S_DBG+3}], 0 offen sc1
    s_mov_b64 exec, -1
    L_nonce_skip:""")
    wa0, wa1, xa = V_U, V_U + 1, V_U + 2
    a(f"""v_lshrrev_b32 v{t0}, 2, v{V_LANE}
    v_lshlrev_b32 v{t0}, 6, v{t0}
    v_and_b32 v{t1}, 1, v{V_G}
    v_lshl_add_u32 v{t0}, v{t1}, 5, v{t0}
    v_and_b32 v{t1}, 3, v{V_LANE}
    v_lshl_add_u32 v{t0}, v{t1}, 3, v{t0}
    v_add_u32 v{wa0}, s{S_R1}, v{t0}
    v_xor_b32 v{wa1}, 32, v{wa0}
    s_mul_i32 s{S_T2}, s{S_P}, {2*3*4096}
    s_add_u32 s{S_T2}, s{S_T2}, {XB}
    v_add_u32 v{xa}, s{S_T2}, v{V_KA}""")
    if stamps:
        a("s_waitcnt lgkmcnt(0)")
        stamp(0, 0, reg=S_NONCE); stamp(9); stamp(10, 0, reg=S_RET); stamp(11, 0, reg=S_ACC)
    QA = 32
    FR = 64
    def fs(i): return FR + (i % 3) * 20
    extra_p1 = [0]
    def q_reads(i):
        b_ = fs(i)
        if extra_p1[0]:
            La, Lb = a.label("Lw"), a.label("Lw")
            nn = vq.count_after(("w", i))
            a(f"""s_cmp_eq_u32 s{S_P}, 0
            s_cbranch_scc1 {La}
            s_waitcnt vmcnt({nn + extra_p1[0] + (1 if touch & 4 else 0)})
            s_branch {Lb}
            {La}:
            s_waitcnt vmcnt({nn})
            {Lb}:""")
        else:
            vq.wait(("w", i))
        a(f"""s_add_u32 s{S_T0}, s{S_R2}, {i}
        s_bfe_u32 s{S_T1}, s{S_T0}, 0x10002
        s_mul_i32 s{S_T1}, s{S_T1}, 12288
        s_and_b32 s{S_T0}, s{S_T0}, 3
        s_lshl_b32 s{S_T0}, s{S_T0}, 8
        s_add_u32 s{S_T0}, s{S_T0}, s{S_T1}
        v_add_u32 v{t0}, s{S_T0}, v{xa}""")
        for u in range(2):
            for j2 in range(2):
                a(f"ds_read_b64_tr_b16 {vr(b_+u*4+2*j2,2)}, v{wa1 if u else wa0} offset:{(i%4)*2048 + j2*1024}")
        for qt in range(3):
            a(f"ds_read_b128 {vr(b_+8+qt*4,4)}, v{t0} offset:{qt*4096}")
    vq.wait("x")
    a("s_waitcnt lgkmcnt(0)")
    stamp(18)
    a("s_barrier")
    stamp(12)
    for i in range(2, 4): dma_wq(i)
    q_reads(0)
    vmk = VM(a)
    for i in range(8):
        if i + 1 < 8: q_reads(i + 1)
        a(f"s_waitcnt lgkmcnt({7 if i + 1 < 8 else 0})")
        if i + 4 < 8:
            dma_wq(i + 4)
        if i == 3 and early:
            a(f"s_cmp_eq_u32 s{S_P}, 0\ns_cbranch_scc1 L_ekv_skip")
            for pc in range(early): dma_piece(vmk, pc, True)
            a("L_ekv_skip:")
            extra_p1[0] = 2 * early
        if i == 3:
            a(f"""s_cmp_lg_u32 s{S_WAVE}, 0
            s_cbranch_scc1 L_nonce_skip1
            buffer_load_dwordx2 {vr(n,2)}, v{n+4}, s[{S_DBG}:{S_DBG+3}], 0 offen sc1
            L_nonce_skip1:""")
            if touch & 4:
                a(f"""s_cmp_eq_u32 s{S_P}, 0
                s_cbranch_scc1 L_qt_skip
                v_lshlrev_b32 v61, 7, v{V_LANE}
                s_mul_i32 s{S_T2}, s2, {QSTR}
                s_mul_i32 s{S_T3}, s{S_HH}, 3200
                s_add_u32 s{S_T2}, s{S_T2}, s{S_T3}
                s_bfm_b64 exec, 25, 0
                buffer_load_dword v31, v61, s[{S_WS}:{S_WS+3}], s{S_T2} offen
                s_mov_b64 exec, -1
                L_qt_skip:""")
        b_ = fs(i)
        for u in range(2):
            for qt in range(3):
                y = QA + (u * 3 + qt) * 4
                cc = "0" if i == 0 else vr(y, 4)
                a(f"v_mfma_f32_16x16x32_bf16 {vr(y,4)}, {vr(b_+u*4,4)}, {vr(b_+8+qt*4,4)}, {cc}")
    stamp(15)
    a(f"""v_add_u32 v{t0}, s{S_R1}, v{V_L16}
    s_xor_b32 s{S_T2}, s{S_R1}, 0x8000
    v_add_u32 v{t1}, s{S_T2}, v{V_L16}
    s_cmp_lg_u32 s{S_WAVE}, 0
    s_cbranch_scc1 L_nonce_skip2
    s_mov_b32 s{S_CNT}, 0
    L_nonce_retry:
    s_waitcnt vmcnt(0)
    v_readfirstlane_b32 s{S_T2}, v{n}
    s_add_u32 s{S_CNT}, s{S_CNT}, 1
    s_cmp_lg_u32 s{S_T2}, 0
    s_cbranch_scc1 L_nonce_ok
    s_cmp_gt_u32 s{S_CNT}, 0x10000
    s_cbranch_scc1 L_nonce_ok
    buffer_load_dwordx2 {vr(n,2)}, v{n+4}, s[{S_DBG}:{S_DBG+3}], 0 offen sc1
    s_branch L_nonce_retry
    L_nonce_ok:
    v_mov_b32 v{n+2}, {MISC}
    ds_write_b64 v{n+2}, {vr(n,2)}
    L_nonce_skip2:
    s_nop 4
    s_cmp_lg_u32 s{S_P}, 0
    s_cbranch_scc1 L_role1""")

    for p in range(2):
        vm = VM(a)
        if p == 1: vm.ops = list(vmk.ops) + (["pt"] if touch & 4 else [])
        a(f"L_role{p}:")
        for qt in range(3):
            a(f"ds_write_b128 v{t0}, {vr(QA+((1-p)*3+qt)*4,4)} offset:{qt*1024}")
        a(f"v_mov_b32 v{V_T+2}, {MISC}\ns_waitcnt lgkmcnt(0)\ns_barrier")
        RC = 64
        for qt in range(3):
            a(f"ds_read_b128 {vr(RC+qt*4,4)}, v{t1} offset:{qt*1024}")
        a(f"ds_read_b64 {vr(V_T,2)}, v{V_T+2}")
        G = 48
        a(f"""s_lshl_b32 s{S_T3}, s{S_HH}, 10
        s_add_u32 s{S_T2}, s{S_T3}, {SCR + p*512}
        v_lshrrev_b32 v{t0}, 1, v{V_G}
        v_lshlrev_b32 v{t0}, 8, v{t0}
        v_lshl_add_u32 v{t0}, v{V_Q16}, 4, v{t0}
        v_and_b32 v{t1}, 1, v{V_G}
        v_lshl_add_u32 v{t0}, v{t1}, 3, v{t0}
        v_add_u32 v{t0}, s{S_T2}, v{t0}
        s_getreg_b32 s{S_XCC}, hwreg(HW_REG_XCC_ID)
        s_and_b32 s{S_XCC}, s{S_XCC}, 15
        s_waitcnt lgkmcnt(0)""")
        if exp and "fakexcc" in exp:
            a(f"s_lshr_b32 s{S_XCC}, s2, 3")
        for qt in range(3):
            for i in range(4):
                a(f"v_add_f32 v{RC+qt*4+i}, v{RC+qt*4+i}, v{QA+(p*3+qt)*4+i}")
                a(f"v_mul_f32 v{RC+qt*4+i}, s{S_C}, v{RC+qt*4+i}")
            g = 80 + qt * 2
            a(f"""v_cvt_pk_bf16_f32 v{g}, v{RC+qt*4}, v{RC+qt*4+1}
            v_cvt_pk_bf16_f32 v{g+1}, v{RC+qt*4+2}, v{RC+qt*4+3}
            ds_write_b64 v{t0}, {vr(g,2)} offset:{qt*4096}""")
        a(f"""s_waitcnt lgkmcnt(0)
        s_barrier
        v_readfirstlane_b32 s{S_NONCE}, v{V_T}
        v_readfirstlane_b32 s{S_NONCE+1}, v{V_T+1}""")
        if p == 0: stamp(8)
        if exp and "stopq" in exp:
            a("s_waitcnt vmcnt(0)\ns_endpgm")
        for x in (V_KA, V_VA0, V_VA1):
            a(f"v_add_u32 v{x}, {slot_of(p)}, v{x}")
        qst = V_X0 + 1
        a(f"""s_sub_u32 s{S_T0}, s{S_HH}, s{S_S}
        s_and_b32 s{S_T0}, s{S_T0}, 3
        s_mul_i32 s{S_T0}, s{S_T0}, 12288
        s_add_u32 s{S_T0}, s{S_T0}, {SCR}
        v_add_u32 v{qst}, s{S_T0}, v{V_L16}""")
        if p == 0:
            sa = V_X0
            FL = 60
            a(f"""s_mul_i32 s{S_T4}, s{S_HH}, 3072
            s_add_u32 s{S_T1}, s{S_T4}, {SCR}
            v_add_u32 v{t0}, s{S_T1}, v{V_L16}""")
            for i in range(3):
                a(f"ds_read_b128 {vr(G+i*4,4)}, v{t0} offset:{i*1024}")
            a(f"""s_mul_i32 s{S_T0}, s2, {QSTR}
            s_add_u32 s{S_T1}, s{S_T0}, s{S_T4}
            s_lshl_b32 s{S_T2}, s{S_HH}, 7
            s_add_u32 s{S_T2}, s{S_T2}, s{S_T0}
            s_add_u32 s{S_T2}, s{S_T2}, {QREC}
            v_mov_b32 v{FL}, v{V_T}
            v_mov_b32 v{FL+1}, v{V_T+1}
            v_mov_b32 v{FL+2}, s{S_XCC}
            v_mov_b32 v{FL+3}, 0
            v_bfe_u32 v{sa}, v{V_LANE}, 2, 2
            v_mul_u32_u24 v{sa}, {8*QSTR}, v{sa}
            v_and_b32 v{t1}, 3, v{V_LANE}
            v_lshl_add_u32 v{sa}, v{t1}, 7, v{sa}
            s_mov_b32 s{S_T3}, {QB - QX:#x}
            v_mul_lo_u32 v{t1}, v{V_G}, s{S_T3}
            v_add_u32 v{sa}, v{sa}, v{t1}
            s_andn2_b32 s{S_T0}, s2, 24
            s_mul_i32 s{S_T0}, s{S_T0}, {QSTR}
            s_add_u32 s{S_T3}, s{S_T0}, {QREC}
            s_waitcnt lgkmcnt(0)""")
            def q_publish(pol):
                for i in range(3):
                    a(f"buffer_store_dwordx4 {vr(G+i*4,4)}, v{V_L16}, s[{S_WS}:{S_WS+3}], s{S_T1} offen offset:{i*1024} {pol}")
                a(f"""s_waitcnt vmcnt(0)
                s_mov_b64 exec, 1
                buffer_store_dwordx4 {vr(FL,4)}, v{V_L16}, s[{S_WS}:{S_WS+3}], s{S_T2} offen {pol}""")
            if not (exp and "noA" in exp):
                q_publish("")
            a("s_mov_b64 exec, -1")
            stamp(1)
            a(f"""s_mov_b32 s{S_CNT}, 0
            s_mov_b64 exec, 0xffff
            L_qs1:
            buffer_load_dwordx4 {vr(V_T+4,4)}, v{sa}, s[{S_WS}:{S_WS+3}], s{S_T3} offen {lpoll}
            s_add_u32 s{S_CNT}, s{S_CNT}, 1
            s_waitcnt vmcnt(0)
            v_cmp_eq_u64 vcc, s[{S_NONCE}:{S_NONCE+1}], {vr(V_T+4,2)}
            v_cmp_eq_u32 s[{S_ACC}:{S_ACC+1}], s{S_XCC}, v{V_T+6}
            s_andn2_b32 s{S_ACC+1}, vcc_lo, s{S_ACC}
            s_cbranch_scc1 L_qremote
            s_cmp_eq_u32 vcc_lo, 0xffff
            s_cbranch_scc1 L_qlocal
            s_cmp_lt_u32 s{S_CNT}, 10
            s_cbranch_scc1 L_qs1
            L_qremote:
            s_mov_b64 exec, -1
            s_add_u32 s{S_T1}, s{S_T1}, {QB - QX:#x}
            s_add_u32 s{S_T2}, s{S_T2}, {QB - QX:#x}""")
            q_publish("sc1")
            a(f"""s_mov_b64 exec, 0xffffffff
            L_qs2:
            buffer_load_dwordx4 {vr(V_T+4,4)}, v{sa}, s[{S_WS}:{S_WS+3}], s{S_T3} offen sc1
            s_add_u32 s{S_CNT}, s{S_CNT}, 1
            s_waitcnt vmcnt(0)
            v_cmp_eq_u64 vcc, s[{S_NONCE}:{S_NONCE+1}], {vr(V_T+4,2)}
            v_cmp_eq_u32 s[{S_ACC}:{S_ACC+1}], s{S_XCC}, v{V_T+6}
            s_and_b32 s{S_ACC}, s{S_ACC}, vcc_lo
            s_and_b32 s{S_ACC}, s{S_ACC}, 0xffff
            s_cmp_eq_u32 s{S_ACC}, 0xffff
            s_cbranch_scc1 L_qlocal
            s_lshr_b32 s{S_ACC}, vcc_lo, 16
            s_cmp_eq_u32 s{S_ACC}, 0xffff
            s_cbranch_scc1 L_qfar
            s_cmp_lt_u32 s{S_CNT}, 0x8000
            s_cbranch_scc1 L_qs2
            L_qfar:
            s_mov_b32 s{S_LOCAL}, 1
            s_add_u32 s{S_T0}, s{S_T0}, {QB - QX:#x}
            s_branch L_qgo
            L_qlocal:
            s_mov_b32 s{S_LOCAL}, 3
            L_qgo:
            s_mov_b64 exec, -1
            v_mov_b32 v{V_T+4}, s{S_LOCAL}
            s_lshl_b32 s{S_T2}, s{S_HH}, 2
            s_add_u32 s{S_T2}, s{S_T2}, {MISC2}
            v_mov_b32 v{V_T+5}, s{S_T2}
            ds_write_b32 v{V_T+5}, v{V_T+4}
            s_add_u32 s{S_T0}, s{S_T0}, s{S_T4}
            s_add_u32 s{S_T4}, s{S_T4}, {SCR}""")
            if stamps:
                a(f"s_mov_b32 s{S_ACC}, s{S_CNT}\ns_mov_b32 s{S_ACC+1}, 0")
                stamp(17, 1, reg=S_ACC); stamp(16, 1)
            a(f"s_cmp_eq_u32 s{S_LOCAL}, 3\ns_cbranch_scc1 L_qld_local")
            for fl in ("sc1", ""):
                if not fl: a("L_qld_local:")
                for j in range(1, 4):
                    a(f"""s_add_u32 s{S_T1}, s{S_S}, {j}
                    s_and_b32 s{S_T1}, s{S_T1}, 3
                    s_mul_i32 s{S_T1}, s{S_T1}, {8*QSTR}
                    s_add_u32 s{S_T2}, s{S_T4}, {j*12288}
                    s_mov_b32 m0, s{S_T2}
                    s_add_u32 s{S_T1}, s{S_T1}, s{S_T0}""")
                    for i in range(3):
                        a(f"buffer_load_dwordx4 v{V_L16}, s[{S_WS}:{S_WS+3}], s{S_T1} offen offset:{i*1024} {fl} lds")
                if fl: a("s_branch L_qld_done")
            a(f"""L_qld_done:
            v_mov_b32 v{V_T+4}, {MISC2}
            s_waitcnt vmcnt(0) lgkmcnt(0)""")
            vm.ops = []
            stamp(28, 1)
            stamp(2)
            a("s_barrier")
            a(f"ds_read_b128 {vr(V_T,4)}, v{V_T+4}")
            for i in range(12):
                a(f"ds_read_b128 {vr(V_Q+i*4,4)}, v{qst} offset:{i*1024}")
            a("s_waitcnt lgkmcnt(0)\ns_barrier")
            for idx in range(8): a(k_read(idx))
        else:
            a(f"v_mov_b32 v{V_T+4}, {MISC2}\ns_mov_b32 s{S_CNT}, 0")
            for pc in range(early, early + ekv): dma_piece(vm, pc, True)
            for pc in range(early + ekv, NPRO):
                L = a.label("Lgo")
                a(f"""s_cmp_lg_u32 s{S_CNT}, 0
                s_cbranch_scc1 {L}
                ds_read_b128 {vr(V_T,4)}, v{V_T+4}
                s_waitcnt vmcnt({max(depth-2,0)}) lgkmcnt(0)
                v_and_b32 v{V_T}, v{V_T}, v{V_T+1}
                v_and_b32 v{V_T+2}, v{V_T+2}, v{V_T+3}
                v_and_b32 v{V_T}, v{V_T}, v{V_T+2}
                s_nop 0
                v_readfirstlane_b32 s{S_CNT}, v{V_T}
                {L}:""")
                dma_piece(vm, pc, True)
            stamp(19, 4)
            if vm.has(("kv", 3)): vm.wait(("kv", 3))
            a(f"v_mov_b32 v{V_T+4}, {MISC2}")
            a("s_barrier")
            a(f"ds_read_b128 {vr(V_T,4)}, v{V_T+4}")
            for i in range(12):
                a(f"ds_read_b128 {vr(V_Q+i*4,4)}, v{qst} offset:{i*1024}")
            a("s_waitcnt lgkmcnt(0)\ns_barrier")
            for idx in range(8): a(k_read(idx))
        a(f"""v_and_b32 v{V_T}, v{V_T}, v{V_T+1}
        v_and_b32 v{V_T+2}, v{V_T+2}, v{V_T+3}
        v_and_b32 v{V_T}, v{V_T}, v{V_T+2}
        v_lshrrev_b32 v{V_T}, 1, v{V_T}
        s_nop 0
        v_readfirstlane_b32 s{S_LOCAL}, v{V_T}""")
        if exp and "nolocal" in exp:
            a(f"s_mov_b32 s{S_LOCAL}, 0")
        def pr(i):
            if lad: a(f"s_setprio {lad[p][i]}")
        WA = V_Q
        woa0, woa1 = V_X0, V_X0 + 1
        for r in range(8):
            t = 2 * r + p
            first = (r == 0)
            if r > 0:
                need = ("kv", 4 * r + 3)
                if vm.has(need): vm.wait(need)
                a("s_barrier")
                if p == 0:
                    stamp(30 + r, 0)
                    if r == 4: stamp(38, 0, True)
                    if r == 7: stamp(39, 0, True)
            pr(0)
            if r > 0 and p == 0:
                for idx in range(8): a(k_read(idx))
            dm = [capture(lambda: {"kv": dma_piece, "wo": dma_wo, "pt": touch_ld}[k](vm, x)) for k, x in plan.get(r, [])]
            h = (len(dm) + 1) // 2
            if p == 1 and r > 0:
                f1 = (r == 1)
                interleave([pv_mfma(dt, 0, f1) for dt in range(8)], dm[:h])
                interleave([pv_mfma(dt, 1, f1) for dt in range(8)], dm[h:])
                for dt in range(8):
                    a(pv_mfma(dt, 2, f1)); a(k_read(dt))
                dm = []
            elif r == 0 or r == 7:
                for d in dm: a(d)
                dm = []
            pr(1)
            for idx in range(8):
                a(f"s_waitcnt lgkmcnt({7-idx})")
                a(qk_mfma(idx, 0, first))
            pr(2)
            if first:
                def first_ops(qt):
                    txt = capture(lambda: init_max(qt)).split("\n")
                    ops, cur = [], []
                    for l in txt:
                        cur.append(l)
                        if not (l.startswith("s_nop") or l.startswith("v_permlane") or l.startswith("v_mov_b32 v3")):
                            ops.append("\n".join(cur)); cur = []
                    if cur: ops.append("\n".join(cur))
                    return ops + sm_ops(qt, False)
                interleave([qk_mfma(idx, 1, first) for idx in range(8)], first_ops(0), lead=0 if False else 0) if False else None
                mf1 = [qk_mfma(idx, 1, first) for idx in range(8)]
                for m_ in mf1[:4]: a(m_)
                a("s_nop 3")
                interleave(mf1[4:], first_ops(0))
                mf = [qk_mfma(idx, 2, first) + "\n" + v_read(idx, 0) + "\n" + v_read(idx, 1) for idx in range(8)]
                interleave(mf, first_ops(1), lead=2)
                smq2 = first_ops(2)
            else:
                interleave([qk_mfma(idx, 1, False) for idx in range(8)], sm_ops(0, True))
                s1 = sm_ops(1, True)
                mf = [qk_mfma(idx, 2, False) + "\n" + v_read(idx, 0) + "\n" + v_read(idx, 1) for idx in range(8)]
                interleave(mf, s1)
                smq2 = sm_ops(2, True)
            if r < 7:
                d = slot_of(t + 2) - slot_of(t)
                adv = [f"v_add_u32 v{x}, {d & 0xffffffff:#x}, v{x}" for x in (V_KA, V_VA0, V_VA1)]
                wor = []
            else:
                adv = [f"""v_subrev_u32 v{woa0}, {slot_of(t)}, v{V_VA0}
                s_and_b32 s{S_T2}, s{S_WAVE}, 1
                s_lshl_b32 s{S_T2}, s{S_T2}, 5
                v_xor_b32 v{woa0}, s{S_T2}, v{woa0}
                s_lshr_b32 s{S_T2}, s{S_WAVE}, 1
                s_lshl_b32 s{S_T2}, s{S_T2}, 9
                s_add_u32 s{S_T2}, s{S_T2}, {2*SLOT}
                v_add_u32 v{woa0}, s{S_T2}, v{woa0}
                v_add_u32 v{woa1}, {4*SLOT}, v{woa0}"""]
                wor = []
                for k in range(12):
                    sl = WOSLOT[k >> 1]
                    ad = woa0 if sl < 6 else woa1
                    off = (sl - 2 if sl < 6 else sl - 6) * SLOT + (k & 1) * 8192
                    for j2 in range(2):
                        wor.append(f"ds_read_b64_tr_b16 {vr(WA+k*4+2*j2,2)}, v{ad} offset:{off + j2*4096}")
            pr(3)
            if p == 0:
                mf = [f"s_waitcnt lgkmcnt({14-2*dt})\n" + pv_mfma(dt, 0, first) for dt in range(8)]
                interleave(mf, smq2, lead=2)
                pr(4)
                interleave([pv_mfma(dt, 1, first) for dt in range(8)], adv + dm[:h])
                a("s_nop 1")
                interleave([pv_mfma(dt, 2, first) for dt in range(8)], dm[h:])
            else:
                for o in adv: a(o)
                a("s_nop 3")
                for o in smq2: a(o)
                a("s_waitcnt lgkmcnt(0)")
        vm.wait(("wo", 11))
        a("s_waitcnt lgkmcnt(0)\ns_barrier")
        a("s_setprio 0")
        if p == 0:
            stamp(3)
            for o in wor: a(o)
            for qt in range(3):
                xlane("v_add_f32", V_L + qt, V_T + 6, V_T + 7)
            a("s_waitcnt lgkmcnt(0)\ns_barrier")
            stamp(25)
        else:
            interleave([pv_mfma(dt, 0, False) for dt in range(8)], wor)
            xl = [capture(lambda: xlane("v_add_f32", V_L + qt, V_T + 6, V_T + 7)) for qt in range(3)]
            interleave([pv_mfma(dt, 1, False) for dt in range(8)], xl)
            a("s_waitcnt lgkmcnt(0)\ns_barrier")
            for dt in range(8): a(pv_mfma(dt, 2, False))
        cw, cr, mw, mr = V_T, V_KA, V_T + 2, V_T + 3
        def cb_const(v): return 98304 + v * 12288 if v < 5 else (65536 + (v - 5) * 12288 if v < 7 else 0)
        def cb_addr(sdst, pp):
            c = [cb_const(4 * pp + h_) for h_ in range(4)]
            if pp == 0:
                a(f"s_mul_i32 s{sdst}, s{S_HH}, 12288\ns_add_u32 s{sdst}, s{sdst}, 98304")
            else:
                a(f"""s_mov_b32 s{sdst}, {c[0]}
                s_cmp_eq_u32 s{S_HH}, 1
                s_cselect_b32 s{sdst}, {c[1]}, s{sdst}
                s_cmp_eq_u32 s{S_HH}, 2
                s_cselect_b32 s{sdst}, {c[2]}, s{sdst}
                s_cmp_eq_u32 s{S_HH}, 3
                s_cselect_b32 s{sdst}, {c[3]}, s{sdst}""")
        cb_addr(S_T0, p); cb_addr(S_T1, 1 - p)
        a(f"""v_add_u32 v{cr}, s{S_T1}, v{V_L16}
        v_add_u32 v{cw}, s{S_T0}, v{V_L16}
        s_lshl_b32 s{S_T0}, s{S_WAVE}, 11
        s_add_u32 s{S_T0}, s{S_T0}, {SLOT}
        s_xor_b32 s{S_T1}, s{S_T0}, 0x2000
        v_lshlrev_b32 v{mw}, 2, v{V_LANE}
        v_add_u32 v{mr}, s{S_T1}, v{mw}
        v_add_u32 v{mw}, s{S_T0}, v{mw}""")
        own0, oth0 = 4 * p, 4 * (1 - p)
        for qt in range(3):
            a(f"ds_write_b32 v{mw}, v{NM(qt)} offset:{qt*256}")
            a(f"ds_write_b32 v{mw}, v{V_L+qt} offset:{768+qt*256}")
        for i in range(12):
            a(f"ds_write_b128 v{cw}, {vr(O(oth0,0)+i*4,4)} offset:{i*1024}")
        a("s_waitcnt lgkmcnt(0)\ns_barrier")
        if p == 0: stamp(26)
        NMo, Lo = V_P, V_P + 3
        for qt in range(3):
            a(f"ds_read_b32 v{NMo+qt}, v{mr} offset:{qt*256}")
            a(f"ds_read_b32 v{Lo+qt}, v{mr} offset:{768+qt*256}")
        for i in range(12):
            a(f"ds_read_b128 {vr(O(oth0,0)+i*4,4)}, v{cr} offset:{i*1024}")
        a("s_waitcnt lgkmcnt(12)")
        FA, FB, LL = 88, 96, 104
        for qt in range(3):
            n_ = V_F + qt
            fa, fb = FA + 2 * qt, FB + 2 * qt
            a(f"""v_min_f32 v{n_}, v{NM(qt)}, v{NMo+qt}
            v_sub_f32 v{fa}, v{n_}, v{NM(qt)}
            v_sub_f32 v{fb}, v{n_}, v{NMo+qt}
            v_exp_f32 v{fa}, v{fa}
            v_exp_f32 v{fb}, v{fb}
            s_nop 0
            v_mul_f32 v{LL+qt}, v{fa}, v{V_L+qt}
            v_fma_f32 v{LL+qt}, v{fb}, v{Lo+qt}, v{LL+qt}
            v_rcp_f32 v{V_F+4}, v{LL+qt}
            v_log_f32 v{LL+qt}, v{LL+qt}
            s_nop 0
            v_mul_f32 v{fa}, v{fa}, v{V_F+4}
            v_mul_f32 v{fb}, v{fb}, v{V_F+4}
            v_sub_f32 v{LL+qt}, v{LL+qt}, v{n_}""")
        a(f"""s_lshl_b32 s{S_T0}, s2, 3
        s_add_u32 s{S_T0}, s{S_T0}, s{S_WAVE}
        s_mul_i32 s{S_T1}, s{S_T0}, {OREC}
        s_add_u32 s{S_T1}, s{S_T1}, {OX}
        s_add_u32 s{S_T2}, s{S_T1}, 6144
        s_mov_b64 exec, 0xffff
        """)
        def st1(txt):
            La, Lb = a.label("Ls"), a.label("Ls")
            a(f"""s_cbranch_scc1 {La}
            {txt} sc1
            s_branch {Lb}
            {La}:
            {txt}
            {Lb}:""")
        a(f"s_cmp_lg_u32 s{S_LOCAL}, 0")
        st1(f"buffer_store_dwordx4 {vr(LL,4)}, v{V_L16}, s[{S_WS}:{S_WS+3}], s{S_T2} offen")
        a("s_mov_b64 exec, -1")
        OF = V_F + 8
        for tl in range(2):
            a(f"s_waitcnt lgkmcnt({6 - 6*tl})")
            for qt in range(3):
                for h2 in range(2):
                    dt = own0 + tl * 2 + h2
                    o = O(dt, qt); x = O(oth0 + tl * 2 + h2, qt)
                    for k in range(2):
                        a(f"v_pk_mul_f32 {vr(o+2*k,2)}, {vr(o+2*k,2)}, {vr(FA+2*qt,2)} op_sel_hi:[1,0]")
                        a(f"v_pk_fma_f32 {vr(o+2*k,2)}, {vr(x+2*k,2)}, {vr(FB+2*qt,2)}, {vr(o+2*k,2)} op_sel_hi:[1,0,1]")
                    d = OF + (tl * 3 + qt) * 4 + h2 * 2
                    a(f"v_cvt_pk_bf16_f32 v{d}, v{o}, v{o+1}")
                    a(f"v_cvt_pk_bf16_f32 v{d+1}, v{o+2}, v{o+3}")
                i = tl * 3 + qt
                if i == 4:
                    a(f"s_add_u32 s{S_T1}, s{S_T1}, 4096\ns_cmp_lg_u32 s{S_LOCAL}, 0")
                st1(f"buffer_store_dwordx4 {vr(OF+i*4,4)}, v{V_L16}, s[{S_WS}:{S_WS+3}], s{S_T1} offen offset:{(i&3)*1024}")
        if p == 0:
            stamp(27)
            a("s_branch L_tail")
    a("L_tail:")
    woa0 = V_X0
    fa_ = V_X0 + 2
    OF = V_F + 8
    LL = 104
    a(f"""v_mov_b32 v{V_T+2}, s{S_NONCE}
    v_mov_b32 v{V_T+3}, s{S_NONCE+1}
    v_mov_b32 v{V_T+4}, 0
    s_mul_i32 s{S_T1}, s{S_T0}, {OREC}
    s_add_u32 s{S_T1}, s{S_T1}, {OX + 6400}
    s_andn2_b32 s{S_T0}, s{S_T0}, 0xc0
    s_mul_i32 s{S_T0}, s{S_T0}, {OREC}
    s_add_u32 s{S_T0}, s{S_T0}, {OX}
    v_add_u32 v{fa_}, s{S_S}, v{V_LANE}
    v_add_u32 v{fa_}, 1, v{fa_}
    v_and_b32 v{fa_}, 3, v{fa_}
    v_mul_u32_u24 v{fa_}, {64*OREC}, v{fa_}
    s_add_u32 s{S_T3}, s{S_T0}, 6400
    s_mov_b32 s{S_CNT}, 0
    s_cmp_lg_u32 s{S_LOCAL}, 0
    s_waitcnt vmcnt(0)
    s_mov_b64 exec, 1""")
    st1(f"buffer_store_dwordx2 {vr(V_T+2,2)}, v{V_T+4}, s[{S_WS}:{S_WS+3}], s{S_T1} offen")
    a("s_mov_b64 exec, -1")
    stamp(4)
    SP = [S_TAG, S_TAG + 1, S_TAG + 2]
    for j in range(3):
        a(f"""s_add_u32 s{SP[j]}, s{S_S}, {j+1}
        s_and_b32 s{SP[j]}, s{SP[j]}, 3
        s_mul_i32 s{SP[j]}, s{SP[j]}, {64*OREC}
        s_add_u32 s{SP[j]}, s{SP[j]}, s{S_T0}""")
    q16 = V_X0 + 3
    a(f"""v_lshlrev_b32 v{q16}, 4, v{V_Q16}
    v_add_u32 v{q16}, 6144, v{q16}
    s_mov_b64 exec, 7
    L_fpoll:
    s_cmp_lg_u32 s{S_LOCAL}, 0
    s_cbranch_scc1 L_fp_l
    buffer_load_dwordx2 {vr(V_T,2)}, v{fa_}, s[{S_WS}:{S_WS+3}], s{S_T3} offen sc1
    s_branch L_fp_d
    L_fp_l:
    buffer_load_dwordx2 {vr(V_T,2)}, v{fa_}, s[{S_WS}:{S_WS+3}], s{S_T3} offen {lpoll}
    L_fp_d:
    s_add_u32 s{S_CNT}, s{S_CNT}, 1
    s_waitcnt vmcnt(0)
    v_cmp_ne_u64 vcc, s[{S_NONCE}:{S_NONCE+1}], {vr(V_T,2)}
    s_cmp_gt_u32 s{S_CNT}, 0x10000
    s_cbranch_scc1 L_fok
    s_cbranch_vccnz L_fpoll
    L_fok:
    s_mov_b64 exec, -1""")
    stamp(5)
    PL = 32
    PF = 160
    a(f"s_cmp_lg_u32 s{S_LOCAL}, 0\ns_cbranch_scc1 L_old_local")
    for fl in (" sc1", ""):
        if not fl: a("L_old_local:")
        for j in range(3):
            a(f"buffer_load_dwordx4 {vr(PL+j*4,4)}, v{q16}, s[{S_WS}:{S_WS+3}], s{SP[j]} offen{fl}")
        for half in range(2):
            for j in range(3):
                for i3 in range(3):
                    i = half * 3 + i3
                    a(f"buffer_load_dwordx4 {vr(PF+(j*6+i)*4,4)}, v{V_L16}, s[{S_WS}:{S_WS+3}], s{SP[j]} offen offset:{i3*1024}{fl}")
                if half == 0: a(f"s_add_u32 s{SP[j]}, s{SP[j]}, 3072")
        if fl: a("s_branch L_old_done")
    a("L_old_done:")
    if stamps: a(f"s_memrealtime s[{S_RET}:{S_RET+1}]")
    a("s_waitcnt vmcnt(18)")
    if stamps: a(f"s_memrealtime s[{S_SUB}:{S_SUB+1}]")
    def W(j, qt): return 232 + (j * 3 + qt) * 2
    for qt in range(3):
        mx = V_T
        w = [LL + qt] + [PL + j * 4 + qt for j in range(3)]
        a(f"""v_max3_f32 v{mx}, v{w[0]}, v{w[1]}, v{w[2]}
        v_max_f32 v{mx}, v{mx}, v{w[3]}""")
        for j in range(4): a(f"v_sub_f32 v{w[j]}, v{w[j]}, v{mx}")
        for j in range(4): a(f"v_exp_f32 v{w[j]}, v{w[j]}")
        a(f"""s_nop 0
        v_add_f32 v{mx}, v{w[0]}, v{w[1]}
        v_add_f32 v{mx+1}, v{w[2]}, v{w[3]}
        v_add_f32 v{mx}, v{mx}, v{mx+1}
        v_rcp_f32 v{mx}, v{mx}
        s_nop 0""")
        for j in range(4): a(f"v_mul_f32 v{W(j,qt)}, v{w[j]}, v{mx}")
    CA = 32
    def cb_const(v): return 98304 + v * 12288 if v < 5 else (65536 + (v - 5) * 12288 if v < 7 else 0)
    a(f"""s_mov_b32 s{S_T3}, 0xffff0000
    v_add_u32 v{V_VA0}, 0x10000, v{V_L16}
    v_add_u32 v{V_VA1}, 0x20000, v{V_L16}""")
    for half in range(2):
        for j in range(4):
            if j > 0:
                a(f"s_waitcnt vmcnt({18 - 9*half - 3*j})")
                if stamps and j == 3: a(f"s_memrealtime s[{S_SUB+2+2*half}:{S_SUB+3+2*half}]")
            for qt in range(3):
                i = half * 3 + qt
                src = OF + i * 4 if j == 0 else PF + ((j - 1) * 6 + i) * 4
                for d in range(4):
                    c0 = CA + qt * 8 + 2 * d
                    tt = V_T + (d & 1) * 2
                    a(f"v_lshlrev_b32 v{tt}, 16, v{src+d}")
                    a(f"v_and_b32 v{tt+1}, s{S_T3}, v{src+d}")
                    if j == 0:
                        a(f"v_pk_mul_f32 {vr(c0,2)}, {vr(tt,2)}, {vr(W(j,qt),2)} op_sel_hi:[1,0]")
                    else:
                        a(f"v_pk_fma_f32 {vr(c0,2)}, {vr(tt,2)}, {vr(W(j,qt),2)}, {vr(c0,2)} op_sel_hi:[1,0,1]")
        for qt in range(3):
            i = half * 3 + qt
            for d in range(4):
                a(f"v_cvt_pk_bf16_f32 v{OF+i*4+d}, v{CA+qt*8+2*d}, v{CA+qt*8+2*d+1}")
            a(f"ds_write_b128 v{V_KA}, {vr(OF+i*4,4)} offset:{i*1024}")
    WB = 32
    a("s_waitcnt lgkmcnt(0)")
    stamp(24)
    a("s_barrier")
    stamp(6)
    stamp(20, 0, reg=S_RET); stamp(21, 0, reg=S_SUB); stamp(22, 0, reg=S_SUB+2); stamp(23, 0, reg=S_SUB+4)
    YA = 88
    NB = 8
    def bset(k): return 160 + (k % NB) * 12
    def breads(k):
        for qt in range(3):
            hh_, p_, tl_ = k >> 2, (k >> 1) & 1, k & 1
            off = cb_const((4 * p_ + hh_) ^ 4) + (tl_ * 3 + qt) * 1024
            a(f"ds_read_b128 {vr(bset(k)+qt*4,4)}, v{(V_L16, V_VA0, V_VA1)[off >> 16]} offset:{off & 0xffff}")
        if 4 <= k < 8:
            kk = k + 8
            for j2 in range(2):
                a(f"ds_read_b64_tr_b16 {vr(WB+(kk-12)*4+2*j2,2)}, v{woa0} offset:{(WOSLOT[kk>>1]-2)*SLOT + (kk&1)*8192 + j2*4096}")
    def nreads(k): return 3 + (2 if 4 <= k < 8 else 0)
    LA = 3
    for k in range(LA): breads(k)
    for k in range(16):
        if k + LA < 16: breads(k + LA)
        a(f"s_waitcnt lgkmcnt({min(15, sum(nreads(x) for x in range(k + 1, min(16, k + LA + 1))))})")
        af = V_Q + k * 4 if k < 12 else WB + (k - 12) * 4
        for qt in range(3):
            y = YA + qt * 4
            c = "0" if k == 0 else vr(y, 4)
            a(f"v_mfma_f32_16x16x32_bf16 {vr(y,4)}, {vr(af,4)}, {vr(bset(k)+qt*4,4)}, {c}")
    a(f"""s_and_b32 s{S_TAG}, s{S_NONCE}, 0xfff
    s_bfe_u32 s{S_TAG+1}, s{S_NONCE}, 0xc000c
    s_lshr_b64 s[{S_T0}:{S_T1}], s[{S_NONCE}:{S_NONCE+1}], 24
    s_and_b32 s{S_TAG+2}, s{S_T0}, 0xfff
    s_bfe_u32 s{S_TAG+3}, s{S_T0}, 0xc000c
    v_mov_b32 v{V_T}, 0xfff
    s_lshl_b32 s{S_T0}, s2, 3
    s_add_u32 s{S_T0}, s{S_T0}, s{S_WAVE}
    s_mul_i32 s{S_T0}, s{S_T0}, 3072
    s_add_u32 s{S_T0}, s{S_T0}, {YX}
    s_mul_i32 s{S_T1}, s{S_HH}, 3072
    s_add_u32 s{S_T1}, s{S_T1}, {SLOT}
    v_add_u32 v{V_X0+2}, s{S_T1}, v{V_L16}""")
    for i in range(3):
        y = YA + i * 4
        for e in range(4):
            a(f"v_add_u32 v{y+e}, 0x800, v{y+e}")
            a(f"v_bfi_b32 v{y+e}, v{V_T}, s{S_TAG+e}, v{y+e}")
    def ystores(base):
        for i in range(3):
            a(f"buffer_store_dwordx4 {vr(base+i*4,4)}, v{V_L16}, s[{S_WS}:{S_WS+3}], s{S_T0} offen offset:{i*1024} sc1")
    a(f"s_cmp_lg_u32 s{S_P}, 0\ns_cbranch_scc1 L_y1")
    for i in range(3):
        a(f"ds_write_b128 v{V_X0+2}, {vr(YA+i*4,4)} offset:{i*1024}")
    a("s_waitcnt lgkmcnt(0)\ns_barrier\ns_branch L_y2\nL_y1:")
    ystores(YA)
    a("s_barrier")
    for i in range(3):
        a(f"ds_read_b128 {vr(160+i*4,4)}, v{V_X0+2} offset:{i*1024}")
    a(f"s_sub_u32 s{S_T0}, s{S_T0}, {4*3072}\ns_waitcnt lgkmcnt(0)")
    ystores(160)
    a("s_endpgm\nL_y2:")
    stamp(29)
    ys = V_X0
    a(f"""s_cmp_ge_u32 s{S_WAVE}, 3
    s_cbranch_scc1 L_end
    s_andn2_b32 s{S_T0}, s2, 7
    s_lshl_b32 s{S_T0}, s{S_T0}, 3
    s_add_u32 s{S_T0}, s{S_T0}, s{S_HKV}
    s_mul_i32 s{S_T0}, s{S_T0}, 3072
    s_lshl_b32 s{S_T1}, s{S_WAVE}, 10
    s_add_u32 s{S_T0}, s{S_T0}, s{S_T1}
    s_add_u32 s{S_T0}, s{S_T0}, {YX}
    s_mov_b32 s{S_CNT}, 0
    s_mov_b32 s{S_T3}, 0xfffff000
    """)
    if ysent:
        a(f"""    v_mul_u32_u24 v{ys}, {8*3072}, v{V_LANE}
    v_add_u32 v{ys}, 1008, v{ys}
    s_mov_b64 exec, 0xff
    L_ysent:
    buffer_load_dwordx4 {vr(V_T+4,4)}, v{ys}, s[{S_WS}:{S_WS+3}], s{S_T0} offen sc1
    s_add_u32 s{S_CNT}, s{S_CNT}, 1
    s_waitcnt vmcnt(0)
    v_xor_b32 v{V_T+1}, s{S_TAG}, v{V_T+4}
    v_bitop3_b32 v{V_T+1}, v{V_T+1}, v{V_T+5}, s{S_TAG+1} bitop3:0xf6
    v_bitop3_b32 v{V_T+1}, v{V_T+1}, v{V_T+6}, s{S_TAG+2} bitop3:0xf6
    v_and_b32 v{V_T+1}, v{V_T+1}, v{V_T}
    v_cmp_ne_u32 vcc, 0, v{V_T+1}
    s_cmp_gt_u32 s{S_CNT}, 0x10000
    s_cbranch_scc1 L_ysent_x
    s_cbranch_vccnz L_ysent
    L_ysent_x:
    s_mov_b64 exec, -1
    s_mov_b32 s{S_CNT}, 0""")
    a(f"""    L_ypoll:
    s_mov_b32 s{S_T1}, s{S_T0}""")
    YR = 160
    for j in range(8):
        a(f"buffer_load_dwordx4 {vr(YR+j*4,4)}, v{V_L16}, s[{S_WS}:{S_WS+3}], s{S_T1} offen sc1")
        if j < 7:
            a(f"s_add_u32 s{S_T1}, s{S_T1}, {8*3072}")
    for e in range(4):
        a(f"v_mov_b32 v{V_T+1+e}, 0")
    SUMR = 112
    for j in range(8):
        if j % 2 == 0:
            a(f"s_waitcnt vmcnt({6 - j})")
        for e in range(4):
            r = YR + j * 4 + e
            a(f"v_bitop3_b32 v{V_T+1+e}, v{V_T+1+e}, v{r}, s{S_TAG+e} bitop3:0xf6")
            if j == 0:
                a(f"v_and_b32 v{SUMR+e}, s{S_T3}, v{r}")
            else:
                a(f"v_and_b32 v{r}, s{S_T3}, v{r}")
                a(f"v_add_f32 v{SUMR+e}, v{SUMR+e}, v{r}")
    a(f"""v_or3_b32 v{V_T+1}, v{V_T+1}, v{V_T+2}, v{V_T+3}
    v_or_b32 v{V_T+1}, v{V_T+1}, v{V_T+4}
    v_and_b32 v{V_T+1}, v{V_T+1}, v{V_T}
    v_cmp_ne_u32 vcc, 0, v{V_T+1}
    s_cbranch_vccz L_yok
    s_add_u32 s{S_CNT}, s{S_CNT}, 1
    s_cmp_lt_u32 s{S_CNT}, 0x10000
    s_cbranch_scc1 L_ypoll
    L_yok:
    v_cvt_pk_bf16_f32 v{V_T+2}, v{SUMR}, v{SUMR+1}
    v_cvt_pk_bf16_f32 v{V_T+3}, v{SUMR+2}, v{SUMR+3}
    v_lshlrev_b32 v{V_X0}, 10, v{V_Q16}
    v_lshl_add_u32 v{V_X0}, v{V_G}, 3, v{V_X0}
    s_mul_i32 s{S_T0}, s{S_B}, {48*1024}
    s_lshl_b32 s{S_T1}, s{S_WAVE}, 14
    s_add_u32 s{S_T0}, s{S_T0}, s{S_T1}
    s_lshl_b32 s{S_T1}, s{S_S}, 8
    s_add_u32 s{S_T0}, s{S_T0}, s{S_T1}
    s_lshl_b32 s{S_T1}, s{S_HKV}, 5
    s_add_u32 s{S_T0}, s{S_T0}, s{S_T1}
    buffer_store_dwordx2 {vr(V_T+2,2)}, v{V_X0}, s[{S_OUT}:{S_OUT+3}], s{S_T0} offen""")
    if stamps: a("s_waitcnt vmcnt(0)")
    stamp(7)
    a("L_end:\ns_endpgm")

    for qt in range(3):
        a(f"L_rescale{qt}:")
        a("s_nop 7")
        d, al = V_T, V_T + 1
        tile_max(qt, d)
        a(f"""v_max_f32 v{d}, 0, v{d}
        v_sub_f32 v{al}, 0, v{d}
        v_exp_f32 v{al}, v{al}""")
        for i in range(4):
            a(f"v_sub_f32 v{NM(qt)+i}, v{NM(qt)+i}, v{d}")
        for kt in range(2):
            for i in range(4):
                a(f"v_sub_f32 v{S(kt,qt)+i}, v{S(kt,qt)+i}, v{d}")
        a(f"v_mul_f32 v{V_L+qt}, v{V_L+qt}, v{al}")
        for dt in range(8):
            for i in range(4):
                a(f"v_mul_f32 v{O(dt,qt)+i}, v{O(dt,qt)+i}, v{al}")
        for o in sm_ops(qt, False)[:-1]:
            a(o)
        a("s_nop 1")
        a(f"s_setpc_b64 s[{S_RET}:{S_RET+1}]")
    a("L_code_end:")
    a(".fill 3072, 4, 0xBF800000")
    a.end_kernel(MAIN, 256, sgpr=102, accum=256)
    hdr = """Fused GQA block (Q-proj + split-K attention over the KV cache + out-proj), one launch.
Generated by gen/attn5.py (hand-written generator).
kernarg: x, k_cache, v_cache, wq, wo, out, debug, ws"""
    txt = a.text(hdr)
    est = 0
    for l in a.lines:
        t = l.strip()
        if not l.startswith("  ") or t.startswith("."): continue
        est += 4 if (t.startswith("s_") and not t.startswith("s_load") and not t.startswith("s_mem")) else 8
    nld = 5
    pf = []
    for i in range(nld):
        pf.append(f"  global_load_dword v31, v{t0}, s[{S_ACC}:{S_ACC+1}]")
        pf.append(f"  v_add_u32 v{t0}, 0x2000, v{t0}")
    txt = txt.replace("  PFC_LOADS", "\n".join(pf))
    return txt


if __name__ == "__main__":
    import argparse
    ap = argparse.ArgumentParser()
    ap.add_argument("-o", default="standalone__gqa_block_cached__near_ridge.s")
    ap.add_argument("--stamps", action="store_true")
    ap.add_argument("--kvpol", default="nt")
    ap.add_argument("--wpol", default="")
    ap.add_argument("--thr", type=float, default=256.0)
    ap.add_argument("--depth", type=int, default=6)
    ap.add_argument("--sched", default="3,4,4,4,4")
    ap.add_argument("--nopfc", action="store_true")
    ap.add_argument("--nolad", action="store_true")
    ap.add_argument("--exp", default="")
    ap.add_argument("--norot", action="store_true")
    ap.add_argument("--ekv", type=int, default=3)
    ap.add_argument("--lpoll", default="nt")
    ap.add_argument("--touch", type=int, default=4)
    ap.add_argument("--npro", type=int, default=13)
    ap.add_argument("--noysep", action="store_true")
    ap.add_argument("--qahead", type=int, default=2)
    ap.add_argument("--krot", type=int, default=0)
    ap.add_argument("--early", type=int, default=0)
    args = ap.parse_args()
    kw = {}
    if args.nolad: kw["lad"] = None
    if args.exp: kw["exp"] = args.exp.split(",")
    kw["rot"] = not args.norot
    kw["ekv"] = args.ekv
    kw["lpoll"] = args.lpoll
    kw["touch"] = args.touch
    kw["npro"] = args.npro
    kw["ysep"] = not args.noysep
    kw["qahead"] = args.qahead
    kw["krot"] = args.krot
    kw["early"] = args.early
    open(args.o, "w").write(gen(kvpol=args.kvpol, wpol=args.wpol, stamps=args.stamps, thr=args.thr, depth=args.depth,
                                sched=tuple(int(x) for x in args.sched.split(",")), pf_code=not args.nopfc, **kw))
    print("wrote", args.o)
```

```python
import sys, math, struct
sys.path.insert(0, "gen")
from asmlib import *

QX = 0x0000000
QB = 0x3000000
QREC = 12288
QSTR = 12800
OREC = 6656
OX = 0x0800000
LX = 0x1800000
FX = 0x1900000
YX = 0x2000000
STAMP = 0xF000000
WS_BYTES = 0x10000000

S_X, S_K, S_V, S_WQ, S_WO, S_OUT, S_DBG, S_WS = 4, 8, 12, 16, 20, 24, 28, 32
S_PTR = 40
S_WAVE, S_HH, S_P, S_HKV, S_B, S_S, S_KVB = 56, 57, 58, 59, 60, 61, 62
S_M0B = 63
S_NONCE = 64
S_T0, S_T1, S_T2, S_T3 = 66, 67, 68, 69
S_WQB, S_XB = 70, 71
S_THR = 72
S_WOB = 73
S_T4 = 74
S_RET = 76
S_SUB = 78
S_ACC = 84
S_CNT = 86
S_C = 87
S_TAG = 88
S_ST = 92
S_STB = 94
S_PC = 96
S_XCC = 98
S_LOCAL = 99
S_ROT = 75

V_L16, V_LANE, V_Q16, V_G = 0, 1, 2, 3
V_KA, V_VA0, V_VA1, V_DK, V_DV = 4, 5, 6, 7, 8
V_L, V_U = 9, 12
V_X0 = 15
V_T = 24
V_NM = 32
V_P = 44
V_F = 56
V_S = 88
V_Q = 112
V_O = 160

SLOT = 16384
SLOTMAP = [4, 5, 2, 3, 0, 1, 6, 7, 8, 9]
def slot_of(t): return SLOTMAP[t % 10] * SLOT
XB = 13 * 8192
SCR = XB
MISC = XB + 49152
MISC2 = MISC + 64
def wq_lds(t): return t * 8192 if t < 13 else (t - 13) * 8192
WOSLOT = [6, 7, 8, 9, 4, 5, 2, 3]
LOG2E = 1.4426950408889634
CSCALE = (128 ** -0.5) * LOG2E

def f32bits(x): return struct.unpack("<I", struct.pack("<f", x))[0]
def vr(base, n): return f"v[{base}:{base+n-1}]"

class VM:
    def __init__(self, a):
        self.a = a; self.ops = []
    def issue(self, tag): self.ops.append(tag)
    def count_after(self, tag):
        idx = max(i for i, t in enumerate(self.ops) if t == tag)
        return len(self.ops) - 1 - idx
    def wait(self, tag):
        n = self.count_after(tag)
        assert n <= 63
        self.a(f"s_waitcnt vmcnt({n})")
    def has(self, tag): return tag in self.ops


def gen(kvpol="nt", wpol="", stamps=False, thr=256.0, depth=6, sched=(0, 5, 5, 5, 4), pf_code=True,
        lad=((3, 3, 3, 1, 0), (2, 2, 2, 2, 2)), exp=None, rot=True, ekv=1, lpoll="nt", touch=4, npro=13, ysep=True, ysent=True, qahead=2, krot=0, early=0,
        wosched=((5, range(0, 3)), (6, range(3, 10)), (7, range(10, 16)))):
    a = Asm()
    NST = 40
    def stamp(i, wave=0, cyc=False, reg=None):
        if not stamps: return
        L = a.label("Lst")
        a(f"s_cmp_lg_u32 s{S_WAVE}, {wave}\ns_cbranch_scc1 {L}")
        if reg is None:
            a(f"""{"s_memtime" if cyc else "s_memrealtime"} s[{S_ST}:{S_ST+1}]
            s_waitcnt lgkmcnt(0)""")
            reg = S_ST
        a(f"""v_mov_b32 v22, s{reg}
        v_mov_b32 v23, s{reg+1}
        v_mov_b32 v21, 0
        s_mov_b64 exec, 1
        global_store_dwordx2 v21, v[22:23], s[{S_STB}:{S_STB+1}] offset:{i*8}
        s_mov_b64 exec, -1
        {L}:""")

    def S(kt, qt): return V_S + (kt * 3 + qt) * 4
    def Q(qt, ks): return V_Q + (qt * 4 + ks) * 4
    def O(dt, qt): return V_O + (dt * 3 + qt) * 4
    def NM(qt): return V_NM + qt * 4
    def P(qt): return V_P + qt * 4
    def F(i): return V_F + i * 4
    t0, t1, t2 = V_X0 + 2, V_X0 + 3, V_X0 + 4
    V_DWQ, V_DX = V_X0, V_X0 + 1

    a.begin_kernel(MAIN, 256, 512, 163840, listed=False)
    a(f"""s_cmp_ge_u32 s2, 256
    s_cbranch_scc1 L_end
    s_load_dwordx16 s[{S_PTR}:{S_PTR+15}], s[0:1], 0
    s_memrealtime s[{S_NONCE}:{S_NONCE+1}]
    v_lshrrev_b32 v{t0}, 6, v0
    v_and_b32 v{V_LANE}, 63, v0
    v_readfirstlane_b32 s{S_WAVE}, v{t0}
    v_and_b32 v{V_Q16}, 15, v0
    v_bfe_u32 v{V_G}, v0, 4, 2
    v_lshlrev_b32 v{V_L16}, 4, v{V_LANE}""")
    if pf_code:
        a(f"""s_cmp_lg_u32 s{S_WAVE}, 7
        s_cbranch_scc1 L_pfc_skip
        s_getpc_b64 s[{S_ACC}:{S_ACC+1}]
        v_lshlrev_b32 v{t0}, 7, v{V_LANE}
        PFC_LOADS
        L_pfc_skip:""")
    a(f"""s_and_b32 s{S_HKV}, s2, 7
    s_lshr_b32 s{S_B}, s2, 5
    s_bfe_u32 s{S_S}, s2, 0x20003
    s_and_b32 s{S_HH}, s{S_WAVE}, 3
    s_lshr_b32 s{S_P}, s{S_WAVE}, 2
    s_lshl_b32 s{S_M0B}, s{S_WAVE}, 10""")
    a(f"""s_lshr_b32 s{S_T2}, s{S_HH}, 1
    s_xor_b32 s{S_T3}, s{S_HH}, s{S_T2}
    s_and_b32 s{S_T3}, s{S_T3}, 1
    s_lshl_b32 s{S_T3}, s{S_T3}, 1
    s_or_b32 s{S_T3}, s{S_T3}, s{S_T2}
    v_and_b32 v{t2}, 3, v{V_LANE}
    v_xor_b32 v{t0}, s{S_T3}, v{t2}
    v_lshlrev_b32 v{t0}, 4, v{t0}
    v_lshl_add_u32 v{t0}, v{V_G}, 6, v{t0}
    v_bfe_u32 v{t1}, v{V_LANE}, 2, 2
    v_lshl_add_u32 v{V_DK}, v{t1}, 8, v{t0}
    v_lshl_add_u32 v{V_DX}, v{t1}, 10, v{t0}
    s_lshl_b32 s{S_T2}, s{S_HH}, 12
    v_add_u32 v{V_DX}, s{S_T2}, v{V_DX}""")
    a(f"""v_lshl_add_u32 v{t1}, v{V_G}, 3, v{t1}
    v_and_b32 v{t0}, 1, v{V_G}
    v_lshlrev_b32 v{t0}, 1, v{t0}
    v_xor_b32 v{t0}, v{t0}, v{t2}
    v_lshlrev_b32 v{t0}, 4, v{t0}
    v_lshl_add_u32 v{V_DWQ}, v{t1}, 13, v{t0}
    s_lshl_b32 s{S_WQB}, s{S_HKV}, 2
    s_add_u32 s{S_WQB}, s{S_WQB}, s{S_S}
    s_lshl_b32 s{S_WQB}, s{S_WQB}, 2
    s_add_u32 s{S_WQB}, s{S_WQB}, s{S_HH}
    s_lshl_b32 s{S_WQB}, s{S_WQB}, 6
    s_lshl_b32 s{S_T2}, s{S_P}, 21
    s_add_u32 s{S_WQB}, s{S_WQB}, s{S_T2}
    s_mul_i32 s{S_XB}, s{S_B}, {48*1024}
    s_waitcnt lgkmcnt(0)""")
    a.srd(S_X, S_PTR + 0, 8 * 48 * 512 * 2)
    a.srd(S_WQ, S_PTR + 6, 512 * 4096 * 2)
    V_DWO = V_X0 + 5

    def setup2():
        a.srd(S_WS, S_PTR + 14, WS_BYTES)
        a.srd(S_DBG, S_PTR + 12, 256)
        a(f"""v_add_u32 v{V_DK}, s{S_M0B}, v{V_DK}
        v_mov_b32 v{t0}, 0
        v_lshlrev_b32 v{t1}, 2, v{V_LANE}
        v_add_u32 v{t1}, {MISC}, v{t1}
        ds_write_b32 v{t1}, v{t0}""")
        a(f"""v_bfe_u32 v{t1}, v{V_LANE}, 2, 3
        v_and_b32 v{t2}, 1, v{V_G}
        v_lshlrev_b32 v{t2}, 1, v{t2}
        v_and_b32 v{t0}, 3, v{V_LANE}
        v_xor_b32 v{t0}, v{t0}, v{t2}
        v_lshlrev_b32 v{t0}, 4, v{t0}
        v_lshrrev_b32 v{t2}, 5, v{V_LANE}
        v_lshl_add_u32 v{t0}, v{t2}, 6, v{t0}
        s_and_b32 s{S_T2}, s{S_WAVE}, 1
        s_lshl_b32 s{S_T2}, s{S_T2}, 7
        v_add_u32 v{t0}, s{S_T2}, v{t0}
        s_lshr_b32 s{S_T2}, s{S_WAVE}, 1
        s_lshl_b32 s{S_T3}, s{S_T2}, 3
        v_add_u32 v{t2}, s{S_T3}, v{t1}
        v_lshl_add_u32 v{V_DV}, v{t2}, 8, v{t0}
        v_lshl_add_u32 v{V_DWO}, v{t2}, 10, v{t0}
        v_subrev_u32 v{V_L}, 4096, v{V_DK}
        v_subrev_u32 v{V_L+1}, 4096, v{V_DV}""")
        a(f"s_mul_i32 s{S_ROT}, s2, {krot}\ns_lshr_b32 s{S_ROT}, s{S_ROT}, 3\ns_and_b32 s{S_ROT}, s{S_ROT}, 15\ns_lshl_b32 s{S_ROT}, s{S_ROT}, 13")
        a.srd(S_K, S_PTR + 2, 0x2000000)
        a.srd(S_V, S_PTR + 4, 0x2000000)
        a.srd(S_WO, S_PTR + 8, 4096 * 512 * 2)
        a.srd(S_OUT, S_PTR + 10, 8 * 48 * 512 * 2)
        a(f"""s_lshl_b32 s{S_KVB}, s{S_B}, 3
        s_add_u32 s{S_KVB}, s{S_KVB}, s{S_HKV}
        s_lshl_b32 s{S_KVB}, s{S_KVB}, 19
        s_lshl_b32 s{S_T2}, s{S_S}, 17
        s_add_u32 s{S_KVB}, s{S_KVB}, s{S_T2}""")
        a(f"""v_lshrrev_b32 v{t0}, 2, v{V_Q16}
        v_lshrrev_b32 v{t1}, 1, v{t0}
        v_xor_b32 v{t2}, v{t0}, v{t1}
        v_and_b32 v{t2}, 1, v{t2}
        v_lshl_or_b32 v{t1}, v{t2}, 1, v{t1}
        v_xor_b32 v{t1}, v{t1}, v{V_G}
        v_lshlrev_b32 v{t0}, 10, v{t0}
        v_lshl_add_u32 v{t0}, v{t1}, 4, v{t0}
        v_and_b32 v{t1}, 3, v{V_Q16}
        v_lshl_add_u32 v{V_KA}, v{t1}, 6, v{t0}""")
        a(f"""v_lshrrev_b32 v{t0}, 5, v{V_LANE}
        v_lshlrev_b32 v{t0}, 11, v{t0}
        v_bfe_u32 v{t1}, v{V_LANE}, 2, 3
        v_lshl_add_u32 v{t0}, v{t1}, 6, v{t0}
        v_and_b32 v{t1}, 1, v{V_G}
        v_lshl_add_u32 v{t0}, v{t1}, 5, v{t0}
        v_and_b32 v{t1}, 3, v{V_LANE}
        v_lshl_add_u32 v{V_VA0}, v{t1}, 3, v{t0}
        v_xor_b32 v{V_VA1}, 32, v{V_VA0}
        s_mov_b32 s{S_THR}, {f32bits(thr):#x}
        s_mov_b32 s{S_C}, {f32bits(CSCALE):#x}""")
        L = a.label("Lpc")
        a(f"s_getpc_b64 s[{S_PC}:{S_PC+1}]\n{L}:")
        for qt in range(3):
            a(f"""s_add_u32 s{S_SUB+2*qt}, s{S_PC}, L_rescale{qt}-{L}
            s_addc_u32 s{S_SUB+2*qt+1}, s{S_PC+1}, 0""")
        a(f"""s_lshl_b32 s{S_WOB}, s{S_HKV}, 19
        s_lshl_b32 s{S_T2}, s{S_S}, 8
        s_add_u32 s{S_WOB}, s{S_WOB}, s{S_T2}""")
        if stamps:
            a(f"""s_mul_i32 s{S_T2}, s2, {NST*8}
            s_add_u32 s{S_STB}, s{S_PTR+14}, {STAMP:#x}
            s_addc_u32 s{S_STB+1}, s{S_PTR+15}, 0
            s_add_u32 s{S_STB}, s{S_STB}, s{S_T2}
            s_addc_u32 s{S_STB+1}, s{S_STB+1}, 0""")

    def dma(vm, tag, lds_off, srd, vo, sbase, soff, pol):
        a(f"s_add_u32 s{S_T2}, s{S_M0B}, {lds_off & 0xffffffff:#x}")
        a(f"s_mov_b32 m0, s{S_T2}")
        a(f"s_add_u32 s{S_T3}, s{sbase}, {soff:#x}")
        a(f"buffer_load_dwordx4 v{vo}, s[{srd}:{srd+3}], s{S_T3} offen {pol} lds")
        vm.issue(tag)
    def dma_piece(vm, n, both=False):
        t, isv = n >> 1, n & 1
        slot = slot_of(t) + isv * 8192
        srd, vo, vo2 = (S_V, V_DV, V_L + 1) if isv else (S_K, V_DK, V_L)
        if krot:
            a(f"""s_add_u32 s{S_T3}, s{S_ROT}, {t*8192}
            s_and_b32 s{S_T3}, s{S_T3}, 0x1ffff
            s_add_u32 m0, s{S_M0B}, {slot:#x}
            s_add_u32 s{S_T3}, s{S_T3}, s{S_KVB}
            buffer_load_dwordx4 v{vo}, s[{srd}:{srd+3}], s{S_T3} offen {kvpol} lds""")
            vm.issue(("kv", n))
            if both:
                a(f"""s_add_u32 m0, s{S_M0B}, {(slot - 4096) & 0xffffffff:#x}
                s_nop 0
                buffer_load_dwordx4 v{vo2}, s[{srd}:{srd+3}], s{S_T3} offen {kvpol} lds""")
                vm.issue(("kv", n))
            return
        dma(vm, ("kv", n), slot, srd, vo, S_KVB, t * 8192, kvpol)
        if both:
            dma(vm, ("kv", n), slot - 4096, srd, vo2, S_KVB, t * 8192, kvpol)
    def dma_wo(vm, n):
        k, chf = n >> 1, n & 1
        dma(vm, ("wo", n), WOSLOT[k] * SLOT + chf * 8192, S_WO, V_DWO, S_WOB, n * 32768, wpol)

    def touch_ld(vm, n):
        rec, base, nl = ((OREC, OX, 52), (3072, YX, 24))[n]
        a(f"""v_lshlrev_b32 v{V_X0+4}, 7, v{V_LANE}
        s_lshl_b32 s{S_T2}, s2, 3
        s_add_u32 s{S_T2}, s{S_T2}, s{S_WAVE}
        s_mul_i32 s{S_T3}, s{S_T2}, {rec}
        s_add_u32 s{S_T3}, s{S_T3}, {base}
        s_bfm_b64 exec, {nl}, 0
        buffer_load_dword v{V_DK}, v{V_X0+4}, s[{S_WS}:{S_WS+3}], s{S_T3} offen
        s_mov_b64 exec, -1
        s_nop 3""")
        vm.issue(("pt", n))

    def xlane(op, x, ta, tb):
        a(f"""v_mov_b32 v{ta}, v{x}
        v_mov_b32 v{tb}, v{x}
        s_nop 1
        v_permlane16_swap_b32 v{ta}, v{tb}
        s_nop 1
        {op} v{ta}, v{ta}, v{tb}
        v_mov_b32 v{tb}, v{ta}
        s_nop 1
        v_permlane32_swap_b32 v{ta}, v{tb}
        s_nop 1
        {op} v{x}, v{ta}, v{tb}""")

    def k_read(idx):
        kt, ks = idx >> 2, idx & 3
        return f"ds_read_b128 {vr(F(idx),4)}, v{V_KA} offset:{kt*4096 + ks*256}"
    def v_read(dt, j2):
        ad = V_VA1 if (dt & 1) else V_VA0
        return f"ds_read_b64_tr_b16 {vr(F(dt)+2*j2,2)}, v{ad} offset:{8192 + j2*4096 + (dt>>2)*1024 + ((dt>>1)&1)*512}"
    def qk_mfma(idx, qt, first):
        kt, ks = idx >> 2, idx & 3
        c = ("0" if first else vr(NM(qt), 4)) if ks == 0 else vr(S(kt, qt), 4)
        return f"v_mfma_f32_16x16x32_bf16 {vr(S(kt,qt),4)}, {vr(F(idx),4)}, {vr(Q(qt,ks),4)}, {c}"
    def pv_mfma(dt, qt, first):
        c = "0" if first else vr(O(dt, qt), 4)
        return f"v_mfma_f32_16x16x32_bf16 {vr(O(dt,qt),4)}, {vr(F(dt),4)}, {vr(P(qt),4)}, {c}"
    def sm_ops(qt, check):
        T, u = V_T, V_U + qt
        ex = [f"v_exp_f32 v{T+kt*4+i}, v{S(kt,qt)+i}" for kt in range(2) for i in range(4)]
        ops = ex[0:4] + [f"v_add_f32 v{u}, v{T}, v{T+1}", f"v_cvt_pk_bf16_f32 v{P(qt)}, v{T}, v{T+1}",
                         f"v_add_f32 v{u}, v{u}, v{T+2}"] + ex[4:6] + \
              [f"v_cvt_pk_bf16_f32 v{P(qt)+1}, v{T+2}, v{T+3}", f"v_add_f32 v{u}, v{u}, v{T+3}"] + ex[6:8] + \
              [f"v_add_f32 v{u}, v{u}, v{T+4}", f"v_cvt_pk_bf16_f32 v{P(qt)+2}, v{T+4}, v{T+5}",
               f"v_add_f32 v{u}, v{u}, v{T+5}", f"v_add_f32 v{u}, v{u}, v{T+6}",
               f"v_cvt_pk_bf16_f32 v{P(qt)+3}, v{T+6}, v{T+7}", f"v_add_f32 v{u}, v{u}, v{T+7}"]
        if check:
            L = a.label("Lok")
            ops.append(f"""v_cmp_lt_f32 vcc, s{S_THR}, v{u}
            s_cbranch_vccz {L}
            s_swappc_b64 s[{S_RET}:{S_RET+1}], s[{S_SUB+2*qt}:{S_SUB+2*qt+1}]
            {L}:""")
        ops.append(f"v_add_f32 v{V_L+qt}, v{V_L+qt}, v{u}")
        return ops
    def tile_max(qt, d):
        s0, s1 = S(0, qt), S(1, qt)
        a(f"""v_max3_f32 v{d}, v{s0}, v{s0+1}, v{s0+2}
        v_max3_f32 v{d}, v{d}, v{s0+3}, v{s1}
        v_max3_f32 v{d}, v{d}, v{s1+1}, v{s1+2}
        v_max_f32 v{d}, v{d}, v{s1+3}""")
        xlane("v_max_f32", d, V_T + 6, V_T + 7)
    def init_max(qt):
        d = V_T
        tile_max(qt, d)
        for i in range(4):
            a(f"v_sub_f32 v{NM(qt)+i}, 0, v{d}")
        for kt in range(2):
            for i in range(4):
                a(f"v_sub_f32 v{S(kt,qt)+i}, v{S(kt,qt)+i}, v{d}")
        a(f"v_mov_b32 v{V_L+qt}, 0")
    def interleave(mf, fill, lead=0):
        nm = len(mf); slots = nm - lead; k = 0
        for i, m in enumerate(mf):
            a(m)
            if i >= lead:
                tgt = (len(fill) * (i - lead + 1) + slots - 1) // slots
                while k < tgt:
                    a(fill[k]); k += 1
        while k < len(fill):
            a(fill[k]); k += 1
    def capture(fn):
        sv = a.lines; a.lines = []
        fn()
        out = "\n".join(l.strip() for l in a.lines); a.lines = sv
        return out

    NPRO = npro
    plan = {}
    nxt = NPRO
    for r, c in enumerate(sched):
        plan[r] = [("kv", x) for x in range(nxt, min(nxt + c, 32))]; nxt += c
    assert nxt >= 32
    for r, lst in plan.items():
        for _, pc in lst:
            t = pc >> 1
            assert t < 10 or (t - 10) // 2 < r, (r, pc)
            assert pc < 13 or r >= 1
    if touch & 1:
        plan.setdefault(7, []); plan[7] += [("pt", 0)]
    for r, lst in wosched:
        plan.setdefault(r, [])
        plan[r] += [("wo", x) for x in lst]
    if touch & 2:
        plan[7] += [("pt", 1)]

    vq = VM(a)
    n = V_T
    S_R0, S_R1, S_R2 = S_TAG, S_TAG + 1, S_TAG + 2
    if stamps: a(f"s_memrealtime s[{S_RET}:{S_RET+1}]")
    a(f"s_mul_i32 s{S_R0}, s{S_S}, 3\ns_lshr_b32 s{S_R0}, s{S_R0}, 1" if rot else f"s_mov_b32 s{S_R0}, 0")
    a(f"s_mov_b32 s{S_CNT}, 0\nL_xl:")
    a(f"""s_lshl_b32 s{S_T0}, s{S_R0}, 1
    s_add_u32 s{S_T0}, s{S_T0}, s{S_P}
    s_mul_i32 s{S_T1}, s{S_T0}, 11
    s_lshr_b32 s{S_T1}, s{S_T1}, 5
    s_mul_i32 s{S_T2}, s{S_T1}, 3
    s_sub_u32 s{S_T2}, s{S_T0}, s{S_T2}
    s_lshl_b32 s{S_T2}, s{S_T2}, 14
    s_lshl_b32 s{S_T1}, s{S_T1}, 8
    s_add_u32 s{S_T2}, s{S_T2}, s{S_T1}
    s_lshl_b32 s{S_T3}, s{S_R0}, 13
    s_add_u32 s{S_T3}, s{S_T3}, s{S_M0B}
    s_add_u32 m0, s{S_T3}, {XB}
    s_add_u32 s{S_T2}, s{S_T2}, s{S_XB}
    buffer_load_dwordx4 v{V_DX}, s[{S_X}:{S_X+3}], s{S_T2} offen {wpol} lds
    s_add_u32 s{S_R0}, s{S_R0}, 1
    s_cmp_eq_u32 s{S_R0}, 6
    s_cselect_b32 s{S_R0}, 0, s{S_R0}
    s_add_u32 s{S_CNT}, s{S_CNT}, 1
    s_cmp_lt_u32 s{S_CNT}, 6
    s_cbranch_scc1 L_xl""")
    for _ in range(6): vq.issue("x")
    a(f"""s_lshl_b32 s{S_R1}, s{S_WAVE}, 13
    s_mov_b32 s{S_R2}, {"s%d" % S_B if rot else "0"}""")
    def dma_wq(i):
        a(f"""s_add_u32 s{S_T0}, s{S_R2}, {i}
        s_and_b32 s{S_T0}, s{S_T0}, 7
        s_lshl_b32 s{S_T0}, s{S_T0}, 18
        s_add_u32 m0, s{S_R1}, {(i % 4) * 2048}
        s_add_u32 s{S_T0}, s{S_T0}, s{S_WQB}
        buffer_load_dwordx4 v{V_DWQ}, s[{S_WQ}:{S_WQ+3}], s{S_T0} offen {wpol} lds
        s_add_u32 m0, s{S_R1}, {(i % 4) * 2048 + 1024}
        s_add_u32 s{S_T0}, s{S_T0}, 0x8000
        buffer_load_dwordx4 v{V_DWQ}, s[{S_WQ}:{S_WQ+3}], s{S_T0} offen {wpol} lds""")
        vq.issue(("w", i)); vq.issue(("w", i))
    for i in range(2): dma_wq(i)
    if stamps: a(f"s_memrealtime s[{S_ACC}:{S_ACC+1}]")
    setup2()
    a(f"""s_lshl_b32 s{S_T2}, s{S_B}, 3
    v_mov_b32 v{n+4}, s{S_T2}
    s_and_b32 s{S_T2}, s2, 31
    s_lshl_b32 s{S_T2}, s{S_T2}, 3
    s_add_u32 s{S_T2}, s{S_T2}, s{S_WAVE}
    s_cmp_lg_u32 s{S_T2}, 4
    s_cbranch_scc1 L_nonce_skip
    s_or_b32 s{S_T2}, s{S_NONCE}, 1
    v_mov_b32 v{n}, s{S_T2}
    v_mov_b32 v{n+1}, s{S_NONCE+1}
    s_mov_b64 exec, 1
    buffer_store_dwordx2 {vr(n,2)}, v{n+4}, s[{S_DBG}:{S_DBG+3}], 0 offen sc1
    s_mov_b64 exec, -1
    L_nonce_skip:""")
    wa0, wa1, xa = V_U, V_U + 1, V_U + 2
    a(f"""v_lshrrev_b32 v{t0}, 2, v{V_LANE}
    v_lshlrev_b32 v{t0}, 6, v{t0}
    v_and_b32 v{t1}, 1, v{V_G}
    v_lshl_add_u32 v{t0}, v{t1}, 5, v{t0}
    v_and_b32 v{t1}, 3, v{V_LANE}
    v_lshl_add_u32 v{t0}, v{t1}, 3, v{t0}
    v_add_u32 v{wa0}, s{S_R1}, v{t0}
    v_xor_b32 v{wa1}, 32, v{wa0}
    s_mul_i32 s{S_T2}, s{S_P}, {2*3*4096}
    s_add_u32 s{S_T2}, s{S_T2}, {XB}
    v_add_u32 v{xa}, s{S_T2}, v{V_KA}""")
    if stamps:
        a("s_waitcnt lgkmcnt(0)")
        stamp(0, 0, reg=S_NONCE); stamp(9); stamp(10, 0, reg=S_RET); stamp(11, 0, reg=S_ACC)
    QA = 32
    FR = 64
    def fs(i): return FR + (i % 3) * 20
    extra_p1 = [0]
    def q_reads(i):
        b_ = fs(i)
        if extra_p1[0]:
            La, Lb = a.label("Lw"), a.label("Lw")
            nn = vq.count_after(("w", i))
            a(f"""s_cmp_eq_u32 s{S_P}, 0
            s_cbranch_scc1 {La}
            s_waitcnt vmcnt({nn + extra_p1[0] + (1 if touch & 4 else 0)})
            s_branch {Lb}
            {La}:
            s_waitcnt vmcnt({nn})
            {Lb}:""")
        else:
            vq.wait(("w", i))
        a(f"""s_add_u32 s{S_T0}, s{S_R2}, {i}
        s_bfe_u32 s{S_T1}, s{S_T0}, 0x10002
        s_mul_i32 s{S_T1}, s{S_T1}, 12288
        s_and_b32 s{S_T0}, s{S_T0}, 3
        s_lshl_b32 s{S_T0}, s{S_T0}, 8
        s_add_u32 s{S_T0}, s{S_T0}, s{S_T1}
        v_add_u32 v{t0}, s{S_T0}, v{xa}""")
        for u in range(2):
            for j2 in range(2):
                a(f"ds_read_b64_tr_b16 {vr(b_+u*4+2*j2,2)}, v{wa1 if u else wa0} offset:{(i%4)*2048 + j2*1024}")
        for qt in range(3):
            a(f"ds_read_b128 {vr(b_+8+qt*4,4)}, v{t0} offset:{qt*4096}")
    vq.wait("x")
    a("s_waitcnt lgkmcnt(0)")
    stamp(18)
    a("s_barrier")
    stamp(12)
    for i in range(2, 4): dma_wq(i)
    q_reads(0)
    vmk = VM(a)
    for i in range(8):
        if i + 1 < 8: q_reads(i + 1)
        a(f"s_waitcnt lgkmcnt({7 if i + 1 < 8 else 0})")
        if i + 4 < 8:
            dma_wq(i + 4)
        if i == 3 and early:
            a(f"s_cmp_eq_u32 s{S_P}, 0\ns_cbranch_scc1 L_ekv_skip")
            for pc in range(early): dma_piece(vmk, pc, True)
            a("L_ekv_skip:")
            extra_p1[0] = 2 * early
        if i == 3:
            a(f"""s_cmp_lg_u32 s{S_WAVE}, 0
            s_cbranch_scc1 L_nonce_skip1
            buffer_load_dwordx2 {vr(n,2)}, v{n+4}, s[{S_DBG}:{S_DBG+3}], 0 offen sc1
            L_nonce_skip1:""")
            if touch & 4:
                a(f"""s_cmp_eq_u32 s{S_P}, 0
                s_cbranch_scc1 L_qt_skip
                v_lshlrev_b32 v61, 7, v{V_LANE}
                s_mul_i32 s{S_T2}, s2, {QSTR}
                s_mul_i32 s{S_T3}, s{S_HH}, 3200
                s_add_u32 s{S_T2}, s{S_T2}, s{S_T3}
                s_bfm_b64 exec, 25, 0
                buffer_load_dword v31, v61, s[{S_WS}:{S_WS+3}], s{S_T2} offen
                s_mov_b64 exec, -1
                L_qt_skip:""")
        b_ = fs(i)
        for u in range(2):
            for qt in range(3):
                y = QA + (u * 3 + qt) * 4
                cc = "0" if i == 0 else vr(y, 4)
                a(f"v_mfma_f32_16x16x32_bf16 {vr(y,4)}, {vr(b_+u*4,4)}, {vr(b_+8+qt*4,4)}, {cc}")
    stamp(15)
    a(f"""v_add_u32 v{t0}, s{S_R1}, v{V_L16}
    s_xor_b32 s{S_T2}, s{S_R1}, 0x8000
    v_add_u32 v{t1}, s{S_T2}, v{V_L16}
    s_cmp_lg_u32 s{S_WAVE}, 0
    s_cbranch_scc1 L_nonce_skip2
    s_mov_b32 s{S_CNT}, 0
    L_nonce_retry:
    s_waitcnt vmcnt(0)
    v_readfirstlane_b32 s{S_T2}, v{n}
    s_add_u32 s{S_CNT}, s{S_CNT}, 1
    s_cmp_lg_u32 s{S_T2}, 0
    s_cbranch_scc1 L_nonce_ok
    s_cmp_gt_u32 s{S_CNT}, 0x10000
    s_cbranch_scc1 L_nonce_ok
    buffer_load_dwordx2 {vr(n,2)}, v{n+4}, s[{S_DBG}:{S_DBG+3}], 0 offen sc1
    s_branch L_nonce_retry
    L_nonce_ok:
    v_mov_b32 v{n+2}, {MISC}
    ds_write_b64 v{n+2}, {vr(n,2)}
    L_nonce_skip2:
    s_nop 4
    s_cmp_lg_u32 s{S_P}, 0
    s_cbranch_scc1 L_role1""")

    for p in range(2):
        vm = VM(a)
        if p == 1: vm.ops = list(vmk.ops) + (["pt"] if touch & 4 else [])
        a(f"L_role{p}:")
        for qt in range(3):
            a(f"ds_write_b128 v{t0}, {vr(QA+((1-p)*3+qt)*4,4)} offset:{qt*1024}")
        a(f"v_mov_b32 v{V_T+2}, {MISC}\ns_waitcnt lgkmcnt(0)\ns_barrier")
        RC = 64
        for qt in range(3):
            a(f"ds_read_b128 {vr(RC+qt*4,4)}, v{t1} offset:{qt*1024}")
        a(f"ds_read_b64 {vr(V_T,2)}, v{V_T+2}")
        G = 48
        a(f"""s_lshl_b32 s{S_T3}, s{S_HH}, 10
        s_add_u32 s{S_T2}, s{S_T3}, {SCR + p*512}
        v_lshrrev_b32 v{t0}, 1, v{V_G}
        v_lshlrev_b32 v{t0}, 8, v{t0}
        v_lshl_add_u32 v{t0}, v{V_Q16}, 4, v{t0}
        v_and_b32 v{t1}, 1, v{V_G}
        v_lshl_add_u32 v{t0}, v{t1}, 3, v{t0}
        v_add_u32 v{t0}, s{S_T2}, v{t0}
        s_getreg_b32 s{S_XCC}, hwreg(HW_REG_XCC_ID)
        s_and_b32 s{S_XCC}, s{S_XCC}, 15
        s_waitcnt lgkmcnt(0)""")
        if exp and "fakexcc" in exp:
            a(f"s_lshr_b32 s{S_XCC}, s2, 3")
        for qt in range(3):
            for i in range(4):
                a(f"v_add_f32 v{RC+qt*4+i}, v{RC+qt*4+i}, v{QA+(p*3+qt)*4+i}")
                a(f"v_mul_f32 v{RC+qt*4+i}, s{S_C}, v{RC+qt*4+i}")
            g = 80 + qt * 2
            a(f"""v_cvt_pk_bf16_f32 v{g}, v{RC+qt*4}, v{RC+qt*4+1}
            v_cvt_pk_bf16_f32 v{g+1}, v{RC+qt*4+2}, v{RC+qt*4+3}
            ds_write_b64 v{t0}, {vr(g,2)} offset:{qt*4096}""")
        a(f"""s_waitcnt lgkmcnt(0)
        s_barrier
        v_readfirstlane_b32 s{S_NONCE}, v{V_T}
        v_readfirstlane_b32 s{S_NONCE+1}, v{V_T+1}""")
        if p == 0: stamp(8)
        if exp and "stopq" in exp:
            a("s_waitcnt vmcnt(0)\ns_endpgm")
        for x in (V_KA, V_VA0, V_VA1):
            a(f"v_add_u32 v{x}, {slot_of(p)}, v{x}")
        qst = V_X0 + 1
        a(f"""s_sub_u32 s{S_T0}, s{S_HH}, s{S_S}
        s_and_b32 s{S_T0}, s{S_T0}, 3
        s_mul_i32 s{S_T0}, s{S_T0}, 12288
        s_add_u32 s{S_T0}, s{S_T0}, {SCR}
        v_add_u32 v{qst}, s{S_T0}, v{V_L16}""")
        if p == 0:
            sa = V_X0
            FL = 60
            a(f"""s_mul_i32 s{S_T4}, s{S_HH}, 3072
            s_add_u32 s{S_T1}, s{S_T4}, {SCR}
            v_add_u32 v{t0}, s{S_T1}, v{V_L16}""")
            for i in range(3):
                a(f"ds_read_b128 {vr(G+i*4,4)}, v{t0} offset:{i*1024}")
            a(f"""s_mul_i32 s{S_T0}, s2, {QSTR}
            s_add_u32 s{S_T1}, s{S_T0}, s{S_T4}
            s_lshl_b32 s{S_T2}, s{S_HH}, 7
            s_add_u32 s{S_T2}, s{S_T2}, s{S_T0}
            s_add_u32 s{S_T2}, s{S_T2}, {QREC}
            v_mov_b32 v{FL}, v{V_T}
            v_mov_b32 v{FL+1}, v{V_T+1}
            v_mov_b32 v{FL+2}, s{S_XCC}
            v_mov_b32 v{FL+3}, 0
            v_bfe_u32 v{sa}, v{V_LANE}, 2, 2
            v_mul_u32_u24 v{sa}, {8*QSTR}, v{sa}
            v_and_b32 v{t1}, 3, v{V_LANE}
            v_lshl_add_u32 v{sa}, v{t1}, 7, v{sa}
            s_mov_b32 s{S_T3}, {QB - QX:#x}
            v_mul_lo_u32 v{t1}, v{V_G}, s{S_T3}
            v_add_u32 v{sa}, v{sa}, v{t1}
            s_andn2_b32 s{S_T0}, s2, 24
            s_mul_i32 s{S_T0}, s{S_T0}, {QSTR}
            s_add_u32 s{S_T3}, s{S_T0}, {QREC}
            s_waitcnt lgkmcnt(0)""")
            def q_publish(pol):
                for i in range(3):
                    a(f"buffer_store_dwordx4 {vr(G+i*4,4)}, v{V_L16}, s[{S_WS}:{S_WS+3}], s{S_T1} offen offset:{i*1024} {pol}")
                a(f"""s_waitcnt vmcnt(0)
                s_mov_b64 exec, 1
                buffer_store_dwordx4 {vr(FL,4)}, v{V_L16}, s[{S_WS}:{S_WS+3}], s{S_T2} offen {pol}""")
            if not (exp and "noA" in exp):
                q_publish("")
            a("s_mov_b64 exec, -1")
            stamp(1)
            a(f"""s_mov_b32 s{S_CNT}, 0
            s_mov_b64 exec, 0xffff
            L_qs1:
            buffer_load_dwordx4 {vr(V_T+4,4)}, v{sa}, s[{S_WS}:{S_WS+3}], s{S_T3} offen {lpoll}
            s_add_u32 s{S_CNT}, s{S_CNT}, 1
            s_waitcnt vmcnt(0)
            v_cmp_eq_u64 vcc, s[{S_NONCE}:{S_NONCE+1}], {vr(V_T+4,2)}
            v_cmp_eq_u32 s[{S_ACC}:{S_ACC+1}], s{S_XCC}, v{V_T+6}
            s_andn2_b32 s{S_ACC+1}, vcc_lo, s{S_ACC}
            s_cbranch_scc1 L_qremote
            s_cmp_eq_u32 vcc_lo, 0xffff
            s_cbranch_scc1 L_qlocal
            s_cmp_lt_u32 s{S_CNT}, 10
            s_cbranch_scc1 L_qs1
            L_qremote:
            s_mov_b64 exec, -1
            s_add_u32 s{S_T1}, s{S_T1}, {QB - QX:#x}
            s_add_u32 s{S_T2}, s{S_T2}, {QB - QX:#x}""")
            q_publish("sc1")
            a(f"""s_mov_b64 exec, 0xffffffff
            L_qs2:
            buffer_load_dwordx4 {vr(V_T+4,4)}, v{sa}, s[{S_WS}:{S_WS+3}], s{S_T3} offen sc1
            s_add_u32 s{S_CNT}, s{S_CNT}, 1
            s_waitcnt vmcnt(0)
            v_cmp_eq_u64 vcc, s[{S_NONCE}:{S_NONCE+1}], {vr(V_T+4,2)}
            v_cmp_eq_u32 s[{S_ACC}:{S_ACC+1}], s{S_XCC}, v{V_T+6}
            s_and_b32 s{S_ACC}, s{S_ACC}, vcc_lo
            s_and_b32 s{S_ACC}, s{S_ACC}, 0xffff
            s_cmp_eq_u32 s{S_ACC}, 0xffff
            s_cbranch_scc1 L_qlocal
            s_lshr_b32 s{S_ACC}, vcc_lo, 16
            s_cmp_eq_u32 s{S_ACC}, 0xffff
            s_cbranch_scc1 L_qfar
            s_cmp_lt_u32 s{S_CNT}, 0x8000
            s_cbranch_scc1 L_qs2
            L_qfar:
            s_mov_b32 s{S_LOCAL}, 1
            s_add_u32 s{S_T0}, s{S_T0}, {QB - QX:#x}
            s_branch L_qgo
            L_qlocal:
            s_mov_b32 s{S_LOCAL}, 3
            L_qgo:
            s_mov_b64 exec, -1
            v_mov_b32 v{V_T+4}, s{S_LOCAL}
            s_lshl_b32 s{S_T2}, s{S_HH}, 2
            s_add_u32 s{S_T2}, s{S_T2}, {MISC2}
            v_mov_b32 v{V_T+5}, s{S_T2}
            ds_write_b32 v{V_T+5}, v{V_T+4}
            s_add_u32 s{S_T0}, s{S_T0}, s{S_T4}
            s_add_u32 s{S_T4}, s{S_T4}, {SCR}""")
            if stamps:
                a(f"s_mov_b32 s{S_ACC}, s{S_CNT}\ns_mov_b32 s{S_ACC+1}, 0")
                stamp(17, 1, reg=S_ACC); stamp(16, 1)
            a(f"s_cmp_eq_u32 s{S_LOCAL}, 3\ns_cbranch_scc1 L_qld_local")
            for fl in ("sc1", ""):
                if not fl: a("L_qld_local:")
                for j in range(1, 4):
                    a(f"""s_add_u32 s{S_T1}, s{S_S}, {j}
                    s_and_b32 s{S_T1}, s{S_T1}, 3
                    s_mul_i32 s{S_T1}, s{S_T1}, {8*QSTR}
                    s_add_u32 s{S_T2}, s{S_T4}, {j*12288}
                    s_mov_b32 m0, s{S_T2}
                    s_add_u32 s{S_T1}, s{S_T1}, s{S_T0}""")
                    for i in range(3):
                        a(f"buffer_load_dwordx4 v{V_L16}, s[{S_WS}:{S_WS+3}], s{S_T1} offen offset:{i*1024} {fl} lds")
                if fl: a("s_branch L_qld_done")
            a(f"""L_qld_done:
            v_mov_b32 v{V_T+4}, {MISC2}
            s_waitcnt vmcnt(0) lgkmcnt(0)""")
            vm.ops = []
            stamp(28, 1)
            stamp(2)
            a("s_barrier")
            a(f"ds_read_b128 {vr(V_T,4)}, v{V_T+4}")
            for i in range(4):
                a(f"ds_read_b128 {vr(V_Q+i*4,4)}, v{qst} offset:{i*1024}")
            for idx in range(8): a(k_read(idx))
            for i in range(4, 12):
                a(f"ds_read_b128 {vr(V_Q+i*4,4)}, v{qst} offset:{i*1024}")
            a("s_waitcnt lgkmcnt(15)")
        else:
            a(f"v_mov_b32 v{V_T+4}, {MISC2}\ns_mov_b32 s{S_CNT}, 0")
            for pc in range(early, early + ekv): dma_piece(vm, pc, True)
            for pc in range(early + ekv, NPRO):
                L = a.label("Lgo")
                a(f"""s_cmp_lg_u32 s{S_CNT}, 0
                s_cbranch_scc1 {L}
                ds_read_b128 {vr(V_T,4)}, v{V_T+4}
                s_waitcnt vmcnt({max(depth-2,0)}) lgkmcnt(0)
                v_and_b32 v{V_T}, v{V_T}, v{V_T+1}
                v_and_b32 v{V_T+2}, v{V_T+2}, v{V_T+3}
                v_and_b32 v{V_T}, v{V_T}, v{V_T+2}
                s_nop 0
                v_readfirstlane_b32 s{S_CNT}, v{V_T}
                {L}:""")
                dma_piece(vm, pc, True)
            stamp(19, 4)
            if vm.has(("kv", 3)): vm.wait(("kv", 3))
            a(f"v_mov_b32 v{V_T+4}, {MISC2}")
            a("s_barrier")
            a(f"ds_read_b128 {vr(V_T,4)}, v{V_T+4}")
            for i in range(4):
                a(f"ds_read_b128 {vr(V_Q+i*4,4)}, v{qst} offset:{i*1024}")
            for idx in range(8): a(k_read(idx))
            for i in range(4, 12):
                a(f"ds_read_b128 {vr(V_Q+i*4,4)}, v{qst} offset:{i*1024}")
            a("s_waitcnt lgkmcnt(15)")
        a(f"""v_and_b32 v{V_T}, v{V_T}, v{V_T+1}
        v_and_b32 v{V_T+2}, v{V_T+2}, v{V_T+3}
        v_and_b32 v{V_T}, v{V_T}, v{V_T+2}
        v_lshrrev_b32 v{V_T}, 1, v{V_T}
        s_nop 0
        v_readfirstlane_b32 s{S_LOCAL}, v{V_T}""")
        if exp and "nolocal" in exp:
            a(f"s_mov_b32 s{S_LOCAL}, 0")
        def pr(i):
            if lad: a(f"s_setprio {lad[p][i]}")
        WA = V_Q
        woa0, woa1 = V_X0, V_X0 + 1
        for r in range(8):
            t = 2 * r + p
            first = (r == 0)
            if r > 0:
                need = ("kv", 4 * r + 3)
                if vm.has(need): vm.wait(need)
                a("s_barrier")
                if p == 0:
                    stamp(30 + r, 0)
                    if r == 4: stamp(38, 0, True)
                    if r == 7: stamp(39, 0, True)
            pr(0)
            if r > 0 and p == 0:
                for idx in range(8): a(k_read(idx))
            dm = [capture(lambda: {"kv": dma_piece, "wo": dma_wo, "pt": touch_ld}[k](vm, x)) for k, x in plan.get(r, [])]
            h = (len(dm) + 1) // 2
            if p == 1 and r > 0:
                f1 = (r == 1)
                interleave([pv_mfma(dt, 0, f1) for dt in range(8)], dm[:h])
                interleave([pv_mfma(dt, 1, f1) for dt in range(8)], dm[h:])
                for dt in range(8):
                    a(pv_mfma(dt, 2, f1)); a(k_read(dt))
                dm = []
            elif r == 0 or r == 7:
                for d in dm: a(d)
                dm = []
            pr(1)
            for idx in range(8):
                a(f"s_waitcnt lgkmcnt({7-idx + (8 if first else 0)})")
                a(qk_mfma(idx, 0, first))
            if first: a("s_waitcnt lgkmcnt(0)")
            pr(2)
            if first:
                def first_ops(qt):
                    txt = capture(lambda: init_max(qt)).split("\n")
                    ops, cur = [], []
                    for l in txt:
                        cur.append(l)
                        if not (l.startswith("s_nop") or l.startswith("v_permlane") or l.startswith("v_mov_b32 v3")):
                            ops.append("\n".join(cur)); cur = []
                    if cur: ops.append("\n".join(cur))
                    return ops + sm_ops(qt, False)
                interleave([qk_mfma(idx, 1, first) for idx in range(8)], first_ops(0), lead=0 if False else 0) if False else None
                mf1 = [qk_mfma(idx, 1, first) for idx in range(8)]
                for m_ in mf1[:4]: a(m_)
                a("s_nop 3")
                interleave(mf1[4:], first_ops(0))
                mf = [qk_mfma(idx, 2, first) + "\n" + v_read(idx, 0) + "\n" + v_read(idx, 1) for idx in range(8)]
                interleave(mf, first_ops(1), lead=2)
                smq2 = first_ops(2)
            else:
                interleave([qk_mfma(idx, 1, False) for idx in range(8)], sm_ops(0, True))
                s1 = sm_ops(1, True)
                mf = [qk_mfma(idx, 2, False) + "\n" + v_read(idx, 0) + "\n" + v_read(idx, 1) for idx in range(8)]
                interleave(mf, s1)
                smq2 = sm_ops(2, True)
            if r < 7:
                d = slot_of(t + 2) - slot_of(t)
                adv = [f"v_add_u32 v{x}, {d & 0xffffffff:#x}, v{x}" for x in (V_KA, V_VA0, V_VA1)]
                wor = []
            else:
                adv = [f"""v_subrev_u32 v{woa0}, {slot_of(t)}, v{V_VA0}
                s_and_b32 s{S_T2}, s{S_WAVE}, 1
                s_lshl_b32 s{S_T2}, s{S_T2}, 5
                v_xor_b32 v{woa0}, s{S_T2}, v{woa0}
                s_lshr_b32 s{S_T2}, s{S_WAVE}, 1
                s_lshl_b32 s{S_T2}, s{S_T2}, 9
                s_add_u32 s{S_T2}, s{S_T2}, {2*SLOT}
                v_add_u32 v{woa0}, s{S_T2}, v{woa0}
                v_add_u32 v{woa1}, {4*SLOT}, v{woa0}"""]
                wor = []
                for k in range(12):
                    sl = WOSLOT[k >> 1]
                    ad = woa0 if sl < 6 else woa1
                    off = (sl - 2 if sl < 6 else sl - 6) * SLOT + (k & 1) * 8192
                    for j2 in range(2):
                        wor.append(f"ds_read_b64_tr_b16 {vr(WA+k*4+2*j2,2)}, v{ad} offset:{off + j2*4096}")
            pr(3)
            if p == 0:
                mf = [f"s_waitcnt lgkmcnt({14-2*dt})\n" + pv_mfma(dt, 0, first) for dt in range(8)]
                interleave(mf, smq2, lead=2)
                pr(4)
                interleave([pv_mfma(dt, 1, first) for dt in range(8)], adv + dm[:h])
                a("s_nop 1")
                interleave([pv_mfma(dt, 2, first) for dt in range(8)], dm[h:])
            else:
                for o in adv: a(o)
                a("s_nop 3")
                for o in smq2: a(o)
                a("s_waitcnt lgkmcnt(0)")
        vm.wait(("wo", 11))
        a("s_waitcnt lgkmcnt(0)\ns_barrier")
        a("s_setprio 0")
        if p == 0:
            stamp(3)
            for o in wor: a(o)
            for qt in range(3):
                xlane("v_add_f32", V_L + qt, V_T + 6, V_T + 7)
            a("s_waitcnt lgkmcnt(0)\ns_barrier")
            stamp(25)
        else:
            a("s_setprio 3")
            xl = [capture(lambda: xlane("v_add_f32", V_L + qt, V_T + 6, V_T + 7)) for qt in range(3)]
            interleave([pv_mfma(dt, qt, False) for dt in range(4) for qt in range(3)], wor + xl)
            a("s_waitcnt lgkmcnt(0)\ns_barrier")
            late = [pv_mfma(dt, qt, False) for dt in range(4, 8) for qt in range(3)]
        cw, cr, mw, mr = V_T, V_KA, V_T + 2, V_T + 3
        def cb_const(v): return 98304 + v * 12288 if v < 5 else (65536 + (v - 5) * 12288 if v < 7 else 0)
        def cb_addr(sdst, pp):
            c = [cb_const(4 * pp + h_) for h_ in range(4)]
            if pp == 0:
                a(f"s_mul_i32 s{sdst}, s{S_HH}, 12288\ns_add_u32 s{sdst}, s{sdst}, 98304")
            else:
                a(f"""s_mov_b32 s{sdst}, {c[0]}
                s_cmp_eq_u32 s{S_HH}, 1
                s_cselect_b32 s{sdst}, {c[1]}, s{sdst}
                s_cmp_eq_u32 s{S_HH}, 2
                s_cselect_b32 s{sdst}, {c[2]}, s{sdst}
                s_cmp_eq_u32 s{S_HH}, 3
                s_cselect_b32 s{sdst}, {c[3]}, s{sdst}""")
        cb_addr(S_T0, p); cb_addr(S_T1, 1 - p)
        a(f"""v_add_u32 v{cr}, s{S_T1}, v{V_L16}
        v_add_u32 v{cw}, s{S_T0}, v{V_L16}
        s_lshl_b32 s{S_T0}, s{S_WAVE}, 11
        s_add_u32 s{S_T0}, s{S_T0}, {SLOT}
        s_xor_b32 s{S_T1}, s{S_T0}, 0x2000
        v_lshlrev_b32 v{mw}, 2, v{V_LANE}
        v_add_u32 v{mr}, s{S_T1}, v{mw}
        v_add_u32 v{mw}, s{S_T0}, v{mw}""")
        own0, oth0 = 4 * p, 4 * (1 - p)
        for qt in range(3):
            a(f"ds_write_b32 v{mw}, v{NM(qt)} offset:{qt*256}")
            a(f"ds_write_b32 v{mw}, v{V_L+qt} offset:{768+qt*256}")
        cbw = [f"ds_write_b128 v{cw}, {vr(O(oth0,0)+i*4,4)} offset:{i*1024}" for i in range(12)]
        if p == 1:
            interleave(late, cbw)
        else:
            for o in cbw: a(o)
        a("s_waitcnt lgkmcnt(0)\ns_barrier\ns_setprio 0")
        if p == 0: stamp(26)
        NMo, Lo = V_P, V_P + 3
        for qt in range(3):
            a(f"ds_read_b32 v{NMo+qt}, v{mr} offset:{qt*256}")
            a(f"ds_read_b32 v{Lo+qt}, v{mr} offset:{768+qt*256}")
        for i in range(12):
            a(f"ds_read_b128 {vr(O(oth0,0)+i*4,4)}, v{cr} offset:{i*1024}")
        a("s_waitcnt lgkmcnt(12)")
        FA, FB, LL = 88, 96, 104
        for qt in range(3):
            n_ = V_F + qt
            fa, fb = FA + 2 * qt, FB + 2 * qt
            a(f"""v_min_f32 v{n_}, v{NM(qt)}, v{NMo+qt}
            v_sub_f32 v{fa}, v{n_}, v{NM(qt)}
            v_sub_f32 v{fb}, v{n_}, v{NMo+qt}
            v_exp_f32 v{fa}, v{fa}
            v_exp_f32 v{fb}, v{fb}
            s_nop 0
            v_mul_f32 v{LL+qt}, v{fa}, v{V_L+qt}
            v_fma_f32 v{LL+qt}, v{fb}, v{Lo+qt}, v{LL+qt}
            v_rcp_f32 v{V_F+4}, v{LL+qt}
            v_log_f32 v{LL+qt}, v{LL+qt}
            s_nop 0
            v_mul_f32 v{fa}, v{fa}, v{V_F+4}
            v_mul_f32 v{fb}, v{fb}, v{V_F+4}
            v_sub_f32 v{LL+qt}, v{LL+qt}, v{n_}""")
        a(f"""s_lshl_b32 s{S_T0}, s2, 3
        s_add_u32 s{S_T0}, s{S_T0}, s{S_WAVE}
        s_mul_i32 s{S_T1}, s{S_T0}, {OREC}
        s_add_u32 s{S_T1}, s{S_T1}, {OX}
        s_add_u32 s{S_T2}, s{S_T1}, 6144
        s_mov_b64 exec, 0xffff
        """)
        def st1(txt):
            La, Lb = a.label("Ls"), a.label("Ls")
            a(f"""s_cbranch_scc1 {La}
            {txt} sc1
            s_branch {Lb}
            {La}:
            {txt}
            {Lb}:""")
        a(f"s_cmp_lg_u32 s{S_LOCAL}, 0")
        st1(f"buffer_store_dwordx4 {vr(LL,4)}, v{V_L16}, s[{S_WS}:{S_WS+3}], s{S_T2} offen")
        a("s_mov_b64 exec, -1")
        OF = V_F + 8
        for tl in range(2):
            a(f"s_waitcnt lgkmcnt({6 - 6*tl})")
            for qt in range(3):
                for h2 in range(2):
                    dt = own0 + tl * 2 + h2
                    o = O(dt, qt); x = O(oth0 + tl * 2 + h2, qt)
                    for k in range(2):
                        a(f"v_pk_mul_f32 {vr(o+2*k,2)}, {vr(o+2*k,2)}, {vr(FA+2*qt,2)} op_sel_hi:[1,0]")
                        a(f"v_pk_fma_f32 {vr(o+2*k,2)}, {vr(x+2*k,2)}, {vr(FB+2*qt,2)}, {vr(o+2*k,2)} op_sel_hi:[1,0,1]")
                    d = OF + (tl * 3 + qt) * 4 + h2 * 2
                    a(f"v_cvt_pk_bf16_f32 v{d}, v{o}, v{o+1}")
                    a(f"v_cvt_pk_bf16_f32 v{d+1}, v{o+2}, v{o+3}")
                i = tl * 3 + qt
                if i == 4:
                    a(f"s_add_u32 s{S_T1}, s{S_T1}, 4096\ns_cmp_lg_u32 s{S_LOCAL}, 0")
                st1(f"buffer_store_dwordx4 {vr(OF+i*4,4)}, v{V_L16}, s[{S_WS}:{S_WS+3}], s{S_T1} offen offset:{(i&3)*1024}")
        if p == 0:
            stamp(27)
            a("s_branch L_tail")
    a("L_tail:")
    woa0 = V_X0
    fa_ = V_X0 + 2
    OF = V_F + 8
    LL = 104
    a(f"""v_mov_b32 v{V_T+2}, s{S_NONCE}
    v_mov_b32 v{V_T+3}, s{S_NONCE+1}
    v_mov_b32 v{V_T+4}, 0
    s_mul_i32 s{S_T1}, s{S_T0}, {OREC}
    s_add_u32 s{S_T1}, s{S_T1}, {OX + 6400}
    s_andn2_b32 s{S_T0}, s{S_T0}, 0xc0
    s_mul_i32 s{S_T0}, s{S_T0}, {OREC}
    s_add_u32 s{S_T0}, s{S_T0}, {OX}
    v_add_u32 v{fa_}, s{S_S}, v{V_LANE}
    v_add_u32 v{fa_}, 1, v{fa_}
    v_and_b32 v{fa_}, 3, v{fa_}
    v_mul_u32_u24 v{fa_}, {64*OREC}, v{fa_}
    s_add_u32 s{S_T3}, s{S_T0}, 6400
    s_mov_b32 s{S_CNT}, 0
    s_cmp_lg_u32 s{S_LOCAL}, 0
    s_waitcnt vmcnt(0)
    s_mov_b64 exec, 1""")
    st1(f"buffer_store_dwordx2 {vr(V_T+2,2)}, v{V_T+4}, s[{S_WS}:{S_WS+3}], s{S_T1} offen")
    a("s_mov_b64 exec, -1")
    stamp(4)
    SP = [S_TAG, S_TAG + 1, S_TAG + 2]
    for j in range(3):
        a(f"""s_add_u32 s{SP[j]}, s{S_S}, {j+1}
        s_and_b32 s{SP[j]}, s{SP[j]}, 3
        s_mul_i32 s{SP[j]}, s{SP[j]}, {64*OREC}
        s_add_u32 s{SP[j]}, s{SP[j]}, s{S_T0}""")
    q16 = V_X0 + 3
    a(f"""v_lshlrev_b32 v{q16}, 4, v{V_Q16}
    v_add_u32 v{q16}, 6144, v{q16}
    s_mov_b64 exec, 7
    L_fpoll:
    s_cmp_lg_u32 s{S_LOCAL}, 0
    s_cbranch_scc1 L_fp_l
    buffer_load_dwordx2 {vr(V_T,2)}, v{fa_}, s[{S_WS}:{S_WS+3}], s{S_T3} offen sc1
    s_branch L_fp_d
    L_fp_l:
    buffer_load_dwordx2 {vr(V_T,2)}, v{fa_}, s[{S_WS}:{S_WS+3}], s{S_T3} offen {lpoll}
    L_fp_d:
    s_add_u32 s{S_CNT}, s{S_CNT}, 1
    s_waitcnt vmcnt(0)
    v_cmp_ne_u64 vcc, s[{S_NONCE}:{S_NONCE+1}], {vr(V_T,2)}
    s_cmp_gt_u32 s{S_CNT}, 0x10000
    s_cbranch_scc1 L_fok
    s_cbranch_vccnz L_fpoll
    L_fok:
    s_mov_b64 exec, -1""")
    stamp(5)
    PL = 32
    PF = 160
    a(f"s_cmp_lg_u32 s{S_LOCAL}, 0\ns_cbranch_scc1 L_old_local")
    for fl in (" sc1", ""):
        if not fl: a("L_old_local:")
        for j in range(3):
            a(f"buffer_load_dwordx4 {vr(PL+j*4,4)}, v{q16}, s[{S_WS}:{S_WS+3}], s{SP[j]} offen{fl}")
        for half in range(2):
            for j in range(3):
                for i3 in range(3):
                    i = half * 3 + i3
                    a(f"buffer_load_dwordx4 {vr(PF+(j*6+i)*4,4)}, v{V_L16}, s[{S_WS}:{S_WS+3}], s{SP[j]} offen offset:{i3*1024}{fl}")
                if half == 0: a(f"s_add_u32 s{SP[j]}, s{SP[j]}, 3072")
        if fl: a("s_branch L_old_done")
    a("L_old_done:")
    if stamps: a(f"s_memrealtime s[{S_RET}:{S_RET+1}]")
    a("s_waitcnt vmcnt(18)")
    if stamps: a(f"s_memrealtime s[{S_SUB}:{S_SUB+1}]")
    def W(j, qt): return 232 + (j * 3 + qt) * 2
    for qt in range(3):
        mx = V_T
        w = [LL + qt] + [PL + j * 4 + qt for j in range(3)]
        a(f"""v_max3_f32 v{mx}, v{w[0]}, v{w[1]}, v{w[2]}
        v_max_f32 v{mx}, v{mx}, v{w[3]}""")
        for j in range(4): a(f"v_sub_f32 v{w[j]}, v{w[j]}, v{mx}")
        for j in range(4): a(f"v_exp_f32 v{w[j]}, v{w[j]}")
        a(f"""s_nop 0
        v_add_f32 v{mx}, v{w[0]}, v{w[1]}
        v_add_f32 v{mx+1}, v{w[2]}, v{w[3]}
        v_add_f32 v{mx}, v{mx}, v{mx+1}
        v_rcp_f32 v{mx}, v{mx}
        s_nop 0""")
        for j in range(4): a(f"v_mul_f32 v{W(j,qt)}, v{w[j]}, v{mx}")
    CA = 32
    def cb_const(v): return 98304 + v * 12288 if v < 5 else (65536 + (v - 5) * 12288 if v < 7 else 0)
    a(f"""s_mov_b32 s{S_T3}, 0xffff0000
    v_add_u32 v{V_VA0}, 0x10000, v{V_L16}
    v_add_u32 v{V_VA1}, 0x20000, v{V_L16}""")
    for half in range(2):
        for j in range(4):
            if j > 0:
                a(f"s_waitcnt vmcnt({18 - 9*half - 3*j})")
                if stamps and j == 3: a(f"s_memrealtime s[{S_SUB+2+2*half}:{S_SUB+3+2*half}]")
            for qt in range(3):
                i = half * 3 + qt
                src = OF + i * 4 if j == 0 else PF + ((j - 1) * 6 + i) * 4
                for d in range(4):
                    c0 = CA + qt * 8 + 2 * d
                    tt = V_T + (d & 1) * 2
                    a(f"v_lshlrev_b32 v{tt}, 16, v{src+d}")
                    a(f"v_and_b32 v{tt+1}, s{S_T3}, v{src+d}")
                    if j == 0:
                        a(f"v_pk_mul_f32 {vr(c0,2)}, {vr(tt,2)}, {vr(W(j,qt),2)} op_sel_hi:[1,0]")
                    else:
                        a(f"v_pk_fma_f32 {vr(c0,2)}, {vr(tt,2)}, {vr(W(j,qt),2)}, {vr(c0,2)} op_sel_hi:[1,0,1]")
        for qt in range(3):
            i = half * 3 + qt
            for d in range(4):
                a(f"v_cvt_pk_bf16_f32 v{OF+i*4+d}, v{CA+qt*8+2*d}, v{CA+qt*8+2*d+1}")
            a(f"ds_write_b128 v{V_KA}, {vr(OF+i*4,4)} offset:{i*1024}")
    WB = 32
    a("s_waitcnt lgkmcnt(0)")
    stamp(24)
    a("s_barrier")
    stamp(6)
    stamp(20, 0, reg=S_RET); stamp(21, 0, reg=S_SUB); stamp(22, 0, reg=S_SUB+2); stamp(23, 0, reg=S_SUB+4)
    YA = 88
    NB = 8
    def bset(k): return 160 + (k % NB) * 12
    def breads(k):
        for qt in range(3):
            hh_, p_, tl_ = k >> 2, (k >> 1) & 1, k & 1
            off = cb_const((4 * p_ + hh_) ^ 4) + (tl_ * 3 + qt) * 1024
            a(f"ds_read_b128 {vr(bset(k)+qt*4,4)}, v{(V_L16, V_VA0, V_VA1)[off >> 16]} offset:{off & 0xffff}")
        if 4 <= k < 8:
            kk = k + 8
            for j2 in range(2):
                a(f"ds_read_b64_tr_b16 {vr(WB+(kk-12)*4+2*j2,2)}, v{woa0} offset:{(WOSLOT[kk>>1]-2)*SLOT + (kk&1)*8192 + j2*4096}")
    def nreads(k): return 3 + (2 if 4 <= k < 8 else 0)
    LA = 3
    for k in range(LA): breads(k)
    for k in range(16):
        if k + LA < 16: breads(k + LA)
        a(f"s_waitcnt lgkmcnt({min(15, sum(nreads(x) for x in range(k + 1, min(16, k + LA + 1))))})")
        af = V_Q + k * 4 if k < 12 else WB + (k - 12) * 4
        for qt in range(3):
            y = YA + qt * 4
            c = "0" if k == 0 else vr(y, 4)
            a(f"v_mfma_f32_16x16x32_bf16 {vr(y,4)}, {vr(af,4)}, {vr(bset(k)+qt*4,4)}, {c}")
    a(f"""s_and_b32 s{S_TAG}, s{S_NONCE}, 0xfff
    s_bfe_u32 s{S_TAG+1}, s{S_NONCE}, 0xc000c
    s_lshr_b64 s[{S_T0}:{S_T1}], s[{S_NONCE}:{S_NONCE+1}], 24
    s_and_b32 s{S_TAG+2}, s{S_T0}, 0xfff
    s_bfe_u32 s{S_TAG+3}, s{S_T0}, 0xc000c
    v_mov_b32 v{V_T}, 0xfff
    s_lshl_b32 s{S_T0}, s2, 3
    s_add_u32 s{S_T0}, s{S_T0}, s{S_WAVE}
    s_mul_i32 s{S_T0}, s{S_T0}, 3072
    s_add_u32 s{S_T0}, s{S_T0}, {YX}
    s_mul_i32 s{S_T1}, s{S_HH}, 3072
    s_add_u32 s{S_T1}, s{S_T1}, {SLOT}
    v_add_u32 v{V_X0+2}, s{S_T1}, v{V_L16}""")
    for i in range(3):
        y = YA + i * 4
        for e in range(4):
            a(f"v_add_u32 v{y+e}, 0x800, v{y+e}")
            a(f"v_bfi_b32 v{y+e}, v{V_T}, s{S_TAG+e}, v{y+e}")
    def ystores(base):
        for i in range(3):
            a(f"buffer_store_dwordx4 {vr(base+i*4,4)}, v{V_L16}, s[{S_WS}:{S_WS+3}], s{S_T0} offen offset:{i*1024} sc1")
    a(f"s_cmp_lg_u32 s{S_P}, 0\ns_cbranch_scc1 L_y1")
    for i in range(3):
        a(f"ds_write_b128 v{V_X0+2}, {vr(YA+i*4,4)} offset:{i*1024}")
    a("s_waitcnt lgkmcnt(0)\ns_barrier\ns_branch L_y2\nL_y1:")
    ystores(YA)
    a("s_barrier")
    for i in range(3):
        a(f"ds_read_b128 {vr(160+i*4,4)}, v{V_X0+2} offset:{i*1024}")
    a(f"s_sub_u32 s{S_T0}, s{S_T0}, {4*3072}\ns_waitcnt lgkmcnt(0)")
    ystores(160)
    a("s_endpgm\nL_y2:")
    stamp(29)
    ys = V_X0
    a(f"""s_cmp_ge_u32 s{S_WAVE}, 3
    s_cbranch_scc1 L_end
    s_andn2_b32 s{S_T0}, s2, 7
    s_lshl_b32 s{S_T0}, s{S_T0}, 3
    s_add_u32 s{S_T0}, s{S_T0}, s{S_HKV}
    s_mul_i32 s{S_T0}, s{S_T0}, 3072
    s_lshl_b32 s{S_T1}, s{S_WAVE}, 10
    s_add_u32 s{S_T0}, s{S_T0}, s{S_T1}
    s_add_u32 s{S_T0}, s{S_T0}, {YX}
    s_mov_b32 s{S_CNT}, 0
    s_mov_b32 s{S_T3}, 0xfffff000
    """)
    if ysent:
        a(f"""    v_mul_u32_u24 v{ys}, {8*3072}, v{V_LANE}
    v_add_u32 v{ys}, 1008, v{ys}
    s_mov_b64 exec, 0xff
    L_ysent:
    buffer_load_dwordx4 {vr(V_T+4,4)}, v{ys}, s[{S_WS}:{S_WS+3}], s{S_T0} offen sc1
    s_add_u32 s{S_CNT}, s{S_CNT}, 1
    s_waitcnt vmcnt(0)
    v_xor_b32 v{V_T+1}, s{S_TAG}, v{V_T+4}
    v_bitop3_b32 v{V_T+1}, v{V_T+1}, v{V_T+5}, s{S_TAG+1} bitop3:0xf6
    v_bitop3_b32 v{V_T+1}, v{V_T+1}, v{V_T+6}, s{S_TAG+2} bitop3:0xf6
    v_and_b32 v{V_T+1}, v{V_T+1}, v{V_T}
    v_cmp_ne_u32 vcc, 0, v{V_T+1}
    s_cmp_gt_u32 s{S_CNT}, 0x10000
    s_cbranch_scc1 L_ysent_x
    s_cbranch_vccnz L_ysent
    L_ysent_x:
    s_mov_b64 exec, -1
    s_mov_b32 s{S_CNT}, 0""")
    a(f"""    L_ypoll:
    s_mov_b32 s{S_T1}, s{S_T0}""")
    YR = 160
    for j in range(8):
        a(f"buffer_load_dwordx4 {vr(YR+j*4,4)}, v{V_L16}, s[{S_WS}:{S_WS+3}], s{S_T1} offen sc1")
        if j < 7:
            a(f"s_add_u32 s{S_T1}, s{S_T1}, {8*3072}")
    for e in range(4):
        a(f"v_mov_b32 v{V_T+1+e}, 0")
    SUMR = 112
    for j in range(8):
        if j % 2 == 0:
            a(f"s_waitcnt vmcnt({6 - j})")
        for e in range(4):
            r = YR + j * 4 + e
            a(f"v_bitop3_b32 v{V_T+1+e}, v{V_T+1+e}, v{r}, s{S_TAG+e} bitop3:0xf6")
            if j == 0:
                a(f"v_and_b32 v{SUMR+e}, s{S_T3}, v{r}")
            else:
                a(f"v_and_b32 v{r}, s{S_T3}, v{r}")
                a(f"v_add_f32 v{SUMR+e}, v{SUMR+e}, v{r}")
    a(f"""v_or3_b32 v{V_T+1}, v{V_T+1}, v{V_T+2}, v{V_T+3}
    v_or_b32 v{V_T+1}, v{V_T+1}, v{V_T+4}
    v_and_b32 v{V_T+1}, v{V_T+1}, v{V_T}
    v_cmp_ne_u32 vcc, 0, v{V_T+1}
    s_cbranch_vccz L_yok
    s_add_u32 s{S_CNT}, s{S_CNT}, 1
    s_cmp_lt_u32 s{S_CNT}, 0x10000
    s_cbranch_scc1 L_ypoll
    L_yok:
    v_cvt_pk_bf16_f32 v{V_T+2}, v{SUMR}, v{SUMR+1}
    v_cvt_pk_bf16_f32 v{V_T+3}, v{SUMR+2}, v{SUMR+3}
    v_lshlrev_b32 v{V_X0}, 10, v{V_Q16}
    v_lshl_add_u32 v{V_X0}, v{V_G}, 3, v{V_X0}
    s_mul_i32 s{S_T0}, s{S_B}, {48*1024}
    s_lshl_b32 s{S_T1}, s{S_WAVE}, 14
    s_add_u32 s{S_T0}, s{S_T0}, s{S_T1}
    s_lshl_b32 s{S_T1}, s{S_S}, 8
    s_add_u32 s{S_T0}, s{S_T0}, s{S_T1}
    s_lshl_b32 s{S_T1}, s{S_HKV}, 5
    s_add_u32 s{S_T0}, s{S_T0}, s{S_T1}
    buffer_store_dwordx2 {vr(V_T+2,2)}, v{V_X0}, s[{S_OUT}:{S_OUT+3}], s{S_T0} offen""")
    if stamps: a("s_waitcnt vmcnt(0)")
    stamp(7)
    a("L_end:\ns_endpgm")

    for qt in range(3):
        a(f"L_rescale{qt}:")
        a("s_nop 7")
        d, al = V_T, V_T + 1
        tile_max(qt, d)
        a(f"""v_max_f32 v{d}, 0, v{d}
        v_sub_f32 v{al}, 0, v{d}
        v_exp_f32 v{al}, v{al}""")
        for i in range(4):
            a(f"v_sub_f32 v{NM(qt)+i}, v{NM(qt)+i}, v{d}")
        for kt in range(2):
            for i in range(4):
                a(f"v_sub_f32 v{S(kt,qt)+i}, v{S(kt,qt)+i}, v{d}")
        a(f"v_mul_f32 v{V_L+qt}, v{V_L+qt}, v{al}")
        for dt in range(8):
            for i in range(4):
                a(f"v_mul_f32 v{O(dt,qt)+i}, v{O(dt,qt)+i}, v{al}")
        for o in sm_ops(qt, False)[:-1]:
            a(o)
        a("s_nop 1")
        a(f"s_setpc_b64 s[{S_RET}:{S_RET+1}]")
    a("L_code_end:")
    a(".fill 3072, 4, 0xBF800000")
    a.end_kernel(MAIN, 256, sgpr=102, accum=256)
    hdr = """Fused GQA block (Q-proj + split-K attention over the KV cache + out-proj), one launch.
Generated by gen/attn6.py (hand-written generator).
kernarg: x, k_cache, v_cache, wq, wo, out, debug, ws"""
    txt = a.text(hdr)
    est = 0
    for l in a.lines:
        t = l.strip()
        if not l.startswith("  ") or t.startswith("."): continue
        est += 4 if (t.startswith("s_") and not t.startswith("s_load") and not t.startswith("s_mem")) else 8
    nld = 5
    pf = []
    for i in range(nld):
        pf.append(f"  global_load_dword v31, v{t0}, s[{S_ACC}:{S_ACC+1}]")
        pf.append(f"  v_add_u32 v{t0}, 0x2000, v{t0}")
    txt = txt.replace("  PFC_LOADS", "\n".join(pf))
    return txt


if __name__ == "__main__":
    import argparse
    ap = argparse.ArgumentParser()
    ap.add_argument("-o", default="standalone__gqa_block_cached__near_ridge.s")
    ap.add_argument("--stamps", action="store_true")
    ap.add_argument("--kvpol", default="nt")
    ap.add_argument("--wpol", default="")
    ap.add_argument("--thr", type=float, default=256.0)
    ap.add_argument("--depth", type=int, default=6)
    ap.add_argument("--sched", default="0,5,5,5,4")
    ap.add_argument("--nopfc", action="store_true")
    ap.add_argument("--nolad", action="store_true")
    ap.add_argument("--exp", default="")
    ap.add_argument("--norot", action="store_true")
    ap.add_argument("--ekv", type=int, default=3)
    ap.add_argument("--lpoll", default="nt")
    ap.add_argument("--touch", type=int, default=4)
    ap.add_argument("--npro", type=int, default=13)
    ap.add_argument("--noysep", action="store_true")
    ap.add_argument("--qahead", type=int, default=2)
    ap.add_argument("--krot", type=int, default=0)
    ap.add_argument("--early", type=int, default=0)
    args = ap.parse_args()
    kw = {}
    if args.nolad: kw["lad"] = None
    if args.exp: kw["exp"] = args.exp.split(",")
    kw["rot"] = not args.norot
    kw["ekv"] = args.ekv
    kw["lpoll"] = args.lpoll
    kw["touch"] = args.touch
    kw["npro"] = args.npro
    kw["ysep"] = not args.noysep
    kw["qahead"] = args.qahead
    kw["krot"] = args.krot
    kw["early"] = args.early
    open(args.o, "w").write(gen(kvpol=args.kvpol, wpol=args.wpol, stamps=args.stamps, thr=args.thr, depth=args.depth,
                                sched=tuple(int(x) for x in args.sched.split(",")), pf_code=not args.nopfc, **kw))
    print("wrote", args.o)
```

```python
import sys, math, struct
sys.path.insert(0, "gen")
from asmlib import *

QX = 0x0000000
QB = 0x3000000
QREC = 12288
QSTR = 12800
OREC = 6656
OX = 0x0800000
LX = 0x1800000
FX = 0x1900000
YX = 0x2000000
STAMP = 0xF000000
WS_BYTES = 0x10000000

S_X, S_K, S_V, S_WQ, S_WO, S_OUT, S_DBG, S_WS = 4, 8, 12, 16, 20, 24, 28, 32
S_PTR = 40
S_WAVE, S_HH, S_P, S_HKV, S_B, S_S, S_KVB = 56, 57, 58, 59, 60, 61, 62
S_M0B = 63
S_NONCE = 64
S_T0, S_T1, S_T2, S_T3 = 66, 67, 68, 69
S_WQB, S_XB = 70, 71
S_THR = 72
S_WOB = 73
S_T4 = 74
S_RET = 76
S_SUB = 78
S_ACC = 84
S_CNT = 86
S_C = 87
S_TAG = 88
S_ST = 92
S_STB = 94
S_PC = 96
S_XCC = 98
S_LOCAL = 99
S_ROT = 75

V_L16, V_LANE, V_Q16, V_G = 0, 1, 2, 3
V_KA, V_VA0, V_VA1, V_DK, V_DV = 4, 5, 6, 7, 8
V_L, V_U = 9, 12
V_X0 = 15
V_T = 24
V_NM = 32
V_P = 44
V_F = 56
V_S = 88
V_Q = 112
V_O = 160

SLOT = 16384
SLOTMAP = [4, 5, 2, 3, 0, 1, 6, 7, 8, 9]
def slot_of(t): return SLOTMAP[t % 10] * SLOT
XB = 13 * 8192
SCR = XB
MISC = XB + 49152
MISC2 = MISC + 64
def wq_lds(t): return t * 8192 if t < 13 else (t - 13) * 8192
WOSLOT = [6, 7, 8, 9, 4, 5, 2, 3]
LOG2E = 1.4426950408889634
CSCALE = (128 ** -0.5) * LOG2E

def f32bits(x): return struct.unpack("<I", struct.pack("<f", x))[0]
def vr(base, n): return f"v[{base}:{base+n-1}]"

class VM:
    def __init__(self, a):
        self.a = a; self.ops = []
    def issue(self, tag): self.ops.append(tag)
    def count_after(self, tag):
        idx = max(i for i, t in enumerate(self.ops) if t == tag)
        return len(self.ops) - 1 - idx
    def wait(self, tag):
        n = self.count_after(tag)
        assert n <= 63
        self.a(f"s_waitcnt vmcnt({n})")
    def has(self, tag): return tag in self.ops


def gen(kvpol="nt", wpol="", stamps=False, thr=256.0, depth=6, sched=(0, 5, 5, 5, 4), pf_code=True,
        lad=((3, 3, 3, 1, 0), (2, 2, 2, 2, 2)), exp=None, rot=True, ekv=1, lpoll="nt", touch=4, npro=13, ysep=True, ysent=True, qahead=2, krot=0, early=0,
        wosched=((5, range(0, 3)), (6, range(3, 10)), (7, range(10, 16)))):
    a = Asm()
    NST = 40
    DMAP = {8: 0, 1: 1, 2: 2, 31: 3, 37: 4, 3: 5, 4: 6, 5: 7, 6: 8, 29: 9, 7: 10}
    def stamp(i, wave=0, cyc=False, reg=None):
        if i not in DMAP or reg is not None or cyc: return
        L = a.label("Lst")
        a(f"""s_cmp_lg_u32 s{S_WAVE}, {wave}
        s_cbranch_scc1 {L}
        s_memrealtime s[{S_ST}:{S_ST+1}]
        s_waitcnt lgkmcnt(0)
        s_sub_u32 s{S_ST}, s{S_ST}, s{S_NONCE}
        v_mov_b32 v22, s{S_ST}
        v_mov_b32 v21, {DMAP[i]*4}
        s_and_b32 s{S_ST+1}, s2, 0x1c
        s_cmp_lg_u32 s{S_ST+1}, 0
        s_cbranch_scc1 {L}
        s_mov_b64 exec, 1
        buffer_atomic_umax v22, v21, s[{S_DBG}:{S_DBG+3}], 0 offen sc1
        s_mov_b64 exec, -1
        {L}:""")

    def S(kt, qt): return V_S + (kt * 3 + qt) * 4
    def Q(qt, ks): return V_Q + (qt * 4 + ks) * 4
    def O(dt, qt): return V_O + (dt * 3 + qt) * 4
    def NM(qt): return V_NM + qt * 4
    def P(qt): return V_P + qt * 4
    def F(i): return V_F + i * 4
    t0, t1, t2 = V_X0 + 2, V_X0 + 3, V_X0 + 4
    V_DWQ, V_DX = V_X0, V_X0 + 1

    a.begin_kernel(MAIN, 256, 512, 163840, listed=False)
    a(f"""s_cmp_ge_u32 s2, 256
    s_cbranch_scc1 L_end
    s_load_dwordx16 s[{S_PTR}:{S_PTR+15}], s[0:1], 0
    s_memrealtime s[{S_NONCE}:{S_NONCE+1}]
    v_lshrrev_b32 v{t0}, 6, v0
    v_and_b32 v{V_LANE}, 63, v0
    v_readfirstlane_b32 s{S_WAVE}, v{t0}
    v_and_b32 v{V_Q16}, 15, v0
    v_bfe_u32 v{V_G}, v0, 4, 2
    v_lshlrev_b32 v{V_L16}, 4, v{V_LANE}""")
    if pf_code:
        a(f"""s_cmp_lg_u32 s{S_WAVE}, 7
        s_cbranch_scc1 L_pfc_skip
        s_getpc_b64 s[{S_ACC}:{S_ACC+1}]
        v_lshlrev_b32 v{t0}, 7, v{V_LANE}
        PFC_LOADS
        L_pfc_skip:""")
    a(f"""s_and_b32 s{S_HKV}, s2, 7
    s_lshr_b32 s{S_B}, s2, 5
    s_bfe_u32 s{S_S}, s2, 0x20003
    s_and_b32 s{S_HH}, s{S_WAVE}, 3
    s_lshr_b32 s{S_P}, s{S_WAVE}, 2
    s_lshl_b32 s{S_M0B}, s{S_WAVE}, 10""")
    a(f"""s_lshr_b32 s{S_T2}, s{S_HH}, 1
    s_xor_b32 s{S_T3}, s{S_HH}, s{S_T2}
    s_and_b32 s{S_T3}, s{S_T3}, 1
    s_lshl_b32 s{S_T3}, s{S_T3}, 1
    s_or_b32 s{S_T3}, s{S_T3}, s{S_T2}
    v_and_b32 v{t2}, 3, v{V_LANE}
    v_xor_b32 v{t0}, s{S_T3}, v{t2}
    v_lshlrev_b32 v{t0}, 4, v{t0}
    v_lshl_add_u32 v{t0}, v{V_G}, 6, v{t0}
    v_bfe_u32 v{t1}, v{V_LANE}, 2, 2
    v_lshl_add_u32 v{V_DK}, v{t1}, 8, v{t0}
    v_lshl_add_u32 v{V_DX}, v{t1}, 10, v{t0}
    s_lshl_b32 s{S_T2}, s{S_HH}, 12
    v_add_u32 v{V_DX}, s{S_T2}, v{V_DX}""")
    a(f"""v_lshl_add_u32 v{t1}, v{V_G}, 3, v{t1}
    v_and_b32 v{t0}, 1, v{V_G}
    v_lshlrev_b32 v{t0}, 1, v{t0}
    v_xor_b32 v{t0}, v{t0}, v{t2}
    v_lshlrev_b32 v{t0}, 4, v{t0}
    v_lshl_add_u32 v{V_DWQ}, v{t1}, 13, v{t0}
    s_lshl_b32 s{S_WQB}, s{S_HKV}, 2
    s_add_u32 s{S_WQB}, s{S_WQB}, s{S_S}
    s_lshl_b32 s{S_WQB}, s{S_WQB}, 2
    s_add_u32 s{S_WQB}, s{S_WQB}, s{S_HH}
    s_lshl_b32 s{S_WQB}, s{S_WQB}, 6
    s_lshl_b32 s{S_T2}, s{S_P}, 21
    s_add_u32 s{S_WQB}, s{S_WQB}, s{S_T2}
    s_mul_i32 s{S_XB}, s{S_B}, {48*1024}
    s_waitcnt lgkmcnt(0)""")
    a.srd(S_X, S_PTR + 0, 8 * 48 * 512 * 2)
    a.srd(S_WQ, S_PTR + 6, 512 * 4096 * 2)
    V_DWO = V_X0 + 5

    def setup2():
        a.srd(S_WS, S_PTR + 14, WS_BYTES)
        a.srd(S_DBG, S_PTR + 12, 256)
        a(f"""v_add_u32 v{V_DK}, s{S_M0B}, v{V_DK}
        v_mov_b32 v{t0}, 0
        v_lshlrev_b32 v{t1}, 2, v{V_LANE}
        v_add_u32 v{t1}, {MISC}, v{t1}
        ds_write_b32 v{t1}, v{t0}""")
        a(f"""v_bfe_u32 v{t1}, v{V_LANE}, 2, 3
        v_and_b32 v{t2}, 1, v{V_G}
        v_lshlrev_b32 v{t2}, 1, v{t2}
        v_and_b32 v{t0}, 3, v{V_LANE}
        v_xor_b32 v{t0}, v{t0}, v{t2}
        v_lshlrev_b32 v{t0}, 4, v{t0}
        v_lshrrev_b32 v{t2}, 5, v{V_LANE}
        v_lshl_add_u32 v{t0}, v{t2}, 6, v{t0}
        s_and_b32 s{S_T2}, s{S_WAVE}, 1
        s_lshl_b32 s{S_T2}, s{S_T2}, 7
        v_add_u32 v{t0}, s{S_T2}, v{t0}
        s_lshr_b32 s{S_T2}, s{S_WAVE}, 1
        s_lshl_b32 s{S_T3}, s{S_T2}, 3
        v_add_u32 v{t2}, s{S_T3}, v{t1}
        v_lshl_add_u32 v{V_DV}, v{t2}, 8, v{t0}
        v_lshl_add_u32 v{V_DWO}, v{t2}, 10, v{t0}
        v_subrev_u32 v{V_L}, 4096, v{V_DK}
        v_subrev_u32 v{V_L+1}, 4096, v{V_DV}""")
        a(f"s_mul_i32 s{S_ROT}, s2, {krot}\ns_lshr_b32 s{S_ROT}, s{S_ROT}, 3\ns_and_b32 s{S_ROT}, s{S_ROT}, 15\ns_lshl_b32 s{S_ROT}, s{S_ROT}, 13")
        a.srd(S_K, S_PTR + 2, 0x2000000)
        a.srd(S_V, S_PTR + 4, 0x2000000)
        a.srd(S_WO, S_PTR + 8, 4096 * 512 * 2)
        a.srd(S_OUT, S_PTR + 10, 8 * 48 * 512 * 2)
        a(f"""s_lshl_b32 s{S_KVB}, s{S_B}, 3
        s_add_u32 s{S_KVB}, s{S_KVB}, s{S_HKV}
        s_lshl_b32 s{S_KVB}, s{S_KVB}, 19
        s_lshl_b32 s{S_T2}, s{S_S}, 17
        s_add_u32 s{S_KVB}, s{S_KVB}, s{S_T2}""")
        a(f"""v_lshrrev_b32 v{t0}, 2, v{V_Q16}
        v_lshrrev_b32 v{t1}, 1, v{t0}
        v_xor_b32 v{t2}, v{t0}, v{t1}
        v_and_b32 v{t2}, 1, v{t2}
        v_lshl_or_b32 v{t1}, v{t2}, 1, v{t1}
        v_xor_b32 v{t1}, v{t1}, v{V_G}
        v_lshlrev_b32 v{t0}, 10, v{t0}
        v_lshl_add_u32 v{t0}, v{t1}, 4, v{t0}
        v_and_b32 v{t1}, 3, v{V_Q16}
        v_lshl_add_u32 v{V_KA}, v{t1}, 6, v{t0}""")
        a(f"""v_lshrrev_b32 v{t0}, 5, v{V_LANE}
        v_lshlrev_b32 v{t0}, 11, v{t0}
        v_bfe_u32 v{t1}, v{V_LANE}, 2, 3
        v_lshl_add_u32 v{t0}, v{t1}, 6, v{t0}
        v_and_b32 v{t1}, 1, v{V_G}
        v_lshl_add_u32 v{t0}, v{t1}, 5, v{t0}
        v_and_b32 v{t1}, 3, v{V_LANE}
        v_lshl_add_u32 v{V_VA0}, v{t1}, 3, v{t0}
        v_xor_b32 v{V_VA1}, 32, v{V_VA0}
        s_mov_b32 s{S_THR}, {f32bits(thr):#x}
        s_mov_b32 s{S_C}, {f32bits(CSCALE):#x}""")
        L = a.label("Lpc")
        a(f"s_getpc_b64 s[{S_PC}:{S_PC+1}]\n{L}:")
        for qt in range(3):
            a(f"""s_add_u32 s{S_SUB+2*qt}, s{S_PC}, L_rescale{qt}-{L}
            s_addc_u32 s{S_SUB+2*qt+1}, s{S_PC+1}, 0""")
        a(f"""s_lshl_b32 s{S_WOB}, s{S_HKV}, 19
        s_lshl_b32 s{S_T2}, s{S_S}, 8
        s_add_u32 s{S_WOB}, s{S_WOB}, s{S_T2}""")
        if stamps:
            a(f"""s_mul_i32 s{S_T2}, s2, {NST*8}
            s_add_u32 s{S_STB}, s{S_PTR+14}, {STAMP:#x}
            s_addc_u32 s{S_STB+1}, s{S_PTR+15}, 0
            s_add_u32 s{S_STB}, s{S_STB}, s{S_T2}
            s_addc_u32 s{S_STB+1}, s{S_STB+1}, 0""")

    def dma(vm, tag, lds_off, srd, vo, sbase, soff, pol):
        a(f"s_add_u32 s{S_T2}, s{S_M0B}, {lds_off & 0xffffffff:#x}")
        a(f"s_mov_b32 m0, s{S_T2}")
        a(f"s_add_u32 s{S_T3}, s{sbase}, {soff:#x}")
        a(f"buffer_load_dwordx4 v{vo}, s[{srd}:{srd+3}], s{S_T3} offen {pol} lds")
        vm.issue(tag)
    def dma_piece(vm, n, both=False):
        t, isv = n >> 1, n & 1
        slot = slot_of(t) + isv * 8192
        srd, vo, vo2 = (S_V, V_DV, V_L + 1) if isv else (S_K, V_DK, V_L)
        if krot:
            a(f"""s_add_u32 s{S_T3}, s{S_ROT}, {t*8192}
            s_and_b32 s{S_T3}, s{S_T3}, 0x1ffff
            s_add_u32 m0, s{S_M0B}, {slot:#x}
            s_add_u32 s{S_T3}, s{S_T3}, s{S_KVB}
            buffer_load_dwordx4 v{vo}, s[{srd}:{srd+3}], s{S_T3} offen {kvpol} lds""")
            vm.issue(("kv", n))
            if both:
                a(f"""s_add_u32 m0, s{S_M0B}, {(slot - 4096) & 0xffffffff:#x}
                s_nop 0
                buffer_load_dwordx4 v{vo2}, s[{srd}:{srd+3}], s{S_T3} offen {kvpol} lds""")
                vm.issue(("kv", n))
            return
        dma(vm, ("kv", n), slot, srd, vo, S_KVB, t * 8192, kvpol)
        if both:
            dma(vm, ("kv", n), slot - 4096, srd, vo2, S_KVB, t * 8192, kvpol)
    def dma_wo(vm, n):
        k, chf = n >> 1, n & 1
        dma(vm, ("wo", n), WOSLOT[k] * SLOT + chf * 8192, S_WO, V_DWO, S_WOB, n * 32768, wpol)

    def touch_ld(vm, n):
        rec, base, nl = ((OREC, OX, 52), (3072, YX, 24))[n]
        a(f"""v_lshlrev_b32 v{V_X0+4}, 7, v{V_LANE}
        s_lshl_b32 s{S_T2}, s2, 3
        s_add_u32 s{S_T2}, s{S_T2}, s{S_WAVE}
        s_mul_i32 s{S_T3}, s{S_T2}, {rec}
        s_add_u32 s{S_T3}, s{S_T3}, {base}
        s_bfm_b64 exec, {nl}, 0
        buffer_load_dword v{V_DK}, v{V_X0+4}, s[{S_WS}:{S_WS+3}], s{S_T3} offen
        s_mov_b64 exec, -1
        s_nop 3""")
        vm.issue(("pt", n))

    def xlane(op, x, ta, tb):
        a(f"""v_mov_b32 v{ta}, v{x}
        v_mov_b32 v{tb}, v{x}
        s_nop 1
        v_permlane16_swap_b32 v{ta}, v{tb}
        s_nop 1
        {op} v{ta}, v{ta}, v{tb}
        v_mov_b32 v{tb}, v{ta}
        s_nop 1
        v_permlane32_swap_b32 v{ta}, v{tb}
        s_nop 1
        {op} v{x}, v{ta}, v{tb}""")

    def k_read(idx):
        kt, ks = idx >> 2, idx & 3
        return f"ds_read_b128 {vr(F(idx),4)}, v{V_KA} offset:{kt*4096 + ks*256}"
    def v_read(dt, j2):
        ad = V_VA1 if (dt & 1) else V_VA0
        return f"ds_read_b64_tr_b16 {vr(F(dt)+2*j2,2)}, v{ad} offset:{8192 + j2*4096 + (dt>>2)*1024 + ((dt>>1)&1)*512}"
    def qk_mfma(idx, qt, first):
        kt, ks = idx >> 2, idx & 3
        c = ("0" if first else vr(NM(qt), 4)) if ks == 0 else vr(S(kt, qt), 4)
        return f"v_mfma_f32_16x16x32_bf16 {vr(S(kt,qt),4)}, {vr(F(idx),4)}, {vr(Q(qt,ks),4)}, {c}"
    def pv_mfma(dt, qt, first):
        c = "0" if first else vr(O(dt, qt), 4)
        return f"v_mfma_f32_16x16x32_bf16 {vr(O(dt,qt),4)}, {vr(F(dt),4)}, {vr(P(qt),4)}, {c}"
    def sm_ops(qt, check):
        T, u = V_T, V_U + qt
        ex = [f"v_exp_f32 v{T+kt*4+i}, v{S(kt,qt)+i}" for kt in range(2) for i in range(4)]
        ops = ex[0:4] + [f"v_add_f32 v{u}, v{T}, v{T+1}", f"v_cvt_pk_bf16_f32 v{P(qt)}, v{T}, v{T+1}",
                         f"v_add_f32 v{u}, v{u}, v{T+2}"] + ex[4:6] + \
              [f"v_cvt_pk_bf16_f32 v{P(qt)+1}, v{T+2}, v{T+3}", f"v_add_f32 v{u}, v{u}, v{T+3}"] + ex[6:8] + \
              [f"v_add_f32 v{u}, v{u}, v{T+4}", f"v_cvt_pk_bf16_f32 v{P(qt)+2}, v{T+4}, v{T+5}",
               f"v_add_f32 v{u}, v{u}, v{T+5}", f"v_add_f32 v{u}, v{u}, v{T+6}",
               f"v_cvt_pk_bf16_f32 v{P(qt)+3}, v{T+6}, v{T+7}", f"v_add_f32 v{u}, v{u}, v{T+7}"]
        if check:
            L = a.label("Lok")
            ops.append(f"""v_cmp_lt_f32 vcc, s{S_THR}, v{u}
            s_cbranch_vccz {L}
            s_swappc_b64 s[{S_RET}:{S_RET+1}], s[{S_SUB+2*qt}:{S_SUB+2*qt+1}]
            {L}:""")
        ops.append(f"v_add_f32 v{V_L+qt}, v{V_L+qt}, v{u}")
        return ops
    def tile_max(qt, d):
        s0, s1 = S(0, qt), S(1, qt)
        a(f"""v_max3_f32 v{d}, v{s0}, v{s0+1}, v{s0+2}
        v_max3_f32 v{d}, v{d}, v{s0+3}, v{s1}
        v_max3_f32 v{d}, v{d}, v{s1+1}, v{s1+2}
        v_max_f32 v{d}, v{d}, v{s1+3}""")
        xlane("v_max_f32", d, V_T + 6, V_T + 7)
    def init_max(qt):
        d = V_T
        tile_max(qt, d)
        for i in range(4):
            a(f"v_sub_f32 v{NM(qt)+i}, 0, v{d}")
        for kt in range(2):
            for i in range(4):
                a(f"v_sub_f32 v{S(kt,qt)+i}, v{S(kt,qt)+i}, v{d}")
        a(f"v_mov_b32 v{V_L+qt}, 0")
    def interleave(mf, fill, lead=0):
        nm = len(mf); slots = nm - lead; k = 0
        for i, m in enumerate(mf):
            a(m)
            if i >= lead:
                tgt = (len(fill) * (i - lead + 1) + slots - 1) // slots
                while k < tgt:
                    a(fill[k]); k += 1
        while k < len(fill):
            a(fill[k]); k += 1
    def capture(fn):
        sv = a.lines; a.lines = []
        fn()
        out = "\n".join(l.strip() for l in a.lines); a.lines = sv
        return out

    NPRO = npro
    plan = {}
    nxt = NPRO
    for r, c in enumerate(sched):
        plan[r] = [("kv", x) for x in range(nxt, min(nxt + c, 32))]; nxt += c
    assert nxt >= 32
    for r, lst in plan.items():
        for _, pc in lst:
            t = pc >> 1
            assert t < 10 or (t - 10) // 2 < r, (r, pc)
            assert pc < 13 or r >= 1
    if touch & 1:
        plan.setdefault(7, []); plan[7] += [("pt", 0)]
    for r, lst in wosched:
        plan.setdefault(r, [])
        plan[r] += [("wo", x) for x in lst]
    if touch & 2:
        plan[7] += [("pt", 1)]

    vq = VM(a)
    n = V_T
    S_R0, S_R1, S_R2 = S_TAG, S_TAG + 1, S_TAG + 2
    if stamps: a(f"s_memrealtime s[{S_RET}:{S_RET+1}]")
    a(f"s_mul_i32 s{S_R0}, s{S_S}, 3\ns_lshr_b32 s{S_R0}, s{S_R0}, 1" if rot else f"s_mov_b32 s{S_R0}, 0")
    a(f"s_mov_b32 s{S_CNT}, 0\nL_xl:")
    a(f"""s_lshl_b32 s{S_T0}, s{S_R0}, 1
    s_add_u32 s{S_T0}, s{S_T0}, s{S_P}
    s_mul_i32 s{S_T1}, s{S_T0}, 11
    s_lshr_b32 s{S_T1}, s{S_T1}, 5
    s_mul_i32 s{S_T2}, s{S_T1}, 3
    s_sub_u32 s{S_T2}, s{S_T0}, s{S_T2}
    s_lshl_b32 s{S_T2}, s{S_T2}, 14
    s_lshl_b32 s{S_T1}, s{S_T1}, 8
    s_add_u32 s{S_T2}, s{S_T2}, s{S_T1}
    s_lshl_b32 s{S_T3}, s{S_R0}, 13
    s_add_u32 s{S_T3}, s{S_T3}, s{S_M0B}
    s_add_u32 m0, s{S_T3}, {XB}
    s_add_u32 s{S_T2}, s{S_T2}, s{S_XB}
    buffer_load_dwordx4 v{V_DX}, s[{S_X}:{S_X+3}], s{S_T2} offen {wpol} lds
    s_add_u32 s{S_R0}, s{S_R0}, 1
    s_cmp_eq_u32 s{S_R0}, 6
    s_cselect_b32 s{S_R0}, 0, s{S_R0}
    s_add_u32 s{S_CNT}, s{S_CNT}, 1
    s_cmp_lt_u32 s{S_CNT}, 6
    s_cbranch_scc1 L_xl""")
    for _ in range(6): vq.issue("x")
    a(f"""s_lshl_b32 s{S_R1}, s{S_WAVE}, 13
    s_mov_b32 s{S_R2}, {"s%d" % S_B if rot else "0"}""")
    def dma_wq(i):
        a(f"""s_add_u32 s{S_T0}, s{S_R2}, {i}
        s_and_b32 s{S_T0}, s{S_T0}, 7
        s_lshl_b32 s{S_T0}, s{S_T0}, 18
        s_add_u32 m0, s{S_R1}, {(i % 4) * 2048}
        s_add_u32 s{S_T0}, s{S_T0}, s{S_WQB}
        buffer_load_dwordx4 v{V_DWQ}, s[{S_WQ}:{S_WQ+3}], s{S_T0} offen {wpol} lds
        s_add_u32 m0, s{S_R1}, {(i % 4) * 2048 + 1024}
        s_add_u32 s{S_T0}, s{S_T0}, 0x8000
        buffer_load_dwordx4 v{V_DWQ}, s[{S_WQ}:{S_WQ+3}], s{S_T0} offen {wpol} lds""")
        vq.issue(("w", i)); vq.issue(("w", i))
    for i in range(2): dma_wq(i)
    if stamps: a(f"s_memrealtime s[{S_ACC}:{S_ACC+1}]")
    setup2()
    a(f"""s_lshl_b32 s{S_T2}, s{S_B}, 3
    s_add_u32 s{S_T2}, s{S_T2}, 128
    v_mov_b32 v{n+4}, s{S_T2}
    s_and_b32 s{S_T2}, s2, 31
    s_lshl_b32 s{S_T2}, s{S_T2}, 3
    s_add_u32 s{S_T2}, s{S_T2}, s{S_WAVE}
    s_cmp_lg_u32 s{S_T2}, 4
    s_cbranch_scc1 L_nonce_skip
    s_or_b32 s{S_T2}, s{S_NONCE}, 1
    v_mov_b32 v{n}, s{S_T2}
    v_mov_b32 v{n+1}, s{S_NONCE+1}
    s_mov_b64 exec, 1
    buffer_store_dwordx2 {vr(n,2)}, v{n+4}, s[{S_DBG}:{S_DBG+3}], 0 offen sc1
    s_mov_b64 exec, -1
    L_nonce_skip:""")
    wa0, wa1, xa = V_U, V_U + 1, V_U + 2
    a(f"""v_lshrrev_b32 v{t0}, 2, v{V_LANE}
    v_lshlrev_b32 v{t0}, 6, v{t0}
    v_and_b32 v{t1}, 1, v{V_G}
    v_lshl_add_u32 v{t0}, v{t1}, 5, v{t0}
    v_and_b32 v{t1}, 3, v{V_LANE}
    v_lshl_add_u32 v{t0}, v{t1}, 3, v{t0}
    v_add_u32 v{wa0}, s{S_R1}, v{t0}
    v_xor_b32 v{wa1}, 32, v{wa0}
    s_mul_i32 s{S_T2}, s{S_P}, {2*3*4096}
    s_add_u32 s{S_T2}, s{S_T2}, {XB}
    v_add_u32 v{xa}, s{S_T2}, v{V_KA}""")
    if stamps:
        a("s_waitcnt lgkmcnt(0)")
        stamp(0, 0, reg=S_NONCE); stamp(9); stamp(10, 0, reg=S_RET); stamp(11, 0, reg=S_ACC)
    QA = 32
    FR = 64
    def fs(i): return FR + (i % 3) * 20
    extra_p1 = [0]
    def q_reads(i):
        b_ = fs(i)
        if extra_p1[0]:
            La, Lb = a.label("Lw"), a.label("Lw")
            nn = vq.count_after(("w", i))
            a(f"""s_cmp_eq_u32 s{S_P}, 0
            s_cbranch_scc1 {La}
            s_waitcnt vmcnt({nn + extra_p1[0] + (1 if touch & 4 else 0)})
            s_branch {Lb}
            {La}:
            s_waitcnt vmcnt({nn})
            {Lb}:""")
        else:
            vq.wait(("w", i))
        a(f"""s_add_u32 s{S_T0}, s{S_R2}, {i}
        s_bfe_u32 s{S_T1}, s{S_T0}, 0x10002
        s_mul_i32 s{S_T1}, s{S_T1}, 12288
        s_and_b32 s{S_T0}, s{S_T0}, 3
        s_lshl_b32 s{S_T0}, s{S_T0}, 8
        s_add_u32 s{S_T0}, s{S_T0}, s{S_T1}
        v_add_u32 v{t0}, s{S_T0}, v{xa}""")
        for u in range(2):
            for j2 in range(2):
                a(f"ds_read_b64_tr_b16 {vr(b_+u*4+2*j2,2)}, v{wa1 if u else wa0} offset:{(i%4)*2048 + j2*1024}")
        for qt in range(3):
            a(f"ds_read_b128 {vr(b_+8+qt*4,4)}, v{t0} offset:{qt*4096}")
    vq.wait("x")
    a("s_waitcnt lgkmcnt(0)")
    stamp(18)
    a("s_barrier")
    stamp(12)
    for i in range(2, 4): dma_wq(i)
    q_reads(0)
    vmk = VM(a)
    for i in range(8):
        if i + 1 < 8: q_reads(i + 1)
        a(f"s_waitcnt lgkmcnt({7 if i + 1 < 8 else 0})")
        if i + 4 < 8:
            dma_wq(i + 4)
        if i == 3 and early:
            a(f"s_cmp_eq_u32 s{S_P}, 0\ns_cbranch_scc1 L_ekv_skip")
            for pc in range(early): dma_piece(vmk, pc, True)
            a("L_ekv_skip:")
            extra_p1[0] = 2 * early
        if i == 3:
            a(f"""s_cmp_lg_u32 s{S_WAVE}, 0
            s_cbranch_scc1 L_nonce_skip1
            buffer_load_dwordx2 {vr(n,2)}, v{n+4}, s[{S_DBG}:{S_DBG+3}], 0 offen sc1
            L_nonce_skip1:""")
            if touch & 4:
                a(f"""s_cmp_eq_u32 s{S_P}, 0
                s_cbranch_scc1 L_qt_skip
                v_lshlrev_b32 v61, 7, v{V_LANE}
                s_mul_i32 s{S_T2}, s2, {QSTR}
                s_mul_i32 s{S_T3}, s{S_HH}, 3200
                s_add_u32 s{S_T2}, s{S_T2}, s{S_T3}
                s_bfm_b64 exec, 25, 0
                buffer_load_dword v31, v61, s[{S_WS}:{S_WS+3}], s{S_T2} offen
                s_mov_b64 exec, -1
                L_qt_skip:""")
        b_ = fs(i)
        for u in range(2):
            for qt in range(3):
                y = QA + (u * 3 + qt) * 4
                cc = "0" if i == 0 else vr(y, 4)
                a(f"v_mfma_f32_16x16x32_bf16 {vr(y,4)}, {vr(b_+u*4,4)}, {vr(b_+8+qt*4,4)}, {cc}")
    stamp(15)
    a(f"""v_add_u32 v{t0}, s{S_R1}, v{V_L16}
    s_xor_b32 s{S_T2}, s{S_R1}, 0x8000
    v_add_u32 v{t1}, s{S_T2}, v{V_L16}
    s_cmp_lg_u32 s{S_WAVE}, 0
    s_cbranch_scc1 L_nonce_skip2
    s_mov_b32 s{S_CNT}, 0
    L_nonce_retry:
    s_waitcnt vmcnt(0)
    v_readfirstlane_b32 s{S_T2}, v{n}
    s_add_u32 s{S_CNT}, s{S_CNT}, 1
    s_cmp_lg_u32 s{S_T2}, 0
    s_cbranch_scc1 L_nonce_ok
    s_cmp_gt_u32 s{S_CNT}, 0x10000
    s_cbranch_scc1 L_nonce_ok
    buffer_load_dwordx2 {vr(n,2)}, v{n+4}, s[{S_DBG}:{S_DBG+3}], 0 offen sc1
    s_branch L_nonce_retry
    L_nonce_ok:
    v_mov_b32 v{n+2}, {MISC}
    ds_write_b64 v{n+2}, {vr(n,2)}
    L_nonce_skip2:
    s_nop 4
    s_cmp_lg_u32 s{S_P}, 0
    s_cbranch_scc1 L_role1""")

    for p in range(2):
        vm = VM(a)
        if p == 1: vm.ops = list(vmk.ops) + (["pt"] if touch & 4 else [])
        a(f"L_role{p}:")
        for qt in range(3):
            a(f"ds_write_b128 v{t0}, {vr(QA+((1-p)*3+qt)*4,4)} offset:{qt*1024}")
        a(f"v_mov_b32 v{V_T+2}, {MISC}\ns_waitcnt lgkmcnt(0)\ns_barrier")
        RC = 64
        for qt in range(3):
            a(f"ds_read_b128 {vr(RC+qt*4,4)}, v{t1} offset:{qt*1024}")
        a(f"ds_read_b64 {vr(V_T,2)}, v{V_T+2}")
        G = 48
        a(f"""s_lshl_b32 s{S_T3}, s{S_HH}, 10
        s_add_u32 s{S_T2}, s{S_T3}, {SCR + p*512}
        v_lshrrev_b32 v{t0}, 1, v{V_G}
        v_lshlrev_b32 v{t0}, 8, v{t0}
        v_lshl_add_u32 v{t0}, v{V_Q16}, 4, v{t0}
        v_and_b32 v{t1}, 1, v{V_G}
        v_lshl_add_u32 v{t0}, v{t1}, 3, v{t0}
        v_add_u32 v{t0}, s{S_T2}, v{t0}
        s_getreg_b32 s{S_XCC}, hwreg(HW_REG_XCC_ID)
        s_and_b32 s{S_XCC}, s{S_XCC}, 15
        s_waitcnt lgkmcnt(0)""")
        if exp and "fakexcc" in exp:
            a(f"s_lshr_b32 s{S_XCC}, s2, 3")
        for qt in range(3):
            for i in range(4):
                a(f"v_add_f32 v{RC+qt*4+i}, v{RC+qt*4+i}, v{QA+(p*3+qt)*4+i}")
                a(f"v_mul_f32 v{RC+qt*4+i}, s{S_C}, v{RC+qt*4+i}")
            g = 80 + qt * 2
            a(f"""v_cvt_pk_bf16_f32 v{g}, v{RC+qt*4}, v{RC+qt*4+1}
            v_cvt_pk_bf16_f32 v{g+1}, v{RC+qt*4+2}, v{RC+qt*4+3}
            ds_write_b64 v{t0}, {vr(g,2)} offset:{qt*4096}""")
        a(f"""s_waitcnt lgkmcnt(0)
        s_barrier
        v_readfirstlane_b32 s{S_NONCE}, v{V_T}
        v_readfirstlane_b32 s{S_NONCE+1}, v{V_T+1}""")
        if p == 0: stamp(8)
        if exp and "stopq" in exp:
            a("s_waitcnt vmcnt(0)\ns_endpgm")
        for x in (V_KA, V_VA0, V_VA1):
            a(f"v_add_u32 v{x}, {slot_of(p)}, v{x}")
        qst = V_X0 + 1
        a(f"""s_sub_u32 s{S_T0}, s{S_HH}, s{S_S}
        s_and_b32 s{S_T0}, s{S_T0}, 3
        s_mul_i32 s{S_T0}, s{S_T0}, 12288
        s_add_u32 s{S_T0}, s{S_T0}, {SCR}
        v_add_u32 v{qst}, s{S_T0}, v{V_L16}""")
        if p == 0:
            sa = V_X0
            FL = 60
            a(f"""s_mul_i32 s{S_T4}, s{S_HH}, 3072
            s_add_u32 s{S_T1}, s{S_T4}, {SCR}
            v_add_u32 v{t0}, s{S_T1}, v{V_L16}""")
            for i in range(3):
                a(f"ds_read_b128 {vr(G+i*4,4)}, v{t0} offset:{i*1024}")
            a(f"""s_mul_i32 s{S_T0}, s2, {QSTR}
            s_add_u32 s{S_T1}, s{S_T0}, s{S_T4}
            s_lshl_b32 s{S_T2}, s{S_HH}, 7
            s_add_u32 s{S_T2}, s{S_T2}, s{S_T0}
            s_add_u32 s{S_T2}, s{S_T2}, {QREC}
            v_mov_b32 v{FL}, v{V_T}
            v_mov_b32 v{FL+1}, v{V_T+1}
            v_mov_b32 v{FL+2}, s{S_XCC}
            v_mov_b32 v{FL+3}, 0
            v_bfe_u32 v{sa}, v{V_LANE}, 2, 2
            v_mul_u32_u24 v{sa}, {8*QSTR}, v{sa}
            v_and_b32 v{t1}, 3, v{V_LANE}
            v_lshl_add_u32 v{sa}, v{t1}, 7, v{sa}
            s_mov_b32 s{S_T3}, {QB - QX:#x}
            v_mul_lo_u32 v{t1}, v{V_G}, s{S_T3}
            v_add_u32 v{sa}, v{sa}, v{t1}
            s_andn2_b32 s{S_T0}, s2, 24
            s_mul_i32 s{S_T0}, s{S_T0}, {QSTR}
            s_add_u32 s{S_T3}, s{S_T0}, {QREC}
            s_waitcnt lgkmcnt(0)""")
            def q_publish(pol):
                for i in range(3):
                    a(f"buffer_store_dwordx4 {vr(G+i*4,4)}, v{V_L16}, s[{S_WS}:{S_WS+3}], s{S_T1} offen offset:{i*1024} {pol}")
                a(f"""s_waitcnt vmcnt(0)
                s_mov_b64 exec, 1
                buffer_store_dwordx4 {vr(FL,4)}, v{V_L16}, s[{S_WS}:{S_WS+3}], s{S_T2} offen {pol}""")
            if not (exp and "noA" in exp):
                q_publish("")
            a("s_mov_b64 exec, -1")
            stamp(1)
            a(f"""s_mov_b32 s{S_CNT}, 0
            s_mov_b64 exec, 0xffff
            L_qs1:
            buffer_load_dwordx4 {vr(V_T+4,4)}, v{sa}, s[{S_WS}:{S_WS+3}], s{S_T3} offen {lpoll}
            s_add_u32 s{S_CNT}, s{S_CNT}, 1
            s_waitcnt vmcnt(0)
            v_cmp_eq_u64 vcc, s[{S_NONCE}:{S_NONCE+1}], {vr(V_T+4,2)}
            v_cmp_eq_u32 s[{S_ACC}:{S_ACC+1}], s{S_XCC}, v{V_T+6}
            s_andn2_b32 s{S_ACC+1}, vcc_lo, s{S_ACC}
            s_cbranch_scc1 L_qremote
            s_cmp_eq_u32 vcc_lo, 0xffff
            s_cbranch_scc1 L_qlocal
            s_cmp_lt_u32 s{S_CNT}, 10
            s_cbranch_scc1 L_qs1
            L_qremote:
            s_mov_b64 exec, -1
            s_add_u32 s{S_T1}, s{S_T1}, {QB - QX:#x}
            s_add_u32 s{S_T2}, s{S_T2}, {QB - QX:#x}""")
            q_publish("sc1")
            a(f"""s_mov_b64 exec, 0xffffffff
            L_qs2:
            buffer_load_dwordx4 {vr(V_T+4,4)}, v{sa}, s[{S_WS}:{S_WS+3}], s{S_T3} offen sc1
            s_add_u32 s{S_CNT}, s{S_CNT}, 1
            s_waitcnt vmcnt(0)
            v_cmp_eq_u64 vcc, s[{S_NONCE}:{S_NONCE+1}], {vr(V_T+4,2)}
            v_cmp_eq_u32 s[{S_ACC}:{S_ACC+1}], s{S_XCC}, v{V_T+6}
            s_and_b32 s{S_ACC}, s{S_ACC}, vcc_lo
            s_and_b32 s{S_ACC}, s{S_ACC}, 0xffff
            s_cmp_eq_u32 s{S_ACC}, 0xffff
            s_cbranch_scc1 L_qlocal
            s_lshr_b32 s{S_ACC}, vcc_lo, 16
            s_cmp_eq_u32 s{S_ACC}, 0xffff
            s_cbranch_scc1 L_qfar
            s_cmp_lt_u32 s{S_CNT}, 0x8000
            s_cbranch_scc1 L_qs2
            L_qfar:
            s_mov_b32 s{S_LOCAL}, 1
            s_add_u32 s{S_T0}, s{S_T0}, {QB - QX:#x}
            s_branch L_qgo
            L_qlocal:
            s_mov_b32 s{S_LOCAL}, 3
            L_qgo:
            s_mov_b64 exec, -1
            v_mov_b32 v{V_T+4}, s{S_LOCAL}
            s_lshl_b32 s{S_T2}, s{S_HH}, 2
            s_add_u32 s{S_T2}, s{S_T2}, {MISC2}
            v_mov_b32 v{V_T+5}, s{S_T2}
            ds_write_b32 v{V_T+5}, v{V_T+4}
            s_add_u32 s{S_T0}, s{S_T0}, s{S_T4}
            s_add_u32 s{S_T4}, s{S_T4}, {SCR}""")
            if stamps:
                a(f"s_mov_b32 s{S_ACC}, s{S_CNT}\ns_mov_b32 s{S_ACC+1}, 0")
                stamp(17, 1, reg=S_ACC); stamp(16, 1)
            a(f"s_cmp_eq_u32 s{S_LOCAL}, 3\ns_cbranch_scc1 L_qld_local")
            for fl in ("sc1", ""):
                if not fl: a("L_qld_local:")
                for j in range(1, 4):
                    a(f"""s_add_u32 s{S_T1}, s{S_S}, {j}
                    s_and_b32 s{S_T1}, s{S_T1}, 3
                    s_mul_i32 s{S_T1}, s{S_T1}, {8*QSTR}
                    s_add_u32 s{S_T2}, s{S_T4}, {j*12288}
                    s_mov_b32 m0, s{S_T2}
                    s_add_u32 s{S_T1}, s{S_T1}, s{S_T0}""")
                    for i in range(3):
                        a(f"buffer_load_dwordx4 v{V_L16}, s[{S_WS}:{S_WS+3}], s{S_T1} offen offset:{i*1024} {fl} lds")
                if fl: a("s_branch L_qld_done")
            a(f"""L_qld_done:
            v_mov_b32 v{V_T+4}, {MISC2}
            s_waitcnt vmcnt(0) lgkmcnt(0)""")
            vm.ops = []
            stamp(28, 1)
            stamp(2)
            a("s_barrier")
            a(f"ds_read_b128 {vr(V_T,4)}, v{V_T+4}")
            for i in range(4):
                a(f"ds_read_b128 {vr(V_Q+i*4,4)}, v{qst} offset:{i*1024}")
            for idx in range(8): a(k_read(idx))
            for i in range(4, 12):
                a(f"ds_read_b128 {vr(V_Q+i*4,4)}, v{qst} offset:{i*1024}")
            a("s_waitcnt lgkmcnt(15)")
        else:
            a(f"v_mov_b32 v{V_T+4}, {MISC2}\ns_mov_b32 s{S_CNT}, 0")
            for pc in range(early, early + ekv): dma_piece(vm, pc, True)
            for pc in range(early + ekv, NPRO):
                L = a.label("Lgo")
                a(f"""s_cmp_lg_u32 s{S_CNT}, 0
                s_cbranch_scc1 {L}
                ds_read_b128 {vr(V_T,4)}, v{V_T+4}
                s_waitcnt vmcnt({max(depth-2,0)}) lgkmcnt(0)
                v_and_b32 v{V_T}, v{V_T}, v{V_T+1}
                v_and_b32 v{V_T+2}, v{V_T+2}, v{V_T+3}
                v_and_b32 v{V_T}, v{V_T}, v{V_T+2}
                s_nop 0
                v_readfirstlane_b32 s{S_CNT}, v{V_T}
                {L}:""")
                dma_piece(vm, pc, True)
            stamp(19, 4)
            if vm.has(("kv", 3)): vm.wait(("kv", 3))
            a(f"v_mov_b32 v{V_T+4}, {MISC2}")
            a("s_barrier")
            a(f"ds_read_b128 {vr(V_T,4)}, v{V_T+4}")
            for i in range(4):
                a(f"ds_read_b128 {vr(V_Q+i*4,4)}, v{qst} offset:{i*1024}")
            for idx in range(8): a(k_read(idx))
            for i in range(4, 12):
                a(f"ds_read_b128 {vr(V_Q+i*4,4)}, v{qst} offset:{i*1024}")
            a("s_waitcnt lgkmcnt(15)")
        a(f"""v_and_b32 v{V_T}, v{V_T}, v{V_T+1}
        v_and_b32 v{V_T+2}, v{V_T+2}, v{V_T+3}
        v_and_b32 v{V_T}, v{V_T}, v{V_T+2}
        v_lshrrev_b32 v{V_T}, 1, v{V_T}
        s_nop 0
        v_readfirstlane_b32 s{S_LOCAL}, v{V_T}""")
        if exp and "nolocal" in exp:
            a(f"s_mov_b32 s{S_LOCAL}, 0")
        def pr(i):
            if lad: a(f"s_setprio {lad[p][i]}")
        WA = V_Q
        woa0, woa1 = V_X0, V_X0 + 1
        for r in range(8):
            t = 2 * r + p
            first = (r == 0)
            if r > 0:
                need = ("kv", 4 * r + 3)
                if vm.has(need): vm.wait(need)
                a("s_barrier")
                if p == 0:
                    stamp(30 + r, 0)
                    if r == 4: stamp(38, 0, True)
                    if r == 7: stamp(39, 0, True)
            pr(0)
            if r > 0 and p == 0:
                for idx in range(8): a(k_read(idx))
            dm = [capture(lambda: {"kv": dma_piece, "wo": dma_wo, "pt": touch_ld}[k](vm, x)) for k, x in plan.get(r, [])]
            h = (len(dm) + 1) // 2
            if p == 1 and r > 0:
                f1 = (r == 1)
                interleave([pv_mfma(dt, 0, f1) for dt in range(8)], dm[:h])
                interleave([pv_mfma(dt, 1, f1) for dt in range(8)], dm[h:])
                for dt in range(8):
                    a(pv_mfma(dt, 2, f1)); a(k_read(dt))
                dm = []
            elif r == 0 or r == 7:
                for d in dm: a(d)
                dm = []
            pr(1)
            for idx in range(8):
                a(f"s_waitcnt lgkmcnt({7-idx + (8 if first else 0)})")
                a(qk_mfma(idx, 0, first))
            if first: a("s_waitcnt lgkmcnt(0)")
            pr(2)
            if first:
                def first_ops(qt):
                    txt = capture(lambda: init_max(qt)).split("\n")
                    ops, cur = [], []
                    for l in txt:
                        cur.append(l)
                        if not (l.startswith("s_nop") or l.startswith("v_permlane") or l.startswith("v_mov_b32 v3")):
                            ops.append("\n".join(cur)); cur = []
                    if cur: ops.append("\n".join(cur))
                    return ops + sm_ops(qt, False)
                interleave([qk_mfma(idx, 1, first) for idx in range(8)], first_ops(0), lead=0 if False else 0) if False else None
                mf1 = [qk_mfma(idx, 1, first) for idx in range(8)]
                for m_ in mf1[:4]: a(m_)
                a("s_nop 3")
                interleave(mf1[4:], first_ops(0))
                mf = [qk_mfma(idx, 2, first) + "\n" + v_read(idx, 0) + "\n" + v_read(idx, 1) for idx in range(8)]
                interleave(mf, first_ops(1), lead=2)
                smq2 = first_ops(2)
            else:
                interleave([qk_mfma(idx, 1, False) for idx in range(8)], sm_ops(0, True))
                s1 = sm_ops(1, True)
                mf = [qk_mfma(idx, 2, False) + "\n" + v_read(idx, 0) + "\n" + v_read(idx, 1) for idx in range(8)]
                interleave(mf, s1)
                smq2 = sm_ops(2, True)
            if r < 7:
                d = slot_of(t + 2) - slot_of(t)
                adv = [f"v_add_u32 v{x}, {d & 0xffffffff:#x}, v{x}" for x in (V_KA, V_VA0, V_VA1)]
                wor = []
            else:
                adv = [f"""v_subrev_u32 v{woa0}, {slot_of(t)}, v{V_VA0}
                s_and_b32 s{S_T2}, s{S_WAVE}, 1
                s_lshl_b32 s{S_T2}, s{S_T2}, 5
                v_xor_b32 v{woa0}, s{S_T2}, v{woa0}
                s_lshr_b32 s{S_T2}, s{S_WAVE}, 1
                s_lshl_b32 s{S_T2}, s{S_T2}, 9
                s_add_u32 s{S_T2}, s{S_T2}, {2*SLOT}
                v_add_u32 v{woa0}, s{S_T2}, v{woa0}
                v_add_u32 v{woa1}, {4*SLOT}, v{woa0}"""]
                wor = []
                for k in range(12):
                    sl = WOSLOT[k >> 1]
                    ad = woa0 if sl < 6 else woa1
                    off = (sl - 2 if sl < 6 else sl - 6) * SLOT + (k & 1) * 8192
                    for j2 in range(2):
                        wor.append(f"ds_read_b64_tr_b16 {vr(WA+k*4+2*j2,2)}, v{ad} offset:{off + j2*4096}")
            pr(3)
            if p == 0:
                mf = [f"s_waitcnt lgkmcnt({14-2*dt})\n" + pv_mfma(dt, 0, first) for dt in range(8)]
                interleave(mf, smq2, lead=2)
                pr(4)
                interleave([pv_mfma(dt, 1, first) for dt in range(8)], adv + dm[:h])
                a("s_nop 1")
                interleave([pv_mfma(dt, 2, first) for dt in range(8)], dm[h:])
            else:
                for o in adv: a(o)
                a("s_nop 3")
                for o in smq2: a(o)
                a("s_waitcnt lgkmcnt(0)")
        vm.wait(("wo", 11))
        a("s_waitcnt lgkmcnt(0)\ns_barrier")
        a("s_setprio 0")
        if p == 0:
            stamp(3)
            for o in wor: a(o)
            for qt in range(3):
                xlane("v_add_f32", V_L + qt, V_T + 6, V_T + 7)
            a("s_waitcnt lgkmcnt(0)\ns_barrier")
            stamp(25)
        else:
            a("s_setprio 3")
            xl = [capture(lambda: xlane("v_add_f32", V_L + qt, V_T + 6, V_T + 7)) for qt in range(3)]
            interleave([pv_mfma(dt, qt, False) for dt in range(4) for qt in range(3)], wor + xl)
            a("s_waitcnt lgkmcnt(0)\ns_barrier")
            late = [pv_mfma(dt, qt, False) for dt in range(4, 8) for qt in range(3)]
        cw, cr, mw, mr = V_T, V_KA, V_T + 2, V_T + 3
        def cb_const(v): return 98304 + v * 12288 if v < 5 else (65536 + (v - 5) * 12288 if v < 7 else 0)
        def cb_addr(sdst, pp):
            c = [cb_const(4 * pp + h_) for h_ in range(4)]
            if pp == 0:
                a(f"s_mul_i32 s{sdst}, s{S_HH}, 12288\ns_add_u32 s{sdst}, s{sdst}, 98304")
            else:
                a(f"""s_mov_b32 s{sdst}, {c[0]}
                s_cmp_eq_u32 s{S_HH}, 1
                s_cselect_b32 s{sdst}, {c[1]}, s{sdst}
                s_cmp_eq_u32 s{S_HH}, 2
                s_cselect_b32 s{sdst}, {c[2]}, s{sdst}
                s_cmp_eq_u32 s{S_HH}, 3
                s_cselect_b32 s{sdst}, {c[3]}, s{sdst}""")
        cb_addr(S_T0, p); cb_addr(S_T1, 1 - p)
        a(f"""v_add_u32 v{cr}, s{S_T1}, v{V_L16}
        v_add_u32 v{cw}, s{S_T0}, v{V_L16}
        s_lshl_b32 s{S_T0}, s{S_WAVE}, 11
        s_add_u32 s{S_T0}, s{S_T0}, {SLOT}
        s_xor_b32 s{S_T1}, s{S_T0}, 0x2000
        v_lshlrev_b32 v{mw}, 2, v{V_LANE}
        v_add_u32 v{mr}, s{S_T1}, v{mw}
        v_add_u32 v{mw}, s{S_T0}, v{mw}""")
        own0, oth0 = 4 * p, 4 * (1 - p)
        for qt in range(3):
            a(f"ds_write_b32 v{mw}, v{NM(qt)} offset:{qt*256}")
            a(f"ds_write_b32 v{mw}, v{V_L+qt} offset:{768+qt*256}")
        cbw = [f"ds_write_b128 v{cw}, {vr(O(oth0,0)+i*4,4)} offset:{i*1024}" for i in range(12)]
        if p == 1:
            interleave(late, cbw)
        else:
            for o in cbw: a(o)
        a("s_waitcnt lgkmcnt(0)\ns_barrier\ns_setprio 0")
        if p == 0: stamp(26)
        NMo, Lo = V_P, V_P + 3
        for qt in range(3):
            a(f"ds_read_b32 v{NMo+qt}, v{mr} offset:{qt*256}")
            a(f"ds_read_b32 v{Lo+qt}, v{mr} offset:{768+qt*256}")
        for i in range(12):
            a(f"ds_read_b128 {vr(O(oth0,0)+i*4,4)}, v{cr} offset:{i*1024}")
        a("s_waitcnt lgkmcnt(12)")
        FA, FB, LL = 88, 96, 104
        for qt in range(3):
            n_ = V_F + qt
            fa, fb = FA + 2 * qt, FB + 2 * qt
            a(f"""v_min_f32 v{n_}, v{NM(qt)}, v{NMo+qt}
            v_sub_f32 v{fa}, v{n_}, v{NM(qt)}
            v_sub_f32 v{fb}, v{n_}, v{NMo+qt}
            v_exp_f32 v{fa}, v{fa}
            v_exp_f32 v{fb}, v{fb}
            s_nop 0
            v_mul_f32 v{LL+qt}, v{fa}, v{V_L+qt}
            v_fma_f32 v{LL+qt}, v{fb}, v{Lo+qt}, v{LL+qt}
            v_rcp_f32 v{V_F+4}, v{LL+qt}
            v_log_f32 v{LL+qt}, v{LL+qt}
            s_nop 0
            v_mul_f32 v{fa}, v{fa}, v{V_F+4}
            v_mul_f32 v{fb}, v{fb}, v{V_F+4}
            v_sub_f32 v{LL+qt}, v{LL+qt}, v{n_}""")
        a(f"""s_lshl_b32 s{S_T0}, s2, 3
        s_add_u32 s{S_T0}, s{S_T0}, s{S_WAVE}
        s_mul_i32 s{S_T1}, s{S_T0}, {OREC}
        s_add_u32 s{S_T1}, s{S_T1}, {OX}
        s_add_u32 s{S_T2}, s{S_T1}, 6144
        s_mov_b64 exec, 0xffff
        """)
        def st1(txt):
            La, Lb = a.label("Ls"), a.label("Ls")
            a(f"""s_cbranch_scc1 {La}
            {txt} sc1
            s_branch {Lb}
            {La}:
            {txt}
            {Lb}:""")
        a(f"s_cmp_lg_u32 s{S_LOCAL}, 0")
        st1(f"buffer_store_dwordx4 {vr(LL,4)}, v{V_L16}, s[{S_WS}:{S_WS+3}], s{S_T2} offen")
        a("s_mov_b64 exec, -1")
        OF = V_F + 8
        for tl in range(2):
            a(f"s_waitcnt lgkmcnt({6 - 6*tl})")
            for qt in range(3):
                for h2 in range(2):
                    dt = own0 + tl * 2 + h2
                    o = O(dt, qt); x = O(oth0 + tl * 2 + h2, qt)
                    for k in range(2):
                        a(f"v_pk_mul_f32 {vr(o+2*k,2)}, {vr(o+2*k,2)}, {vr(FA+2*qt,2)} op_sel_hi:[1,0]")
                        a(f"v_pk_fma_f32 {vr(o+2*k,2)}, {vr(x+2*k,2)}, {vr(FB+2*qt,2)}, {vr(o+2*k,2)} op_sel_hi:[1,0,1]")
                    d = OF + (tl * 3 + qt) * 4 + h2 * 2
                    a(f"v_cvt_pk_bf16_f32 v{d}, v{o}, v{o+1}")
                    a(f"v_cvt_pk_bf16_f32 v{d+1}, v{o+2}, v{o+3}")
                i = tl * 3 + qt
                if i == 4:
                    a(f"s_add_u32 s{S_T1}, s{S_T1}, 4096\ns_cmp_lg_u32 s{S_LOCAL}, 0")
                st1(f"buffer_store_dwordx4 {vr(OF+i*4,4)}, v{V_L16}, s[{S_WS}:{S_WS+3}], s{S_T1} offen offset:{(i&3)*1024}")
        if p == 0:
            stamp(27)
            a("s_branch L_tail")
    a("L_tail:")
    woa0 = V_X0
    fa_ = V_X0 + 2
    OF = V_F + 8
    LL = 104
    a(f"""v_mov_b32 v{V_T+2}, s{S_NONCE}
    v_mov_b32 v{V_T+3}, s{S_NONCE+1}
    v_mov_b32 v{V_T+4}, 0
    s_mul_i32 s{S_T1}, s{S_T0}, {OREC}
    s_add_u32 s{S_T1}, s{S_T1}, {OX + 6400}
    s_andn2_b32 s{S_T0}, s{S_T0}, 0xc0
    s_mul_i32 s{S_T0}, s{S_T0}, {OREC}
    s_add_u32 s{S_T0}, s{S_T0}, {OX}
    v_add_u32 v{fa_}, s{S_S}, v{V_LANE}
    v_add_u32 v{fa_}, 1, v{fa_}
    v_and_b32 v{fa_}, 3, v{fa_}
    v_mul_u32_u24 v{fa_}, {64*OREC}, v{fa_}
    s_add_u32 s{S_T3}, s{S_T0}, 6400
    s_mov_b32 s{S_CNT}, 0
    s_cmp_lg_u32 s{S_LOCAL}, 0
    s_waitcnt vmcnt(0)
    s_mov_b64 exec, 1""")
    st1(f"buffer_store_dwordx2 {vr(V_T+2,2)}, v{V_T+4}, s[{S_WS}:{S_WS+3}], s{S_T1} offen")
    a("s_mov_b64 exec, -1")
    stamp(4)
    SP = [S_TAG, S_TAG + 1, S_TAG + 2]
    for j in range(3):
        a(f"""s_add_u32 s{SP[j]}, s{S_S}, {j+1}
        s_and_b32 s{SP[j]}, s{SP[j]}, 3
        s_mul_i32 s{SP[j]}, s{SP[j]}, {64*OREC}
        s_add_u32 s{SP[j]}, s{SP[j]}, s{S_T0}""")
    q16 = V_X0 + 3
    a(f"""v_lshlrev_b32 v{q16}, 4, v{V_Q16}
    v_add_u32 v{q16}, 6144, v{q16}
    s_mov_b64 exec, 7
    L_fpoll:
    s_cmp_lg_u32 s{S_LOCAL}, 0
    s_cbranch_scc1 L_fp_l
    buffer_load_dwordx2 {vr(V_T,2)}, v{fa_}, s[{S_WS}:{S_WS+3}], s{S_T3} offen sc1
    s_branch L_fp_d
    L_fp_l:
    buffer_load_dwordx2 {vr(V_T,2)}, v{fa_}, s[{S_WS}:{S_WS+3}], s{S_T3} offen {lpoll}
    L_fp_d:
    s_add_u32 s{S_CNT}, s{S_CNT}, 1
    s_waitcnt vmcnt(0)
    v_cmp_ne_u64 vcc, s[{S_NONCE}:{S_NONCE+1}], {vr(V_T,2)}
    s_cmp_gt_u32 s{S_CNT}, 0x10000
    s_cbranch_scc1 L_fok
    s_cbranch_vccnz L_fpoll
    L_fok:
    s_mov_b64 exec, -1""")
    stamp(5)
    PL = 32
    PF = 160
    a(f"s_cmp_lg_u32 s{S_LOCAL}, 0\ns_cbranch_scc1 L_old_local")
    for fl in (" sc1", ""):
        if not fl: a("L_old_local:")
        for j in range(3):
            a(f"buffer_load_dwordx4 {vr(PL+j*4,4)}, v{q16}, s[{S_WS}:{S_WS+3}], s{SP[j]} offen{fl}")
        for half in range(2):
            for j in range(3):
                for i3 in range(3):
                    i = half * 3 + i3
                    a(f"buffer_load_dwordx4 {vr(PF+(j*6+i)*4,4)}, v{V_L16}, s[{S_WS}:{S_WS+3}], s{SP[j]} offen offset:{i3*1024}{fl}")
                if half == 0: a(f"s_add_u32 s{SP[j]}, s{SP[j]}, 3072")
        if fl: a("s_branch L_old_done")
    a("L_old_done:")
    if stamps: a(f"s_memrealtime s[{S_RET}:{S_RET+1}]")
    a("s_waitcnt vmcnt(18)")
    if stamps: a(f"s_memrealtime s[{S_SUB}:{S_SUB+1}]")
    def W(j, qt): return 232 + (j * 3 + qt) * 2
    for qt in range(3):
        mx = V_T
        w = [LL + qt] + [PL + j * 4 + qt for j in range(3)]
        a(f"""v_max3_f32 v{mx}, v{w[0]}, v{w[1]}, v{w[2]}
        v_max_f32 v{mx}, v{mx}, v{w[3]}""")
        for j in range(4): a(f"v_sub_f32 v{w[j]}, v{w[j]}, v{mx}")
        for j in range(4): a(f"v_exp_f32 v{w[j]}, v{w[j]}")
        a(f"""s_nop 0
        v_add_f32 v{mx}, v{w[0]}, v{w[1]}
        v_add_f32 v{mx+1}, v{w[2]}, v{w[3]}
        v_add_f32 v{mx}, v{mx}, v{mx+1}
        v_rcp_f32 v{mx}, v{mx}
        s_nop 0""")
        for j in range(4): a(f"v_mul_f32 v{W(j,qt)}, v{w[j]}, v{mx}")
    CA = 32
    def cb_const(v): return 98304 + v * 12288 if v < 5 else (65536 + (v - 5) * 12288 if v < 7 else 0)
    a(f"""s_mov_b32 s{S_T3}, 0xffff0000
    v_add_u32 v{V_VA0}, 0x10000, v{V_L16}
    v_add_u32 v{V_VA1}, 0x20000, v{V_L16}""")
    for half in range(2):
        for j in range(4):
            if j > 0:
                a(f"s_waitcnt vmcnt({18 - 9*half - 3*j})")
                if stamps and j == 3: a(f"s_memrealtime s[{S_SUB+2+2*half}:{S_SUB+3+2*half}]")
            for qt in range(3):
                i = half * 3 + qt
                src = OF + i * 4 if j == 0 else PF + ((j - 1) * 6 + i) * 4
                for d in range(4):
                    c0 = CA + qt * 8 + 2 * d
                    tt = V_T + (d & 1) * 2
                    a(f"v_lshlrev_b32 v{tt}, 16, v{src+d}")
                    a(f"v_and_b32 v{tt+1}, s{S_T3}, v{src+d}")
                    if j == 0:
                        a(f"v_pk_mul_f32 {vr(c0,2)}, {vr(tt,2)}, {vr(W(j,qt),2)} op_sel_hi:[1,0]")
                    else:
                        a(f"v_pk_fma_f32 {vr(c0,2)}, {vr(tt,2)}, {vr(W(j,qt),2)}, {vr(c0,2)} op_sel_hi:[1,0,1]")
        for qt in range(3):
            i = half * 3 + qt
            for d in range(4):
                a(f"v_cvt_pk_bf16_f32 v{OF+i*4+d}, v{CA+qt*8+2*d}, v{CA+qt*8+2*d+1}")
            a(f"ds_write_b128 v{V_KA}, {vr(OF+i*4,4)} offset:{i*1024}")
    WB = 32
    a("s_waitcnt lgkmcnt(0)")
    stamp(24)
    a("s_barrier")
    stamp(6)
    stamp(20, 0, reg=S_RET); stamp(21, 0, reg=S_SUB); stamp(22, 0, reg=S_SUB+2); stamp(23, 0, reg=S_SUB+4)
    YA = 88
    NB = 8
    def bset(k): return 160 + (k % NB) * 12
    def breads(k):
        for qt in range(3):
            hh_, p_, tl_ = k >> 2, (k >> 1) & 1, k & 1
            off = cb_const((4 * p_ + hh_) ^ 4) + (tl_ * 3 + qt) * 1024
            a(f"ds_read_b128 {vr(bset(k)+qt*4,4)}, v{(V_L16, V_VA0, V_VA1)[off >> 16]} offset:{off & 0xffff}")
        if 4 <= k < 8:
            kk = k + 8
            for j2 in range(2):
                a(f"ds_read_b64_tr_b16 {vr(WB+(kk-12)*4+2*j2,2)}, v{woa0} offset:{(WOSLOT[kk>>1]-2)*SLOT + (kk&1)*8192 + j2*4096}")
    def nreads(k): return 3 + (2 if 4 <= k < 8 else 0)
    LA = 3
    for k in range(LA): breads(k)
    for k in range(16):
        if k + LA < 16: breads(k + LA)
        a(f"s_waitcnt lgkmcnt({min(15, sum(nreads(x) for x in range(k + 1, min(16, k + LA + 1))))})")
        af = V_Q + k * 4 if k < 12 else WB + (k - 12) * 4
        for qt in range(3):
            y = YA + qt * 4
            c = "0" if k == 0 else vr(y, 4)
            a(f"v_mfma_f32_16x16x32_bf16 {vr(y,4)}, {vr(af,4)}, {vr(bset(k)+qt*4,4)}, {c}")
    a(f"""s_and_b32 s{S_TAG}, s{S_NONCE}, 0xfff
    s_bfe_u32 s{S_TAG+1}, s{S_NONCE}, 0xc000c
    s_lshr_b64 s[{S_T0}:{S_T1}], s[{S_NONCE}:{S_NONCE+1}], 24
    s_and_b32 s{S_TAG+2}, s{S_T0}, 0xfff
    s_bfe_u32 s{S_TAG+3}, s{S_T0}, 0xc000c
    v_mov_b32 v{V_T}, 0xfff
    s_lshl_b32 s{S_T0}, s2, 3
    s_add_u32 s{S_T0}, s{S_T0}, s{S_WAVE}
    s_mul_i32 s{S_T0}, s{S_T0}, 3072
    s_add_u32 s{S_T0}, s{S_T0}, {YX}
    s_mul_i32 s{S_T1}, s{S_HH}, 3072
    s_add_u32 s{S_T1}, s{S_T1}, {SLOT}
    v_add_u32 v{V_X0+2}, s{S_T1}, v{V_L16}""")
    for i in range(3):
        y = YA + i * 4
        for e in range(4):
            a(f"v_add_u32 v{y+e}, 0x800, v{y+e}")
            a(f"v_bfi_b32 v{y+e}, v{V_T}, s{S_TAG+e}, v{y+e}")
    def ystores(base):
        for i in range(3):
            a(f"buffer_store_dwordx4 {vr(base+i*4,4)}, v{V_L16}, s[{S_WS}:{S_WS+3}], s{S_T0} offen offset:{i*1024} sc1")
    a(f"s_cmp_lg_u32 s{S_P}, 0\ns_cbranch_scc1 L_y1")
    for i in range(3):
        a(f"ds_write_b128 v{V_X0+2}, {vr(YA+i*4,4)} offset:{i*1024}")
    a("s_waitcnt lgkmcnt(0)\ns_barrier\ns_branch L_y2\nL_y1:")
    ystores(YA)
    a("s_barrier")
    for i in range(3):
        a(f"ds_read_b128 {vr(160+i*4,4)}, v{V_X0+2} offset:{i*1024}")
    a(f"s_sub_u32 s{S_T0}, s{S_T0}, {4*3072}\ns_waitcnt lgkmcnt(0)")
    ystores(160)
    a("s_endpgm\nL_y2:")
    stamp(29)
    ys = V_X0
    a(f"""s_cmp_ge_u32 s{S_WAVE}, 3
    s_cbranch_scc1 L_end
    s_andn2_b32 s{S_T0}, s2, 7
    s_lshl_b32 s{S_T0}, s{S_T0}, 3
    s_add_u32 s{S_T0}, s{S_T0}, s{S_HKV}
    s_mul_i32 s{S_T0}, s{S_T0}, 3072
    s_lshl_b32 s{S_T1}, s{S_WAVE}, 10
    s_add_u32 s{S_T0}, s{S_T0}, s{S_T1}
    s_add_u32 s{S_T0}, s{S_T0}, {YX}
    s_mov_b32 s{S_CNT}, 0
    s_mov_b32 s{S_T3}, 0xfffff000
    """)
    if ysent:
        a(f"""    v_mul_u32_u24 v{ys}, {8*3072}, v{V_LANE}
    v_add_u32 v{ys}, 1008, v{ys}
    s_mov_b64 exec, 0xff
    L_ysent:
    buffer_load_dwordx4 {vr(V_T+4,4)}, v{ys}, s[{S_WS}:{S_WS+3}], s{S_T0} offen sc1
    s_add_u32 s{S_CNT}, s{S_CNT}, 1
    s_waitcnt vmcnt(0)
    v_xor_b32 v{V_T+1}, s{S_TAG}, v{V_T+4}
    v_bitop3_b32 v{V_T+1}, v{V_T+1}, v{V_T+5}, s{S_TAG+1} bitop3:0xf6
    v_bitop3_b32 v{V_T+1}, v{V_T+1}, v{V_T+6}, s{S_TAG+2} bitop3:0xf6
    v_and_b32 v{V_T+1}, v{V_T+1}, v{V_T}
    v_cmp_ne_u32 vcc, 0, v{V_T+1}
    s_cmp_gt_u32 s{S_CNT}, 0x10000
    s_cbranch_scc1 L_ysent_x
    s_cbranch_vccnz L_ysent
    L_ysent_x:
    s_mov_b64 exec, -1
    s_mov_b32 s{S_CNT}, 0""")
    a(f"""    L_ypoll:
    s_mov_b32 s{S_T1}, s{S_T0}""")
    YR = 160
    for j in range(8):
        a(f"buffer_load_dwordx4 {vr(YR+j*4,4)}, v{V_L16}, s[{S_WS}:{S_WS+3}], s{S_T1} offen sc1")
        if j < 7:
            a(f"s_add_u32 s{S_T1}, s{S_T1}, {8*3072}")
    for e in range(4):
        a(f"v_mov_b32 v{V_T+1+e}, 0")
    SUMR = 112
    for j in range(8):
        if j % 2 == 0:
            a(f"s_waitcnt vmcnt({6 - j})")
        for e in range(4):
            r = YR + j * 4 + e
            a(f"v_bitop3_b32 v{V_T+1+e}, v{V_T+1+e}, v{r}, s{S_TAG+e} bitop3:0xf6")
            if j == 0:
                a(f"v_and_b32 v{SUMR+e}, s{S_T3}, v{r}")
            else:
                a(f"v_and_b32 v{r}, s{S_T3}, v{r}")
                a(f"v_add_f32 v{SUMR+e}, v{SUMR+e}, v{r}")
    a(f"""v_or3_b32 v{V_T+1}, v{V_T+1}, v{V_T+2}, v{V_T+3}
    v_or_b32 v{V_T+1}, v{V_T+1}, v{V_T+4}
    v_and_b32 v{V_T+1}, v{V_T+1}, v{V_T}
    v_cmp_ne_u32 vcc, 0, v{V_T+1}
    s_cbranch_vccz L_yok
    s_add_u32 s{S_CNT}, s{S_CNT}, 1
    s_cmp_lt_u32 s{S_CNT}, 0x10000
    s_cbranch_scc1 L_ypoll
    L_yok:
    v_cvt_pk_bf16_f32 v{V_T+2}, v{SUMR}, v{SUMR+1}
    v_cvt_pk_bf16_f32 v{V_T+3}, v{SUMR+2}, v{SUMR+3}
    v_lshlrev_b32 v{V_X0}, 10, v{V_Q16}
    v_lshl_add_u32 v{V_X0}, v{V_G}, 3, v{V_X0}
    s_mul_i32 s{S_T0}, s{S_B}, {48*1024}
    s_lshl_b32 s{S_T1}, s{S_WAVE}, 14
    s_add_u32 s{S_T0}, s{S_T0}, s{S_T1}
    s_lshl_b32 s{S_T1}, s{S_S}, 8
    s_add_u32 s{S_T0}, s{S_T0}, s{S_T1}
    s_lshl_b32 s{S_T1}, s{S_HKV}, 5
    s_add_u32 s{S_T0}, s{S_T0}, s{S_T1}
    buffer_store_dwordx2 {vr(V_T+2,2)}, v{V_X0}, s[{S_OUT}:{S_OUT+3}], s{S_T0} offen""")
    if stamps: a("s_waitcnt vmcnt(0)")
    stamp(7)
    a("L_end:\ns_endpgm")

    for qt in range(3):
        a(f"L_rescale{qt}:")
        a("s_nop 7")
        d, al = V_T, V_T + 1
        tile_max(qt, d)
        a(f"""v_max_f32 v{d}, 0, v{d}
        v_sub_f32 v{al}, 0, v{d}
        v_exp_f32 v{al}, v{al}""")
        for i in range(4):
            a(f"v_sub_f32 v{NM(qt)+i}, v{NM(qt)+i}, v{d}")
        for kt in range(2):
            for i in range(4):
                a(f"v_sub_f32 v{S(kt,qt)+i}, v{S(kt,qt)+i}, v{d}")
        a(f"v_mul_f32 v{V_L+qt}, v{V_L+qt}, v{al}")
        for dt in range(8):
            for i in range(4):
                a(f"v_mul_f32 v{O(dt,qt)+i}, v{O(dt,qt)+i}, v{al}")
        for o in sm_ops(qt, False)[:-1]:
            a(o)
        a("s_nop 1")
        a(f"s_setpc_b64 s[{S_RET}:{S_RET+1}]")
    a("L_code_end:")
    a(".fill 3072, 4, 0xBF800000")
    a.end_kernel(MAIN, 256, sgpr=102, accum=256)
    hdr = """Fused GQA block (Q-proj + split-K attention over the KV cache + out-proj), one launch.
Generated by gen/attn6.py (hand-written generator).
kernarg: x, k_cache, v_cache, wq, wo, out, debug, ws"""
    txt = a.text(hdr)
    est = 0
    for l in a.lines:
        t = l.strip()
        if not l.startswith("  ") or t.startswith("."): continue
        est += 4 if (t.startswith("s_") and not t.startswith("s_load") and not t.startswith("s_mem")) else 8
    nld = 5
    pf = []
    for i in range(nld):
        pf.append(f"  global_load_dword v31, v{t0}, s[{S_ACC}:{S_ACC+1}]")
        pf.append(f"  v_add_u32 v{t0}, 0x2000, v{t0}")
    txt = txt.replace("  PFC_LOADS", "\n".join(pf))
    return txt


if __name__ == "__main__":
    import argparse
    ap = argparse.ArgumentParser()
    ap.add_argument("-o", default="standalone__gqa_block_cached__near_ridge.s")
    ap.add_argument("--stamps", action="store_true")
    ap.add_argument("--kvpol", default="nt")
    ap.add_argument("--wpol", default="")
    ap.add_argument("--thr", type=float, default=256.0)
    ap.add_argument("--depth", type=int, default=6)
    ap.add_argument("--sched", default="0,5,5,5,4")
    ap.add_argument("--nopfc", action="store_true")
    ap.add_argument("--nolad", action="store_true")
    ap.add_argument("--exp", default="")
    ap.add_argument("--norot", action="store_true")
    ap.add_argument("--ekv", type=int, default=3)
    ap.add_argument("--lpoll", default="nt")
    ap.add_argument("--touch", type=int, default=4)
    ap.add_argument("--npro", type=int, default=13)
    ap.add_argument("--noysep", action="store_true")
    ap.add_argument("--qahead", type=int, default=2)
    ap.add_argument("--krot", type=int, default=0)
    ap.add_argument("--early", type=int, default=0)
    args = ap.parse_args()
    kw = {}
    if args.nolad: kw["lad"] = None
    if args.exp: kw["exp"] = args.exp.split(",")
    kw["rot"] = not args.norot
    kw["ekv"] = args.ekv
    kw["lpoll"] = args.lpoll
    kw["touch"] = args.touch
    kw["npro"] = args.npro
    kw["ysep"] = not args.noysep
    kw["qahead"] = args.qahead
    kw["krot"] = args.krot
    kw["early"] = args.early
    open(args.o, "w").write(gen(kvpol=args.kvpol, wpol=args.wpol, stamps=args.stamps, thr=args.thr, depth=args.depth,
                                sched=tuple(int(x) for x in args.sched.split(",")), pf_code=not args.nopfc, **kw))
    print("wrote", args.o)
```
